```python
import torch

def _softmax(x, axis=-1):
    return torch.softmax(x, dim=axis)

def _gelu(x):
    return torch.nn.functional.gelu(x, approximate='tanh')

def _silu(x):
    return torch.nn.functional.silu(x)

def _sigmoid(x):
    return torch.sigmoid(x)

def _layernorm(x, axis=-1, eps=1e-05):
    m = x.mean(dim=axis, keepdim=True)
    v = x.var(dim=axis, keepdim=True, unbiased=False)
    return (x - m) / torch.sqrt(v + eps)

def _scatter_add(tgt, idx, src, axis=0):
    return tgt.clone().index_add_(axis, idx, src)

def _segment_sum(src, seg, n):
    out = torch.zeros((n,) + src.shape[1:], dtype=src.dtype)
    return out.index_add_(0, seg, src)

def _pad(x, pw):
    flat = tuple((v for pair in reversed(pw) for v in pair))
    return torch.nn.functional.pad(x, flat)
kernel_name = 'standalone__dit_block__diffusion'

def setup_inputs():

    _w = lambda a: (lambda t: t.to(torch.bfloat16) if t.is_floating_point() else t)(torch.as_tensor(a))
    B, N, D = (2, 1024, 384)
    F = 4 * D
    return {'x': _w((lambda *s: torch.randn(*s, dtype=torch.bfloat16) * 0.05)(B, N, D)), 'c': _w((lambda *s: torch.randn(*s, dtype=torch.bfloat16) * 0.2)(B, D)), 'wqkv': _w((lambda *s: torch.randn(*s, dtype=torch.bfloat16) * 0.05)(D, 3 * D)), 'wo': _w((lambda *s: torch.randn(*s, dtype=torch.bfloat16) * 0.05)(D, D)), 'w_mod': _w((lambda *s: torch.randn(*s, dtype=torch.bfloat16) * 0.2)(D, 6 * D)), 'w_fc1': _w((lambda *s: torch.randn(*s, dtype=torch.bfloat16) * 0.05)(D, F)), 'w_fc2': _w((lambda *s: torch.randn(*s, dtype=torch.bfloat16) * 0.05)(F, D))}

def reference(x, c, wqkv, wo, w_mod, w_fc1, w_fc2):
    B, N, D = x.shape
    H = 2
    Dh = D // H
    mod = (_silu(c) @ w_mod).reshape(B, 6, 1, D)
    shift_a, scale_a, gate_a, shift_m, scale_m, gate_m = [mod[:, i] for i in range(6)]
    h = _layernorm(x, axis=-1) * (1 + scale_a) + shift_a
    qkv = (h @ wqkv).reshape(B, N, 3, H, Dh)
    q, k, v = (qkv[:, :, 0].clone(), qkv[:, :, 1].clone(), qkv[:, :, 2].clone())
    attn = _softmax(torch.einsum('bqhd,bkhd->bhqk', q, k) * Dh ** (-0.5), axis=-1)
    a = torch.einsum('bhqk,bkhd->bqhd', attn, v).reshape(B, N, D) @ wo
    x = x + gate_a * a
    h2 = _layernorm(x, axis=-1) * (1 + scale_m) + shift_m
    m = _gelu(h2 @ w_fc1) @ w_fc2
    return x + gate_m * m
```

```python
WS_MOD=0; WS_WQKV=0x10000; WS_WO=WS_WQKV+884736; WS_W1=WS_WO+294912; WS_W2=WS_W1+1179648
WS_Q=0x400000; WS_K=WS_Q+0x180000; WS_V=WS_K+0x180000
WS_OP=0x900000; WS_ML=WS_OP+0x600000
WS_X1=0x1000000; WS_G=0x1200000; WS_SIZE=0x2000000
KA=dict(x=0,c=8,wqkv=16,wo=24,wmod=32,w1=40,w2=48,out=56,dbg=64,ws=72)
SZ=dict(x=1572864,c=1536,wqkv=884736,wo=294912,wmod=1769472,w1=1179648,w2=1179648,out=1572864,dbg=256,ws=WS_SIZE)
class K:
    def __init__(s,name,grid,block,lds,nv,na):
        s.name=name; s.grid=grid; s.block=block; s.lds=lds; s.nv=nv; s.na=na; s.L=[]; s.vm=[]; s.lg=[]; s.nl=0
    def e(s,t): s.L.append('  '+t)
    def lab(s,n): s.L.append(f'{s.name}_{n}:')
    def ln(s,n): return f'{s.name}_{n}'
    def srd(s,d,b,name):
        s.e(f's_mov_b32 s{d}, s{b}'); s.e(f's_and_b32 s{d+1}, s{b+1}, 0xffff')
        s.e(f's_mov_b32 s{d+2}, {SZ[name]}'); s.e(f's_mov_b32 s{d+3}, 0x20000')
    def vmem(s,t,tag=None): s.e(t); s.vm.append(tag)
    def wvm(s,tag):
        idx=max(i for i,x in enumerate(s.vm) if x==tag); n=len(s.vm)-1-idx
        assert n<=63,n
        s.e(f's_waitcnt vmcnt({n})')
    def ds(s,t,tag=None): s.e(t); s.lg.append(tag)
    def wlg(s,tag):
        idx=max(i for i,x in enumerate(s.lg) if x==tag); n=len(s.lg)-1-idx
        s.e(f's_waitcnt lgkmcnt({min(n,15)})')
    def text(s):
        return f'.globl {s.name}\n.p2align 8\n.type {s.name},@function\n{s.name}:\n'+'\n'.join(s.L)+'\n'
    def desc(s):
        acc=(s.nv+3)//4*4
        return f'''.p2align 6
.amdhsa_kernel {s.name}
  .amdhsa_next_free_vgpr {acc+s.na if s.na else s.nv}
  .amdhsa_next_free_sgpr 96
  .amdhsa_accum_offset {acc}
  .amdhsa_group_segment_fixed_size 0
  .amdhsa_kernarg_size 80
  .amdhsa_user_sgpr_count 2
  .amdhsa_user_sgpr_kernarg_segment_ptr 1
  .amdhsa_system_sgpr_workgroup_id_x 1
.end_amdhsa_kernel
'''
def r(p,i,n=1): return f'{p}{i}' if n==1 else f'{p}[{i}:{i+n-1}]'
def v(i,n=1): return r('v',i,n)
def a(i,n=1): return r('a',i,n)
def build(ks,path):
    hdr=open('standalone__dit_block__diffusion.s.ref').read().split('; Override')[0]
    s=hdr
    for k in ks: s+=f"; @launch kernel={k.name} grid=({k.grid},1,1) block=({k.block},1,1) lds={k.lds}\n"
    s+='.amdgcn_target "amdgcn-amd-amdhsa--gfx950"\n.text\n'
    seen=[]
    for k in ks:
        if k.name not in [x.name for x in seen]: seen.append(k)
    for k in seen: s+=k.text()
    s+='.section .rodata,"a"\n'
    for k in seen: s+=k.desc()
    open(path,'w').write(s)
def prologue(k,nwg,ptrs):
    k.e(f's_cmp_ge_u32 s2, {nwg}'); k.e(f's_cbranch_scc1 {k.ln("end")}')
    for n,b,d in ptrs: k.e(f's_load_dwordx2 s[{b}:{b+1}], s[0:1], {KA[n]}')
    k.e('v_lshrrev_b32 v5, 6, v0'); k.e('v_and_b32 v1, 63, v0'); k.e('v_and_b32 v2, 15, v0')
    k.e('v_readfirstlane_b32 s3, v5'); k.e('v_lshrrev_b32 v3, 4, v1'); k.e('v_lshlrev_b32 v4, 4, v1')
    k.e('s_waitcnt lgkmcnt(0)')
    for n,b,d in ptrs: k.srd(d,b,n)
def xred(k,regs,tmp,op):
    for sw in ('v_permlane16_swap_b32','v_permlane32_swap_b32'):
        for x,t in zip(regs,tmp): k.e(f'v_mov_b32 v{t}, v{x}')
        k.e('s_nop 1')
        for x,t in zip(regs,tmp): k.e(f'{sw} v{x}, v{t}')
        k.e('s_nop 1')
        for x,t in zip(regs,tmp): k.e(f'{op} v{x}, v{x}, v{t}')
```

```python
from base import *
def prep_body(k,name,N,KB,perm,wg0,dst,srd,wsrd):
    rb=N*2
    k.e(f's_sub_u32 s40, s2, {wg0}'); k.e('s_lshl_b32 s40, s40, 2'); k.e('s_add_u32 s40, s40, s3')
    k.e('s_mul_i32 s41, s40, 43691'); k.e(f's_lshr_b32 s41, s41, {19 if KB==12 else 21}')
    k.e(f's_mul_i32 s42, s41, {KB}'); k.e('s_sub_u32 s42, s40, s42')
    k.e(f's_mul_i32 s43, s42, {32*rb}'); k.e('s_lshl_b32 s44, s41, 8'); k.e('s_add_u32 s43, s43, s44')
    k.e(f'v_mul_u32_u24 v6, {(4 if perm else 8)*rb}, v3'); k.e('v_lshl_add_u32 v6, v2, 4, v6')
    for j in range(8):
        jr=(16*(j>>2)+(j&3)) if perm else j
        k.e(f's_add_u32 s45, s43, {jr*rb}')
        k.e(f'buffer_load_dwordx4 {v(16+4*j,4)}, v6, s[{srd}:{srd+3}], s45 offen')
    k.e('v_lshrrev_b32 v7, 1, v2'); k.e(f'v_mul_u32_u24 v7, {KB*1024}, v7'); k.e('v_lshl_add_u32 v7, v3, 8, v7')
    k.e('v_and_b32 v8, 1, v2'); k.e('v_lshl_add_u32 v7, v8, 7, v7')
    k.e(f's_mul_i32 s46, s41, {8*KB}'); k.e('s_add_u32 s46, s46, s42'); k.e('s_lshl_b32 s46, s46, 10'); k.e(f's_add_u32 s46, s46, {dst}')
    k.e('s_mov_b32 s47, 0x05040100'); k.e('s_mov_b32 s48, 0x07060302')
    k.stamp(2); k.e('s_waitcnt vmcnt(0)'); k.stamp(3)
    for f in range(8):
        for p in range(4):
            k.e(f'v_perm_b32 v{48+4*f+p}, v{16+4*(2*p+1)+(f>>1)}, v{16+4*(2*p)+(f>>1)}, s{48 if f&1 else 47}')
        k.e(f'buffer_store_dwordx4 {v(48+4*f,4)}, v7, s[{wsrd}:{wsrd+3}], s46 offen offset:{16*f}')
    k.stamp(4); k.end(5,32)
def mod_body(k,wg0,csrd,msrd,wsrd,sc1=''):
    k.e(f's_sub_u32 s40, s2, {wg0}')
    k.e('v_lshrrev_b32 v6, 2, v0'); k.e('v_and_b32 v7, 3, v0')
    k.e('v_mul_u32_u24 v8, 4608, v6'); k.e('v_lshl_add_u32 v8, v7, 4, v8'); k.e('v_lshlrev_b32 v9, 1, v6')
    k.e('s_lshl_b32 s41, s40, 6')
    for b in range(2):
        for i in range(6): k.e(f'buffer_load_ushort v{40+b*6+i}, v9, s[{csrd}:{csrd+3}], 0 offen offset:{b*768+i*128}')
    for i in range(6):
        k.e(f's_add_u32 s42, s41, {i*64*4608}')
        k.e(f'buffer_load_dwordx4 {v(16+4*i,4)}, v8, s[{msrd}:{msrd+3}], s42 offen')
    for i in range(16): k.e(f'v_mov_b32 v{64+i}, 0')
    k.e('s_waitcnt vmcnt(6)')
    for i in range(12): k.e(f'v_lshlrev_b32 v{40+i}, 16, v{40+i}')
    for i in range(12): k.e(f'v_mul_f32 v{52+i}, 0xbfb8aa3b, v{40+i}')
    for i in range(12): k.e(f'v_exp_f32 v{52+i}, v{52+i}')
    k.e('s_nop 0')
    for i in range(12): k.e(f'v_add_f32 v{52+i}, 1.0, v{52+i}')
    for i in range(12): k.e(f'v_rcp_f32 v{52+i}, v{52+i}')
    k.e('s_nop 0')
    for i in range(12): k.e(f'v_mul_f32 v{40+i}, v{40+i}, v{52+i}')
    for i in range(12): k.e(f'v_cvt_pk_bf16_f32 v{40+i}, v{40+i}, v{40+i}')
    for i in range(12): k.e(f'v_lshlrev_b32 v{40+i}, 16, v{40+i}')
    for i in range(6):
        k.e(f's_waitcnt vmcnt({5-i})')
        for p in range(4):
            k.e(f'v_lshlrev_b32 v52, 16, v{16+4*i+p}'); k.e(f'v_and_b32 v53, 0xffff0000, v{16+4*i+p}')
            for b in range(2):
                k.e(f'v_fmac_f32 v{64+8*b+2*p}, v{40+6*b+i}, v52'); k.e(f'v_fmac_f32 v{64+8*b+2*p+1}, v{40+6*b+i}, v53')
    for ro in (4,8):
        k.e('s_nop 1')
        for i in range(16): k.e(f'v_add_f32_dpp v{80+i}, v{64+i}, v{64+i} row_ror:{ro} row_mask:0xf bank_mask:0xf')
        for i in range(16): k.e(f'v_mov_b32 v{64+i}, v{80+i}')
    k.e('v_lshrrev_b32 v10, 4, v0'); k.e('v_lshlrev_b32 v10, 8, v10'); k.e('v_lshl_add_u32 v10, v7, 5, v10')
    for q in range(4): k.e(f'ds_write_b128 v10, {v(64+4*q,4)} offset:{(q>>1)*128+(q&1)*16}')
    k.e('s_waitcnt lgkmcnt(0)'); k.e('s_barrier')
    k.e('s_cmp_lg_u32 s3, 0'); k.e(f's_cbranch_scc1 {k.ln("moddone")}')
    k.e('v_lshlrev_b32 v10, 2, v0')
    for p in range(16): k.e(f'ds_read_b32 v{16+p}, v10 offset:{p*256}')
    k.e('s_waitcnt lgkmcnt(0)')
    for st in (8,4,2,1):
        for p in range(st): k.e(f'v_add_f32 v{16+p}, v{16+p}, v{16+p+st}')
    k.e('v_cvt_pk_bf16_f32 v16, v16, v16'); k.e('v_lshlrev_b32 v16, 16, v16')
    k.e('v_add_f32 v17, 1.0, v16'); k.e('v_cvt_pk_bf16_f32 v17, v17, v17'); k.e('v_lshlrev_b32 v17, 16, v17')
    k.e('s_mul_i32 s42, s40, 43691'); k.e('s_lshr_b32 s42, s42, 19')
    k.e('s_cmp_eq_u32 s42, 1'); k.e('s_cselect_b32 s43, 1, 0'); k.e('s_cmp_eq_u32 s42, 4'); k.e('s_cselect_b32 s43, 1, s43')
    k.e('s_cmp_eq_u32 s43, 1'); k.e('s_cselect_b64 vcc, -1, 0'); k.e('v_cndmask_b32 v16, v16, v17, vcc')
    k.e('v_lshrrev_b32 v11, 5, v0'); k.e('v_mul_u32_u24 v11, 9216, v11'); k.e('v_and_b32 v12, 31, v0'); k.e('v_lshl_add_u32 v11, v12, 2, v11')
    k.e('s_lshl_b32 s42, s40, 7')
    k.e(f'buffer_store_dword v16, v11, s[{wsrd}:{wsrd+3}], s42 offen{sc1}')
    k.e('v_lshrrev_b32 v11, 1, v11'); k.e('s_lshr_b32 s42, s42, 1'); k.e('s_add_u32 s42, s42, 0xC000')
    k.e(f'buffer_store_short_d16_hi v16, v11, s[{wsrd}:{wsrd+3}], s42 offen{sc1}')
    k.lab('moddone')
def k_prep():
    k=K('prep_kernel',180,256,4096,96,0)
    prologue(k,180,[('wqkv',4,16),('wo',6,20),('w1',8,24),('w2',10,28),('ws',12,32),('c',14,36),('wmod',50,52)])
    k.e('s_cmp_ge_u32 s2, 72'); k.e(f's_cbranch_scc1 {k.ln("p0")}')
    k.stamp(2); k.stamp(3); mod_body(k,0,36,52,32); k.stamp(4); k.end(5,32)
    segs=[('wqkv',1152,12,False,72,WS_WQKV,16,99),('wo',384,12,True,99,WS_WO,20,108),('w1',1536,12,False,108,WS_W1,24,144),('w2',384,48,True,144,WS_W2,28,180)]
    for i,(n,N,KB,pm,w0,dst,srd,w1) in enumerate(segs):
        k.lab(f'p{i}')
        if i<3: k.e(f's_cmp_ge_u32 s2, {w1}'); k.e(f's_cbranch_scc1 {k.ln(f"p{i+1}")}')
        prep_body(k,n,N,KB,pm,w0,dst,srd,32)
    k.lab('end'); k.e('s_endpgm')
    return k
```

```python
import sys
from base import *
from k_prep import *; from k_lngemm import *; from k_attn import *; from k_ks import *
ks=[k_prep(),k_qkv(),k_attn(),k_wo(),k_fc1(),k_fc2()]
build(ks,sys.argv[1] if len(sys.argv)>1 else 'standalone__dit_block__diffusion.s')
```

```python
import sys
from base import *
from k_prep import *; from k_lngemm import *; from k_attn import *; from k_ks import *
def k_empty():
    k=K('empty_kernel',256,256,0,32,0); k.e('s_endpgm'); return k
ks=[k_prep(),k_qkv(),k_attn(),k_wo(),k_fc1(),k_fc2()]
build(ks+[k_empty()]*6,'e6.s')
build(ks+ks,'dbl.s')
```

```python
WS_MOD=0; WS_WQKV=0x10000; WS_WO=WS_WQKV+884736; WS_W1=WS_WO+294912; WS_W2=WS_W1+1179648
WS_Q=0x400000; WS_K=WS_Q+0x180000; WS_V=WS_K+0x180000
WS_OP=0x900000; WS_ML=WS_OP+0x600000
WS_X1=0x1000000; WS_G=0x1200000; WS_SIZE=0x2000000
KA=dict(x=0,c=8,wqkv=16,wo=24,wmod=32,w1=40,w2=48,out=56,dbg=64,ws=72)
SZ=dict(x=1572864,c=1536,wqkv=884736,wo=294912,wmod=1769472,w1=1179648,w2=1179648,out=1572864,dbg=256,ws=WS_SIZE)
DIAG={}
class K:
    def __init__(s,name,grid,block,lds,nv,na):
        s.name=name; s.grid=grid; s.block=block; s.lds=lds; s.nv=nv; s.na=na; s.L=[]; s.vm=[]; s.lg=[]; s.nl=0; s.diag=DIAG.get(name)
    def e(s,t): s.L.append('  '+t)
    def lab(s,n): s.L.append(f'{s.name}_{n}:')
    def ln(s,n): return f'{s.name}_{n}'
    def srd(s,d,b,name):
        s.e(f's_mov_b32 s{d}, s{b}'); s.e(f's_and_b32 s{d+1}, s{b+1}, 0xffff')
        s.e(f's_mov_b32 s{d+2}, {SZ[name]}'); s.e(f's_mov_b32 s{d+3}, 0x20000')
    def vmem(s,t,tag=None): s.e(t); s.vm.append(tag)
    def wvm(s,tag):
        idx=max(i for i,x in enumerate(s.vm) if x==tag); n=len(s.vm)-1-idx
        assert n<=63,n
        s.e(f's_waitcnt vmcnt({n})')
    def ds(s,t,tag=None): s.e(t); s.lg.append(tag)
    def wlg(s,tag):
        idx=max(i for i,x in enumerate(s.lg) if x==tag); n=len(s.lg)-1-idx
        s.e(f's_waitcnt lgkmcnt({min(n,15)})')
    diag=None
    def stamp(s,i):
        if s.diag is None: return
        s.e(f's_memrealtime s[{64+2*i}:{65+2*i}]'); s.e('s_waitcnt lgkmcnt(0)'); s.nst=max(getattr(s,'nst',0),i+1)
    def end(s,last=None,wsrd=12):
        if s.diag is not None and last is not None:
            s.e('s_waitcnt vmcnt(0)'); s.stamp(last)
            s.e('s_lshl_b32 s62, s2, 2'); s.e('s_add_u32 s62, s62, s3'); s.e('s_lshl_b32 s62, s62, 7'); s.e(f's_add_u32 s62, s62, {0x1f00000+s.diag*131072}')
            s.e('v_mov_b32 v10, 0'); s.e('s_mov_b64 exec, 1')
            for i in range(last+1):
                s.e(f'v_mov_b32 v12, s{64+2*i}'); s.e(f'v_mov_b32 v13, s{65+2*i}')
                s.e(f'buffer_store_dwordx2 v[12:13], v10, s[{wsrd}:{wsrd+3}], s62 offen offset:{8*i}'); s.e('s_nop 1')
        s.e('s_endpgm')
    def text(s):
        return f'.globl {s.name}\n.p2align 8\n.type {s.name},@function\n{s.name}:\n'+'\n'.join(s.L)+'\n'
    def desc(s):
        acc=(s.nv+3)//4*4
        return f'''.p2align 6
.amdhsa_kernel {s.name}
  .amdhsa_next_free_vgpr {acc+s.na if s.na else s.nv}
  .amdhsa_next_free_sgpr 100
  .amdhsa_accum_offset {acc}
  .amdhsa_group_segment_fixed_size 0
  .amdhsa_kernarg_size 80
  .amdhsa_user_sgpr_count 2
  .amdhsa_user_sgpr_kernarg_segment_ptr 1
  .amdhsa_system_sgpr_workgroup_id_x 1
.end_amdhsa_kernel
'''
def r(p,i,n=1): return f'{p}{i}' if n==1 else f'{p}[{i}:{i+n-1}]'
def v(i,n=1): return r('v',i,n)
def a(i,n=1): return r('a',i,n)
def build(ks,path):
    hdr=open('standalone__dit_block__diffusion.s.ref').read().split('; Override')[0]
    s=hdr
    for k in ks: s+=f"; @launch kernel={k.name} grid=({k.grid},1,1) block=({k.block},1,1) lds={k.lds}\n"
    s+='.amdgcn_target "amdgcn-amd-amdhsa--gfx950"\n.text\n'
    seen=[]
    for k in ks:
        if k.name not in [x.name for x in seen]: seen.append(k)
    for k in seen: s+=k.text()
    s+='.section .rodata,"a"\n'
    for k in seen: s+=k.desc()
    open(path,'w').write(s)
def prologue(k,nwg,ptrs):
    k.e(f's_cmp_ge_u32 s2, {nwg}'); k.e(f's_cbranch_scc1 {k.ln("end")}')
    k.stamp(0)
    for n,b,d in ptrs: k.e(f's_load_dwordx2 s[{b}:{b+1}], s[0:1], {KA[n]}')
    k.e('v_lshrrev_b32 v5, 6, v0'); k.e('v_and_b32 v1, 63, v0'); k.e('v_and_b32 v2, 15, v0')
    k.e('v_readfirstlane_b32 s3, v5'); k.e('v_lshrrev_b32 v3, 4, v1'); k.e('v_lshlrev_b32 v4, 4, v1')
    k.e('s_waitcnt lgkmcnt(0)')
    for n,b,d in ptrs: k.srd(d,b,n)
    k.stamp(1)
def xred(k,regs,tmp,op):
    for sw in ('v_permlane16_swap_b32','v_permlane32_swap_b32'):
        for x,t in zip(regs,tmp): k.e(f'v_mov_b32 v{t}, v{x}')
        k.e('s_nop 1')
        for x,t in zip(regs,tmp): k.e(f'{sw} v{x}, v{t}')
        k.e('s_nop 1')
        for x,t in zip(regs,tmp): k.e(f'{op} v{x}, v{x}, v{t}')
```

```python
from base import *
import struct
f2=lambda x: hex(struct.unpack('<I',struct.pack('<f',x))[0])
WS_FL=0x8000
XS,WS,OS=8,12,16
W='s[12:15]'
def S(k,expr_list):
    for t in expr_list.split(';'):
        t=t.strip()
        if t: k.e(t)
def publish(k,phase,s_grp,s_j,tag):
    k.e('s_waitcnt vmcnt(0)'); k.vm=[]; k.e('s_barrier')
    S(k,f's_cmp_lg_u32 s3, 0; s_cbranch_scc1 {k.ln("pub"+tag)}; s_lshl_b32 s56, s{s_grp}, 7; s_lshl_b32 s57, s{s_j}, 2; s_add_u32 s56, s56, s57; s_add_u32 s56, s56, {WS_FL+phase*4096}')
    S(k,f'v_mov_b32 v10, 0; v_mov_b32 v11, 1; s_mov_b64 exec, 1; buffer_store_dword v11, v10, {W}, s56 offen sc1; s_mov_b64 exec, -1')
    k.lab('pub'+tag)
def poll(k,phase,tag):
    S(k,f's_cmp_lg_u32 s3, 0; s_cbranch_scc1 {k.ln("pd"+tag)}; s_mov_b32 s56, {WS_FL+phase*4096}; s_mov_b32 s57, 0x100000')
    k.lab('pl'+tag)
    S(k,f'buffer_load_dword v11, v10, {W}, s56 offen sc1; s_waitcnt vmcnt(0); v_cmp_ne_u32 vcc, 1, v11; s_sub_u32 s57, s57, 1; s_cbranch_scc1 {k.ln("pd"+tag)}; s_cbranch_vccnz {k.ln("pl"+tag)}')
    k.lab('pd'+tag); k.e('s_barrier')
def poll8(k,phase,s_grp,tag):
    S(k,f'v_and_b32 v10, 7, v1; v_lshlrev_b32 v10, 2, v10; s_lshl_b32 s58, s{s_grp}, 7; v_add_u32 v10, s58, v10')
    poll(k,phase,tag)
class Loads:
    def __init__(s,k,sreg): s.k=k; s.q=[]; s.sreg=sreg; s.cur=None
    def add(s,dst,sb,off,tag,fl=''): s.q.append((dst,sb,off,tag,fl))
    def issue(s,n=999):
        while n and s.q:
            dst,sb,off,tag,fl=s.q.pop(0); n-=1
            s.k.e(f's_add_u32 s{s.sreg}, s{sb}, {off}')
            s.k.vmem(f'buffer_load_dwordx4 {dst}, v4, {W}, s{s.sreg} offen{fl}',tag)
X=16; ACC=64; AF=112; MT=144; T=160
def ln_phase(k,xsrd,xsoff,modoff,fl,ld,pre,per):
    S(k,f's_lshl_b32 s50, s3, 10; s_add_u32 s51, s50, 49152; s_mov_b32 m0, s51; s_add_u32 s50, s50, s{modoff}')
    k.vmem(f'buffer_load_dwordx4 v4, {W}, s50 offen lds','mod')
    S(k,f'v_mul_u32_u24 v6, 768, v2; v_lshl_add_u32 v6, v3, 4, v6; s_mul_i32 s50, s3, {16*768}; s_add_u32 s50, s50, s{xsoff}')
    for f in range(12): k.vmem(f'buffer_load_dwordx4 {v(X+4*f,4)}, v6, s[{xsrd}:{xsrd+3}], s50 offen offset:{64*f}{fl}','x%d'%f)
    ld.issue(pre)
    k.e('s_mov_b32 s55, 0x3f803f80')
    for i in range(8): k.e(f'v_mov_b32 v{T+i}, 0')
    S(k,'v_lshlrev_b32 v7, 5, v3; v_add_u32 v7, 49152, v7; s_mul_i32 s50, s3, 12288; v_add_u32 v8, s50, v4')
    for f in range(12):
        if f%4==0: k.wvm('x%d'%(f+3))
        for p in range(4):
            k.e(f'v_dot2c_f32_bf16 v{T+p}, s55, v{X+4*f+p}'); k.e(f'v_dot2c_f32_bf16 v{T+4+p}, v{X+4*f+p}, v{X+4*f+p}')
    k.e('s_barrier')
    def rdmod(f):
        o=MT+(f&1)*16+32
        for q in range(4): k.ds(f'ds_read_b128 {v(o+4*q,4)}, v7 offset:{f*128+(q&1)*16+(q>>1)*1536}',f'm{f}')
    rdmod(0); ld.issue(per)
    S(k,f'v_add_f32 v{T}, v{T}, v{T+1}; v_add_f32 v{T+2}, v{T+2}, v{T+3}; v_add_f32 v{T+4}, v{T+4}, v{T+5}; v_add_f32 v{T+6}, v{T+6}, v{T+7}; v_add_f32 v{T}, v{T}, v{T+2}; v_add_f32 v{T+1}, v{T+4}, v{T+6}')
    xred(k,[T,T+1],[T+2,T+3],'v_add_f32')
    S(k,f'v_mul_f32 v{T}, 0x3b2aaaab, v{T}; v_mul_f32 v{T+1}, 0x3b2aaaab, v{T+1}; v_fma_f32 v{T+1}, -v{T}, v{T}, v{T+1}; v_max_f32 v{T+1}, 0, v{T+1}; v_add_f32 v{T+1}, 0x3727c5ac, v{T+1}')
    S(k,f'v_rsq_f32 v{T+2}, v{T+1}; s_nop 0; v_mul_f32 v{T+4}, v{T}, v{T+2}; v_sub_f32 v{T+4}, 0, v{T+4}')
    for f in range(12):
        if f<11: rdmod(f+1)
        ld.issue(per)
        o=MT+(f&1)*16+32; t=MT+(f&1)*8
        for p in range(4):
            k.e(f'v_lshlrev_b32 v{t+2*p}, 16, v{X+4*f+p}'); k.e(f'v_and_b32 v{t+2*p+1}, 0xffff0000, v{X+4*f+p}')
        for p in range(8): k.e(f'v_fma_f32 v{t+p}, v{t+p}, v{T+2}, v{T+4}')
        k.wlg(f'm{f}')
        for p in range(8): k.e(f'v_fma_f32 v{t+p}, v{t+p}, v{o+8+p}, v{o+p}')
        for p in range(4): k.e(f'v_cvt_pk_bf16_f32 v{X+4*f+p}, v{t+2*p}, v{t+2*p+1}')
        k.ds(f'ds_write_b128 v8, {v(X+4*f,4)} offset:{f*1024}','w')
    ld.issue()
    k.e('s_waitcnt lgkmcnt(0)'); k.e('s_barrier'); k.lg=[]
def gemm(k,trans,btag):
    def rd(kb):
        for rt in range(4): k.ds(f'ds_read_b128 {v(AF+(kb&1)*16+4*rt,4)}, v4 offset:{(rt*12+kb)*1024}',f'a{kb}_{rt}')
    rd(0)
    for kb in range(12):
        if kb<11: rd(kb+1)
        if f'{btag}{kb}' in k.vm: k.wvm(f'{btag}{kb}')
        for rt in range(4):
            k.wlg(f'a{kb}_{rt}')
            for ct in range(3):
                A=v(AF+(kb&1)*16+4*rt,4); B=a((kb*3+ct)*4,4); D=v(ACC+(rt*3+ct)*4,4); C=D if kb else '0'
                k.e(f'v_mfma_f32_16x16x32_bf16 {D}, {B}, {A}, {C}' if trans else f'v_mfma_f32_16x16x32_bf16 {D}, {A}, {B}, {C}')
def gelu4(k,x,t):
    for op in ('v_mul_f32 v{t}, v{x}, v{x}','v_fma_f32 v{t}, v{t}, s61, v%d'%(T+12),'v_mul_f32 v{t}, v{t}, v{x}','v_exp_f32 v{t}, v{t}','v_add_f32 v{t}, 1.0, v{t}','v_rcp_f32 v{t}, v{t}','v_mul_f32 v{x}, v{x}, v{t}'):
        for i in range(4): k.e(op.format(t=t+i,x=x+i))
def half_offs(k,s_dt0,sbase,dst):
    for ct in range(3):
        S(k,f's_add_u32 s57, s{s_dt0}, {ct}; s_lshr_b32 s58, s57, 1; s_lshl_b32 s58, s58, 10; s_and_b32 s57, s57, 1; s_lshl_b32 s57, s57, 3; s_add_u32 s58, s58, s57; s_add_u32 s{dst+ct}, s58, s{sbase}')
def epi_half(k,sbase,rtstride,act):
    k.e('s_mul_i32 s56, s3, 3'); half_offs(k,56,sbase,52)
    for rt in range(4):
        for ct in range(3):
            x=ACC+(rt*3+ct)*4
            if act: gelu4(k,x,T+(ct&1)*4)
            k.e(f'v_cvt_pk_bf16_f32 v{x}, v{x}, v{x+1}'); k.e(f'v_cvt_pk_bf16_f32 v{x+1}, v{x+2}, v{x+3}')
            k.vmem(f'buffer_store_dwordx2 {v(x,2)}, v4, {W}, s{52+ct} offen sc1')
            if rt<3: k.e(f's_add_u32 s{52+ct}, s{52+ct}, {rtstride}')
def epi_loads(k,rsrd,s_res,s_gate,dst,fl):
    S(k,'v_mul_u32_u24 v6, 768, v2; v_lshl_add_u32 v6, v3, 3, v6; v_lshlrev_b32 v7, 4, v3')
    for i in range(3): k.vmem(f'buffer_load_dwordx2 {dst(2*i,2)}, v6, s[{rsrd}:{rsrd+3}], s{s_res} offen offset:{32*i}{fl}','epi')
    for i in range(3): k.vmem(f'buffer_load_dwordx4 {dst(8+4*i,4)}, v7, {W}, s{s_gate} offen offset:{64*i}','epi')
def reduce_epi(k,AC,osrd,s_out,E,T,sc):
    S(k,'s_mul_i32 s50, s3, 12288; v_add_u32 v8, s50, v4; s_mul_i32 s50, s3, 3072; v_add_u32 v9, s50, v4; s_nop 4')
    for t in range(12): k.e(f'ds_write_b128 v8, {v(AC+4*t,4)} offset:{t*1024}')
    k.e('s_waitcnt lgkmcnt(0)'); k.e('s_barrier')
    for i in range(3):
        for w in range(4): k.e(f'ds_read_b128 {v(T+(i*4+w)*4,4)}, v9 offset:{w*12288+i*1024}')
    for i in range(3):
        b=T+i*16; x=E+2*i; g=E+8+4*i; t=T+48
        S(k,f'v_lshlrev_b32 v{t}, 16, v{x}; v_and_b32 v{t+1}, 0xffff0000, v{x}; v_lshlrev_b32 v{t+2}, 16, v{x+1}; v_and_b32 v{t+3}, 0xffff0000, v{x+1}; s_waitcnt lgkmcnt({8-4*i})')
        for h in range(4): k.e(f'v_add_f32 v{b+h}, v{b+h}, v{b+4+h}'); k.e(f'v_add_f32 v{b+8+h}, v{b+8+h}, v{b+12+h}')
        for h in range(4): k.e(f'v_add_f32 v{b+h}, v{b+h}, v{b+8+h}')
        for h in range(4): k.e(f'v_fma_f32 v{b+h}, v{b+h}, v{g+h}, v{t+h}')
        k.e(f'v_cvt_pk_bf16_f32 v{b}, v{b}, v{b+1}'); k.e(f'v_cvt_pk_bf16_f32 v{b+1}, v{b+2}, v{b+3}')
        k.vmem(f'buffer_store_dwordx2 {v(b,2)}, v6, s[{osrd}:{osrd+3}], s{s_out} offen offset:{32*i}{sc}')
def wo_reg(i): return a(192+4*i,4) if i<16 else v(248+4*(i-16),4)
def w2_reg(i): return a(144+4*i,4) if i<28 else a(4*(i-28),4)
```

```python
from mega import *
def attn_phase(k,ld):
    Sx=16; O=80; QF=128; T=160
    S(k,f's_lshl_b32 s25, s22, 6; s_lshl_b32 s26, s24, 2; s_add_u32 s26, s26, s25; s_add_u32 s26, s26, s3; s_mul_i32 s26, s26, 6144; s_add_u32 s26, s26, {WS_Q}')
    S(k,f's_lshl_b32 s29, s23, 4; s_add_u32 s29, s29, s25; s_lshl_b32 s27, s3, 2; s_add_u32 s29, s29, s27; s_mul_i32 s29, s29, 6144; s_add_u32 s29, s29, {WS_K}')
    S(k,f's_lshl_b32 s34, s22, 5; s_lshl_b32 s27, s23, 3; s_add_u32 s34, s34, s27; s_mul_i32 s34, s34, 12288; s_mul_i32 s27, s3, 3072; s_add_u32 s34, s34, s27; s_add_u32 s34, s34, {WS_V}')
    S(k,'s_lshr_b32 s40, s22, 1; s_lshl_b32 s40, s40, 4; s_and_b32 s41, s22, 1; s_lshl_b32 s42, s23, 2; s_add_u32 s42, s42, s40; s_add_u32 s43, s40, s24')
    S(k,'v_and_b32 v10, 3, v1; v_add_u32 v10, s42, v10; v_lshlrev_b32 v10, 7, v10; v_lshrrev_b32 v11, 2, v1; v_lshl_add_u32 v10, v11, 3, v10; s_lshl_b32 s44, s41, 2; s_add_u32 s45, s44, 8; v_add_u32 v10, s45, v10')
    S(k,'s_lshl_b32 s45, s43, 7; s_add_u32 s45, s45, s44; v_mov_b32 v11, s45; v_cmp_gt_u32 vcc, 8, v1; s_nop 1; v_cndmask_b32 v10, v11, v10, vcc')
    S(k,'s_mul_i32 s27, s3, 6144; s_mov_b32 m0, s27; s_add_u32 s28, s26, 4096')
    poll(k,0,'a'); k.stamp(5)
    for i in range(4): k.vmem(f'buffer_load_dwordx4 v4, {W}, s26 offen offset:{i*1024} sc1 lds','q')
    S(k,'s_add_u32 s27, s27, 4096; s_mov_b32 m0, s27; s_nop 0')
    for i in range(2): k.vmem(f'buffer_load_dwordx4 v4, {W}, s28 offen offset:{i*1024} sc1 lds','q')
    for kb in range(6):
        for kt in range(4): ld.add(a((kb*4+kt)*4,4),29,kt*6144+kb*1024,f'K{kb}',' sc1')
    for j in range(8):
        for i in range(3): ld.add(a(96+(j*3+i)*4,4),34,j*12288+i*1024,f'V{j}',' sc1')
    ld.issue(24)
    k.wvm('q'); k.e('s_barrier')
    def rdq(kb):
        for qt in range(4): k.ds(f'ds_read_b128 {v(QF+(kb&1)*16+4*qt,4)}, v4 offset:{(qt*6+kb)*1024}',f'q{kb}_{qt}')
    rdq(0)
    for kb in range(6):
        if kb<5: rdq(kb+1)
        k.wvm(f'K{kb}')
        for qt in range(4):
            k.wlg(f'q{kb}_{qt}')
            for kt in range(4):
                D=v(Sx+(qt*4+kt)*4,4)
                k.e(f'v_mfma_f32_16x16x32_bf16 {D}, {a((kb*4+kt)*4,4)}, {v(QF+(kb&1)*16+4*qt,4)}, {D if kb else 0}')
            ld.issue(1)
    k.stamp(6)
    for kb in range(8):
        for ct in range(3): ld.add(a((kb*3+ct)*4,4),38,(ct*12+kb)*1024,'w1')
    k.e(f's_mov_b32 s40, {f2(192**-0.5*1.4426950408889634)}')
    S(k,'s_lshl_b32 s41, s3, 8; v_lshlrev_b32 v6, 4, v2; v_add_u32 v6, 57344, v6; v_add_u32 v7, s41, v6; s_mul_i32 s42, s3, 8192; s_add_u32 s42, s42, 24576; v_add_u32 v8, s42, v4; s_nop 4')
    for qt in range(4):
        b=Sx+qt*16
        k.e(f'v_max3_f32 v{T+qt}, v{b}, v{b+1}, v{b+2}')
        for i in range(3,15,2): k.e(f'v_max3_f32 v{T+qt}, v{T+qt}, v{b+i}, v{b+i+1}')
        k.e(f'v_max_f32 v{T+qt}, v{T+qt}, v{b+15}')
    xred(k,[T,T+1,T+2,T+3],[T+4,T+5,T+6,T+7],'v_max_f32')
    k.e(f'ds_write_b128 v7, {v(T,4)}'); ld.issue(4); k.e('s_waitcnt lgkmcnt(0)'); k.e('s_barrier')
    for w in range(4): k.e(f'ds_read_b128 {v(T+8+4*w,4)}, v6 offset:{w*256}')
    ld.issue(4)
    k.e('s_waitcnt lgkmcnt(0)')
    for qt in range(4):
        S(k,f'v_max3_f32 v{T+qt}, v{T+8+qt}, v{T+12+qt}, v{T+16+qt}; v_max_f32 v{T+qt}, v{T+qt}, v{T+20+qt}; v_mul_f32 v{T+qt}, s40, v{T+qt}')
    for qt in range(4):
        b=Sx+qt*16
        for i in range(16): k.e(f'v_fma_f32 v{b+i}, v{b+i}, s40, -v{T+qt}')
        ld.issue(2)
        for i in range(16): k.e(f'v_exp_f32 v{b+i}, v{b+i}')
        ld.issue(2)
        S(k,f'v_add_f32 v{T+8}, v{b}, v{b+1}; v_add_f32 v{T+9}, v{b+2}, v{b+3}')
        for i in range(4,16,2): S(k,f'v_add_f32 v{T+8}, v{T+8}, v{b+i}; v_add_f32 v{T+9}, v{T+9}, v{b+i+1}')
        k.e(f'v_add_f32 v{T+4+qt}, v{T+8}, v{T+9}')
        for i in range(8): k.e(f'v_cvt_pk_bf16_f32 v{b+i}, v{b+2*i}, v{b+2*i+1}')
        for j in range(2): k.e(f'ds_write_b128 v8, {v(b+4*j,4)} offset:{(j*4+qt)*1024}')
    xred(k,[T+4,T+5,T+6,T+7],[T+8,T+9,T+10,T+11],'v_add_f32')
    k.e(f'ds_write_b128 v7, {v(T+4,4)} offset:1024'); ld.issue(); k.e('s_waitcnt lgkmcnt(0)'); k.e('s_barrier'); k.lg=[]
    k.stamp(7)
    for w in range(4): k.ds(f'ds_read_b128 {v(T+8+4*w,4)}, v6 offset:{1024+w*256}','l')
    def rdp(j):
        for qt in range(4): k.ds(f'ds_read_b128 {v(QF+(j&1)*16+4*qt,4)}, v4 offset:{24576+(j*4+qt)*1024}',f'p{j}_{qt}')
    rdp(0)
    for j in range(8):
        if j<7: rdp(j+1)
        k.wvm(f'V{j}')
        for qt in range(4):
            k.wlg(f'p{j}_{qt}')
            for i in range(3):
                D=v(O+(qt*3+i)*4,4)
                k.e(f'v_mfma_f32_16x16x32_bf16 {D}, {a(96+(j*3+i)*4,4)}, {v(QF+(j&1)*16+4*qt,4)}, {D if j else 0}')
        if j==1:
            for qt in range(4): S(k,f'v_add_f32 v{T+4+qt}, v{T+8+qt}, v{T+12+qt}; v_add_f32 v{T+8+qt}, v{T+16+qt}, v{T+20+qt}; v_add_f32 v{T+4+qt}, v{T+4+qt}, v{T+8+qt}')
            for qt in range(4): k.e(f'v_rcp_f32 v{T+8+qt}, v{T+4+qt}')
        if j==2:
            S(k,'s_lshr_b32 s26, s22, 1; s_lshl_b32 s26, s26, 6; s_lshl_b32 s27, s24, 2; s_add_u32 s26, s26, s27')
            S(k,f's_lshl_b32 s27, s23, 7; s_add_u32 s27, s27, s26; s_mul_i32 s27, s27, 12288; s_add_u32 s27, s27, {WS_OP}')
            S(k,'s_and_b32 s28, s22, 1; s_mul_i32 s29, s28, 12; s_mul_i32 s30, s3, 3; s_add_u32 s29, s29, s30')
            half_offs(k,29,27,32)
        if j==3:
            S(k,f'v_mov_b32 v{T+12}, v{T}; v_mov_b32 v{T+13}, v{T+4}')
            for qt in range(1,4): S(k,f'v_cmp_eq_u32 vcc, {qt}, v3; s_nop 1; v_cndmask_b32 v{T+12}, v{T+12}, v{T+qt}, vcc; v_cndmask_b32 v{T+13}, v{T+13}, v{T+4+qt}, vcc')
            S(k,f's_lshl_b32 s27, s23, 1; s_add_u32 s27, s27, s28; s_lshl_b32 s27, s27, 14; s_lshl_b32 s26, s26, 7; s_add_u32 s27, s27, s26; s_add_u32 s27, s27, {WS_ML}; v_lshlrev_b32 v9, 3, v1')
            S(k,f's_cmp_lg_u32 s3, 0; s_cbranch_scc1 {k.ln("noml")}; buffer_store_dwordx2 {v(T+12,2)}, v9, {W}, s27 offen sc1')
            k.lab('noml')
    k.e('s_nop 7'); k.stamp(8)
    for qt in range(4):
        for i in range(3):
            x=O+(qt*3+i)*4
            for h in range(4): k.e(f'v_mul_f32 v{x+h}, v{x+h}, v{T+8+qt}')
            k.e(f'v_cvt_pk_bf16_f32 v{x}, v{x}, v{x+1}'); k.e(f'v_cvt_pk_bf16_f32 v{x+1}, v{x+2}, v{x+3}')
            k.vmem(f'buffer_store_dwordx2 {v(x,2)}, v4, {W}, s{32+i} offen sc1')
            if qt<3: k.e(f's_add_u32 s{32+i}, s{32+i}, 12288')
    S(k,'s_lshl_b32 s44, s28, 2; s_add_u32 s44, s44, s23')
    publish(k,1,43,44,'a')
def wo_phase(k,ld):
    AC=16; OPR=64; Wt=160; T=184; E=200
    for kb in range(8,12):
        for ct in range(3): ld.add(a((kb*3+ct)*4,4),38,(ct*12+kb)*1024,'w1')
    for i in range(12): ld.add(w2_reg(i),39,((i%3)*48+i//3)*1024,'w2')
    S(k,'s_lshr_b32 s40, s3, 1; s_and_b32 s41, s3, 1')
    S(k,f's_lshl_b32 s47, s36, 1; s_add_u32 s47, s47, s40; s_mul_i32 s47, s47, {16*768}; s_lshl_b32 s48, s37, 1; s_add_u32 s48, s48, s41; s_mul_i32 s25, s48, 96; s_add_u32 s47, s47, s25; s_add_u32 s25, s47, {WS_X1}')
    S(k,f's_lshr_b32 s26, s36, 5; s_mul_i32 s26, s26, 9216; s_mul_i32 s27, s48, 192; s_add_u32 s26, s26, s27; s_add_u32 s26, s26, {768*4}')
    epi_loads(k,XS,47,26,lambda o,n: v(E+o,n),'')
    ld.issue()
    S(k,f's_lshl_b32 s27, s40, 14; s_lshl_b32 s28, s36, 8; s_add_u32 s27, s27, s28; s_add_u32 s27, s27, {WS_ML}; v_lshlrev_b32 v12, 3, v2')
    S(k,f's_mul_i32 s28, s3, 3072; s_mul_i32 s29, s36, {2*12288}; s_add_u32 s29, s29, s28; s_add_u32 s29, s29, {WS_OP}; s_lshr_b32 s30, s36, 1')
    poll8(k,1,30,'w'); k.stamp(9)
    for s in range(4):
        for rt in range(2): k.vmem(f'buffer_load_dwordx2 {v(Wt+(rt*4+s)*2,2)}, v12, {W}, s27 offen offset:{rt*128} sc1','ml')
        k.e('s_add_u32 s27, s27, 32768')
    for kb in range(3):
        for rt in range(2):
            for s in range(4): ld.add(v(OPR+((kb*2+rt)*4+s)*4,4),29,s*128*12288+rt*12288+kb*1024,f'o{kb}_{rt}',' sc1')
    ld.issue()
    k.wvm('ml')
    for rt in range(2):
        b=Wt+rt*8
        S(k,f'v_max3_f32 v{T}, v{b}, v{b+2}, v{b+4}; v_max_f32 v{T}, v{T}, v{b+6}')
        for s in range(4): k.e(f'v_sub_f32 v{b+2*s}, v{b+2*s}, v{T}')
        for s in range(4): k.e(f'v_exp_f32 v{b+2*s}, v{b+2*s}')
        k.e('s_nop 0')
        for s in range(4): k.e(f'v_mul_f32 v{b+2*s}, v{b+2*s}, v{b+2*s+1}')
        S(k,f'v_add_f32 v{T}, v{b}, v{b+2}; v_add_f32 v{T+1}, v{b+4}, v{b+6}; v_add_f32 v{T}, v{T}, v{T+1}; v_rcp_f32 v{T}, v{T}; s_nop 0')
        for s in range(4): k.e(f'v_mul_f32 v{b+2*s}, v{b+2*s}, v{T}')
    for kb in range(3):
        for rt in range(2):
            k.wvm(f'o{kb}_{rt}')
            o=OPR+(kb*2+rt)*16
            for s in range(4):
                for p in range(4): S(k,f'v_lshlrev_b32 v{T+8+2*p}, 16, v{o+4*s+p}; v_and_b32 v{T+8+2*p+1}, 0xffff0000, v{o+4*s+p}')
                for p in range(8): k.e(f'v_mul_f32 v{T+p}, v{T+8+p}, v{Wt+rt*8}' if s==0 else f'v_fmac_f32 v{T+p}, v{T+8+p}, v{Wt+rt*8+2*s}')
            for p in range(4): k.e(f'v_cvt_pk_bf16_f32 v{o+p}, v{T+2*p}, v{T+2*p+1}')
            k.e('s_nop 1')
            for ct in range(6):
                D=v(AC+(rt*6+ct)*4,4)
                k.e(f'v_mfma_f32_16x16x32_bf16 {D}, {wo_reg(kb*6+ct)}, {v(o,4)}, {D if kb else 0}')
    k.stamp(10)
    reduce_epi(k,AC,WS,25,E,64,' sc1')
    S(k,'s_and_b32 s44, s36, 1; s_lshl_b32 s44, s44, 2; s_add_u32 s44, s44, s37')
    publish(k,2,30,44,'w')
def k_mega():
    k=K('mega_kernel',256,256,65536,256,256)
    prologue(k,256,[('x',4,XS),('ws',6,WS),('out',60,OS)])
    ld=Loads(k,59)
    S(k,'s_and_b32 s25, s2, 7; s_lshr_b32 s26, s2, 3; s_and_b32 s27, s26, 3; s_lshl_b32 s20, s25, 2; s_add_u32 s20, s20, s27; s_lshr_b32 s21, s26, 2')
    S(k,'s_lshr_b32 s22, s25, 1; s_and_b32 s23, s25, 1; s_lshl_b32 s23, s23, 1; s_and_b32 s27, s26, 1; s_add_u32 s23, s23, s27; s_lshr_b32 s24, s26, 1')
    S(k,'s_and_b32 s27, s26, 7; s_lshl_b32 s36, s25, 3; s_add_u32 s36, s36, s27; s_lshr_b32 s37, s26, 3')
    S(k,f's_lshl_b32 s28, s21, 2; s_add_u32 s28, s28, s3; s_mul_i32 s28, s28, {36*1024}; s_add_u32 s38, s28, {WS_W1}; s_add_u32 s28, s28, {WS_WQKV}')
    S(k,f's_mul_i32 s39, s21, {3*48*1024}; s_mul_i32 s29, s3, 12288; s_add_u32 s39, s39, s29; s_add_u32 s39, s39, {WS_W2}')
    S(k,f's_mul_i32 s35, s37, {6*12288}; s_mul_i32 s29, s3, 3072; s_add_u32 s35, s35, s29; s_add_u32 s35, s35, {WS_WO}')
    def add_wo():
        for kb in range(3):
            for ct in range(6): ld.add(wo_reg(kb*6+ct),35,ct*12288+kb*1024,'wo')
    S(k,f's_cmp_ge_u32 s21, 6; s_cbranch_scc1 {k.ln("idle")}')
    for kb in range(12):
        for ct in range(3): ld.add(a((kb*3+ct)*4,4),28,(ct*12+kb)*1024,f'B{kb}')
    add_wo()
    S(k,f's_mul_i32 s46, s20, {64*768}; s_lshr_b32 s47, s20, 4; s_mul_i32 s48, s47, 9216')
    ln_phase(k,XS,46,48,'',ld,12,3); k.stamp(2)
    S(k,f's_and_b32 s27, s21, 1; s_lshl_b32 s28, s47, 1; s_add_u32 s27, s27, s28; s_and_b32 s28, s20, 15; s_lshl_b32 s29, s27, 4; s_add_u32 s29, s29, s28; s_mul_i32 s29, s29, {24*1024}')
    S(k,f's_lshr_b32 s30, s21, 1; s_mul_i32 s31, s30, 0x180000; s_add_u32 s29, s29, s31; s_add_u32 s29, s29, {WS_Q}; s_cmp_eq_u32 s30, 2; s_cbranch_scc1 {k.ln("v")}')
    sv=(list(k.vm),list(k.lg))
    gemm(k,True,'B'); k.stamp(3); epi_half(k,29,6144,False); k.e(f's_branch {k.ln("qdone")}')
    k.lab('v'); k.vm,k.lg=sv
    gemm(k,False,'B'); k.stamp(3)
    S(k,'s_mul_i32 s56, s3, 3072; s_add_u32 s56, s56, s29; s_add_u32 s57, s56, 12288; s_nop 4')
    for p in range(2):
        for ct in range(3):
            x=ACC+(2*p*3+ct)*4; y=ACC+((2*p+1)*3+ct)*4
            S(k,f'v_cvt_pk_bf16_f32 v{x}, v{x}, v{x+1}; v_cvt_pk_bf16_f32 v{x+1}, v{x+2}, v{x+3}; v_cvt_pk_bf16_f32 v{x+2}, v{y}, v{y+1}; v_cvt_pk_bf16_f32 v{x+3}, v{y+2}, v{y+3}')
            k.e(f'buffer_store_dwordx4 {v(x,4)}, v4, {W}, s{56+p} offen offset:{ct*1024} sc1')
    k.lab('qdone'); publish(k,0,20,21,'q'); k.e(f's_branch {k.ln("attn")}')
    k.lab('idle')
    S(k,f's_sub_u32 s27, s26, 24; s_lshl_b32 s27, s27, 2; s_add_u32 s27, s27, s3; s_mul_i32 s27, s27, {648*128}; s_add_u32 s27, s27, {WS_WO}; v_lshlrev_b32 v10, 7, v1')
    for i in range(11): S(k,f'buffer_load_dword v{16+i}, v10, {W}, s27 offen; s_add_u32 s27, s27, 8192')
    add_wo(); ld.issue(); k.stamp(2); k.stamp(3)
    k.e('s_waitcnt vmcnt(0)'); k.vm=[]
    k.lab('attn'); k.stamp(4)
    attn_phase(k,ld)
    wo_phase(k,ld)
    for i in range(12,28): ld.add(w2_reg(i),39,((i%3)*48+i//3)*1024,'w2')
    ld.issue()
    S(k,f's_mul_i32 s46, s20, {64*768}; s_add_u32 s46, s46, {WS_X1}; s_lshr_b32 s47, s20, 4; s_mul_i32 s48, s47, 9216; s_add_u32 s48, s48, {1152*4}')
    S(k,f's_mul_i32 s29, s20, {4*48*1024}; s_mul_i32 s30, s21, 6144; s_add_u32 s30, s29, s30; s_add_u32 s30, s30, {WS_G}')
    poll8(k,2,20,'f'); k.stamp(11)
    ln_phase(k,WS,46,48,' sc1',ld,0,0); k.stamp(12)
    c=-2*0.7978845608028654*1.4426950408889634
    S(k,f'v_mov_b32 v{T+12}, {f2(c)}; s_mov_b32 s61, {f2(c*0.044715)}')
    gemm(k,True,'none'); k.stamp(13)
    epi_half(k,30,48*1024,True)
    publish(k,3,20,21,'f')
    for i in range(28,36): ld.add(w2_reg(i),39,((i%3)*48+i//3)*1024,'w2')
    S(k,f's_lshl_b32 s46, s20, 2; s_add_u32 s46, s46, s3; s_mul_i32 s46, s46, {16*768}; s_mul_i32 s24, s21, 96; s_add_u32 s46, s46, s24; s_add_u32 s25, s46, {WS_X1}')
    S(k,f's_mul_i32 s26, s47, 9216; s_mul_i32 s27, s21, 192; s_add_u32 s26, s26, s27; s_add_u32 s26, s26, {1920*4}')
    S(k,f's_mul_i32 s28, s3, 12288; s_add_u32 s29, s29, s28; s_add_u32 s29, s29, {WS_G}')
    epi_loads(k,WS,25,26,lambda o,n: a(32+o,n),' sc1'); ld.issue()
    poll8(k,3,20,'g'); k.stamp(14)
    for kb in range(12):
        for rt in range(4): ld.add(v(64+(kb*4+rt)*4,4),29,(rt*48+kb)*1024,f'G{kb}',' sc1')
    ld.issue(24)
    for kb in range(12):
        k.wvm(f'G{kb}')
        for rt in range(4):
            for ct in range(3):
                D=v(16+(rt*3+ct)*4,4)
                k.e(f'v_mfma_f32_16x16x32_bf16 {D}, {w2_reg(kb*3+ct)}, {v(64+(kb*4+rt)*4,4)}, {D if kb else 0}')
            ld.issue(1)
    for i in range(20):
        if i not in (6,7): k.e(f'v_accvgpr_read_b32 v{128+i}, a{32+i}')
    reduce_epi(k,16,OS,46,128,64,'')
    k.end(15)
    k.lab('end'); k.e('s_endpgm')
    return k
```

```python
import sys, base
if len(sys.argv)>2: base.DIAG.update({'prep_kernel':0,'mega_kernel':1})
from base import *
import k_prep as kp
from mega2 import *
def k_prep2():
    k=kp.k_prep()
    k.grid=181
    i=k.L.index('  s_cmp_ge_u32 s2, 180'); k.L[i]='  s_cmp_ge_u32 s2, 181'
    j=k.L.index('  s_cmp_ge_u32 s2, 72')
    z=['s_cmp_lg_u32 s2, 180',f's_cbranch_scc1 {k.ln("nz")}','v_lshlrev_b32 v6, 4, v0','v_mov_b32 v8, 0','v_mov_b32 v9, 0','v_mov_b32 v10, 0','v_mov_b32 v11, 0']
    for p in range(4): z+= [f's_mov_b32 s40, {WS_FL+p*4096}','buffer_store_dwordx4 v[8:11], v6, s[32:35], s40 offen']
    z+=['s_endpgm']
    k.L[j:j]=['  '+t for t in z]+[k.ln('nz')+':']
    return k
build([k_prep2(),k_mega()],sys.argv[1])
```

```python
from base import *
import struct
f2=lambda x: hex(struct.unpack('<I',struct.pack('<f',x))[0])
WS_FL=0x8000
XS,WS,OS=8,12,16
W='s[12:15]'
def S(k,expr_list):
    for t in expr_list.split(';'):
        t=t.strip()
        if t: k.e(t)
def dual(k,fn,tag,local):
    if not local: fn(' sc1'); return
    S(k,f's_cmp_eq_u32 s63, 1; s_cbranch_scc1 {k.ln("df"+tag)}'); fn(' sc1'); k.e(f's_branch {k.ln("de"+tag)}')
    k.lab('df'+tag); fn(''); k.lab('de'+tag)
def publish(k,phase,s_grp,s_j,tag):
    k.e('s_waitcnt vmcnt(0)'); k.vm=[]; k.e('s_barrier')
    S(k,f's_cmp_lg_u32 s3, 0; s_cbranch_scc1 {k.ln("pub"+tag)}; s_lshl_b32 s56, s{s_grp}, 7; s_lshl_b32 s57, s{s_j}, 2; s_add_u32 s56, s56, s57; s_add_u32 s56, s56, {WS_FL+phase*4096}')
    S(k,'v_mov_b32 v10, 0; v_mov_b32 v11, 1; s_mov_b64 exec, 1')
    dual(k,lambda sc: k.e(f'buffer_store_dword v11, v10, {W}, s56 offen{sc}'),'p'+tag,phase>0)
    k.e('s_mov_b64 exec, -1')
    k.lab('pub'+tag)
def poll(k,phase,tag):
    S(k,f's_cmp_lg_u32 s3, 0; s_cbranch_scc1 {k.ln("pd"+tag)}; s_mov_b32 s56, {WS_FL+phase*4096}; s_mov_b32 s57, 0x100000')
    k.lab('pl'+tag)
    S(k,f'buffer_load_dword v11, v10, {W}, s56 offen sc1; s_waitcnt vmcnt(0); v_cmp_ne_u32 vcc, 1, v11; s_sub_u32 s57, s57, 1; s_cbranch_scc1 {k.ln("pd"+tag)}; s_cbranch_vccnz {k.ln("pl"+tag)}')
    k.lab('pd'+tag); k.e('s_barrier')
def poll8(k,phase,s_grp,tag):
    S(k,f'v_and_b32 v10, 7, v1; v_lshlrev_b32 v10, 2, v10; s_lshl_b32 s58, s{s_grp}, 7; v_add_u32 v10, s58, v10')
    poll(k,phase,tag)
class Loads:
    def __init__(s,k,sreg): s.k=k; s.q=[]; s.sreg=sreg; s.cur=None
    def add(s,dst,sb,off,tag,fl=''): s.q.append((dst,sb,off,tag,fl))
    def issue(s,n=999):
        while n and s.q:
            dst,sb,off,tag,fl=s.q.pop(0); n-=1
            s.k.e(f's_add_u32 s{s.sreg}, s{sb}, {off}')
            s.k.vmem(f'buffer_load_dwordx4 {dst}, v4, {W}, s{s.sreg} offen{fl}',tag)
X=16; ACC=64; AF=112; MT=144; T=160
def ln_phase(k,xsrd,xsoff,modoff,fl,ld,pre,per):
    S(k,f's_lshl_b32 s50, s3, 10; s_add_u32 s51, s50, 49152; s_mov_b32 m0, s51; s_add_u32 s50, s50, s{modoff}')
    k.vmem(f'buffer_load_dwordx4 v4, {W}, s50 offen lds','mod')
    S(k,f'v_mul_u32_u24 v6, 768, v2; v_lshl_add_u32 v6, v3, 4, v6; s_mul_i32 s50, s3, {16*768}; s_add_u32 s50, s50, s{xsoff}; s_add_u32 s51, s50, 4096; s_add_u32 s52, s50, 8192')
    for f in range(12):
        if fl: k.vmem(f'buffer_load_dwordx4 {v(X+4*f,4)}, v4, {W}, s{50+f//4} offen offset:{1024*(f%4)}{fl}','x%d'%f)
        else: k.vmem(f'buffer_load_dwordx4 {v(X+4*f,4)}, v6, s[{xsrd}:{xsrd+3}], s50 offen offset:{64*f}','x%d'%f)
    ld.issue(pre)
    k.e('s_mov_b32 s55, 0x3f803f80')
    for i in range(8): k.e(f'v_mov_b32 v{T+i}, 0')
    S(k,'v_lshlrev_b32 v7, 5, v3; v_add_u32 v7, 49152, v7; s_mul_i32 s50, s3, 12288; v_add_u32 v8, s50, v4')
    for f in range(12):
        if f%4==0: k.wvm('x%d'%(f+3))
        for p in range(4):
            k.e(f'v_dot2c_f32_bf16 v{T+p}, s55, v{X+4*f+p}'); k.e(f'v_dot2c_f32_bf16 v{T+4+p}, v{X+4*f+p}, v{X+4*f+p}')
    k.e('s_barrier')
    def rdmod(f):
        o=MT+(f&1)*16+32
        for q in range(4): k.ds(f'ds_read_b128 {v(o+4*q,4)}, v7 offset:{f*128+(q&1)*16+(q>>1)*1536}',f'm{f}')
    rdmod(0); ld.issue(per); stage_setup(k)
    S(k,f'v_add_f32 v{T}, v{T}, v{T+1}; v_add_f32 v{T+2}, v{T+2}, v{T+3}; v_add_f32 v{T+4}, v{T+4}, v{T+5}; v_add_f32 v{T+6}, v{T+6}, v{T+7}; v_add_f32 v{T}, v{T}, v{T+2}; v_add_f32 v{T+1}, v{T+4}, v{T+6}')
    xred(k,[T,T+1],[T+2,T+3],'v_add_f32')
    S(k,f'v_mul_f32 v{T}, 0x3b2aaaab, v{T}; v_mul_f32 v{T+1}, 0x3b2aaaab, v{T+1}; v_fma_f32 v{T+1}, -v{T}, v{T}, v{T+1}; v_max_f32 v{T+1}, 0, v{T+1}; v_add_f32 v{T+1}, 0x3727c5ac, v{T+1}')
    S(k,f'v_rsq_f32 v{T+2}, v{T+1}; s_nop 0; v_mul_f32 v{T+4}, v{T}, v{T+2}; v_sub_f32 v{T+4}, 0, v{T+4}')
    for f in range(12):
        if f<11: rdmod(f+1)
        ld.issue(per)
        o=MT+(f&1)*16+32; t=MT+(f&1)*8
        for p in range(4):
            k.e(f'v_lshlrev_b32 v{t+2*p}, 16, v{X+4*f+p}'); k.e(f'v_and_b32 v{t+2*p+1}, 0xffff0000, v{X+4*f+p}')
        for p in range(8): k.e(f'v_fma_f32 v{t+p}, v{t+p}, v{T+2}, v{T+4}')
        k.wlg(f'm{f}')
        for p in range(8): k.e(f'v_fma_f32 v{t+p}, v{t+p}, v{o+8+p}, v{o+p}')
        for p in range(4): k.e(f'v_cvt_pk_bf16_f32 v{X+4*f+p}, v{t+2*p}, v{t+2*p+1}')
        k.ds(f'ds_write_b128 v8, {v(X+4*f,4)} offset:{f*1024}','w')
    ld.issue()
    k.e('s_waitcnt lgkmcnt(0)'); k.e('s_barrier'); k.lg=[]
def gemm(k,trans,btag):
    def rd(kb):
        for rt in range(4): k.ds(f'ds_read_b128 {v(AF+(kb&1)*16+4*rt,4)}, v4 offset:{(rt*12+kb)*1024}',f'a{kb}_{rt}')
    rd(0)
    for kb in range(12):
        if kb<11: rd(kb+1)
        if f'{btag}{kb}' in k.vm: k.wvm(f'{btag}{kb}')
        for rt in range(4):
            k.wlg(f'a{kb}_{rt}')
            for ct in range(3):
                A=v(AF+(kb&1)*16+4*rt,4); B=a((kb*3+ct)*4,4); D=v(ACC+(rt*3+ct)*4,4); C=D if kb else '0'
                k.e(f'v_mfma_f32_16x16x32_bf16 {D}, {B}, {A}, {C}' if trans else f'v_mfma_f32_16x16x32_bf16 {D}, {A}, {B}, {C}')
def gelu4(k,x,t):
    for op in ('v_mul_f32 v{t}, v{x}, v{x}','v_fma_f32 v{t}, v{t}, s61, v%d'%(T+12),'v_mul_f32 v{t}, v{t}, v{x}','v_exp_f32 v{t}, v{t}','v_add_f32 v{t}, 1.0, v{t}','v_rcp_f32 v{t}, v{t}','v_mul_f32 v{x}, v{x}, v{t}'):
        for i in range(4): k.e(op.format(t=t+i,x=x+i))
STG=65536
def stage_setup(k):
    k.e('s_mul_i32 s56, s3, 3')
    for ct in range(3):
        S(k,f's_add_u32 s57, s56, {ct}; s_lshr_b32 s58, s57, 1; s_lshl_b32 s58, s58, 10; s_and_b32 s57, s57, 1; s_lshl_b32 s57, s57, 3; s_add_u32 s58, s58, s57; s_add_u32 s58, s58, {STG}; v_add_u32 v{12+ct}, s58, v4')
    S(k,f's_mul_i32 s58, s3, 6144; s_add_u32 s58, s58, {STG}; v_add_u32 v15, s58, v4')
def stage_put(k,x,rt,ct):
    k.e(f'v_cvt_pk_bf16_f32 v{x}, v{x}, v{x+1}'); k.e(f'v_cvt_pk_bf16_f32 v{x+1}, v{x+2}, v{x+3}')
    k.e(f'ds_write_b64 v{12+ct}, {v(x,2)} offset:{rt*6144}')
def stage_out(k,sbase,rtstride,R,tag=None):
    S(k,f's_mul_i32 s52, s3, {rtstride}; s_add_u32 s52, s52, s{sbase}; s_add_u32 s53, s52, 4096; s_waitcnt lgkmcnt(0); s_barrier')
    for f in range(6): k.e(f'ds_read_b128 {v(R+4*f,4)}, v15 offset:{f*1024}')
    def st(sc):
        for f in range(6):
            k.e(f's_waitcnt lgkmcnt({5-f})')
            k.e(f'buffer_store_dwordx4 {v(R+4*f,4)}, v4, {W}, s{52+f//4} offen offset:{(f%4)*1024}{sc}')
    dual(k,st,'s%s'%tag,tag is not None)
def epi_half(k,sbase,rtstride,act,tag=None):
    for rt in range(4):
        for ct in range(3):
            x=ACC+(rt*3+ct)*4
            if act: gelu4(k,x,T+(ct&1)*4)
            stage_put(k,x,rt,ct)
    stage_out(k,sbase,rtstride,AF,tag)
def epi_loads(k,rsrd,s_res,s_gate,dst,fl):
    S(k,'v_mul_u32_u24 v6, 768, v2; v_lshl_add_u32 v6, v3, 3, v6; v_lshlrev_b32 v7, 4, v3')
    S(k,'v_lshrrev_b32 v12, 1, v3; v_lshlrev_b32 v12, 8, v12; v_lshl_add_u32 v12, v2, 4, v12; v_and_b32 v13, 1, v3; v_lshl_add_u32 v12, v13, 3, v12')
    for i in range(3): k.vmem(f'buffer_load_dwordx2 {dst(2*i,2)}, v12, s[{rsrd}:{rsrd+3}], s{s_res} offen offset:{512*i}{fl}','epi')
    for i in range(3): k.vmem(f'buffer_load_dwordx4 {dst(8+4*i,4)}, v7, {W}, s{s_gate} offen offset:{64*i}','epi')
def reduce_epi(k,AC,osrd,s_out,E,T,sc):
    S(k,'s_mul_i32 s50, s3, 12288; v_add_u32 v8, s50, v4; s_mul_i32 s50, s3, 3072; v_add_u32 v9, s50, v4; s_nop 4')
    for t in range(12): k.e(f'ds_write_b128 v8, {v(AC+4*t,4)} offset:{t*1024}')
    k.e('s_waitcnt lgkmcnt(0)'); k.e('s_barrier')
    for i in range(3):
        for w in range(4): k.e(f'ds_read_b128 {v(T+(i*4+w)*4,4)}, v9 offset:{w*12288+i*1024}')
    for i in range(3):
        b=T+i*16; x=E+2*i; g=E+8+4*i; t=T+48
        S(k,f'v_lshlrev_b32 v{t}, 16, v{x}; v_and_b32 v{t+1}, 0xffff0000, v{x}; v_lshlrev_b32 v{t+2}, 16, v{x+1}; v_and_b32 v{t+3}, 0xffff0000, v{x+1}; s_waitcnt lgkmcnt({8-4*i})')
        for h in range(4): k.e(f'v_add_f32 v{b+h}, v{b+h}, v{b+4+h}'); k.e(f'v_add_f32 v{b+8+h}, v{b+8+h}, v{b+12+h}')
        for h in range(4): k.e(f'v_add_f32 v{b+h}, v{b+h}, v{b+8+h}')
        for h in range(4): k.e(f'v_fma_f32 v{b+h}, v{b+h}, v{g+h}, v{t+h}')
        k.e(f'v_cvt_pk_bf16_f32 v{b}, v{b}, v{b+1}'); k.e(f'v_cvt_pk_bf16_f32 v{b+1}, v{b+2}, v{b+3}')
        k.vmem(f'buffer_store_dwordx2 {v(b,2)}, v6, s[{osrd}:{osrd+3}], s{s_out} offen offset:{32*i}{sc}')
def wo_reg(i): return a(192+4*i,4) if i<16 else v(248+4*(i-16),4)
def w2_reg(i): return a(144+4*i,4) if i<28 else a(4*(i-28),4)

D='s[96:99]'
def ticket(k,tag):
    S(k,f's_cmp_lg_u32 s3, 0; s_cbranch_scc1 {k.ln("tk"+tag)}; s_lshl_b32 s56, s33, 5; v_mov_b32 v5, 1; v_mov_b32 v10, 0; s_mov_b64 exec, 1; buffer_atomic_add v5, v10, {D}, s56 offen sc0 sc1; s_mov_b64 exec, -1')
    k.lab('tk'+tag)
def roles(k):
    S(k,f's_cmp_lg_u32 s3, 0; s_cbranch_scc1 {k.ln("r1")}; v_readfirstlane_b32 s26, v5; s_mov_b32 s25, s33; s_mov_b32 s27, 1; s_cmp_lt_u32 s26, 32; s_cbranch_scc1 {k.ln("r0")}')
    S(k,'v_and_b32 v10, 7, v1; v_lshlrev_b32 v10, 5, v10; s_mov_b32 s57, 0x100000')
    k.lab('rl')
    S(k,f'buffer_load_dword v11, v10, {D}, 0 offen sc1; s_waitcnt vmcnt(0); s_mov_b32 s28, 0')
    for x in range(8): S(k,f'v_readlane_b32 s{40+x}, v11, {x}; s_nop 0; s_add_u32 s28, s28, s{40+x}')
    S(k,f's_sub_u32 s57, s57, 1; s_cbranch_scc1 {k.ln("rg")}; s_cmp_lt_u32 s28, 256; s_cbranch_scc1 {k.ln("rl")}')
    k.lab('rg')
    k.e('s_sub_u32 s26, s26, 32')
    for x in range(8): S(k,f's_max_u32 s28, s{40+x}, 32; s_sub_u32 s28, s28, 32; s_cmp_lt_u32 {x}, s33; s_cselect_b32 s28, s28, 0; s_add_u32 s26, s26, s28')
    k.e('s_mov_b32 s27, 0')
    for x in range(8):
        S(k,f's_min_u32 s28, s{40+x}, 32; s_sub_u32 s29, 32, s28; s_mov_b32 s25, {x}; s_cmp_lt_u32 s26, s29; s_cselect_b32 s28, s28, 0; s_cbranch_scc1 {k.ln("rf")}; s_sub_u32 s26, s26, s29')
    k.lab('rf'); S(k,'s_add_u32 s26, s26, s28; s_and_b32 s26, s26, 31')
    k.lab('r0')
    S(k,f'v_mov_b32 v10, s25; v_mov_b32 v11, s26; v_mov_b32 v12, s27; v_mov_b32 v13, {STG+24576}; ds_write_b96 v13, v[10:12]; s_waitcnt lgkmcnt(0)')
    k.lab('r1')
    S(k,f's_barrier; v_mov_b32 v13, {STG+24576}; ds_read_b96 v[10:12], v13; s_waitcnt lgkmcnt(0); v_readfirstlane_b32 s25, v10; v_readfirstlane_b32 s26, v11; v_readfirstlane_b32 s63, v12')
```

```python
from mega import *
def attn_phase(k,ld):
    Sx=16; O=80; QF=128; T=160
    S(k,f's_lshl_b32 s25, s22, 6; s_lshl_b32 s26, s24, 2; s_add_u32 s26, s26, s25; s_add_u32 s26, s26, s3; s_mul_i32 s26, s26, 6144; s_add_u32 s26, s26, {WS_Q}')
    S(k,f's_lshl_b32 s29, s23, 4; s_add_u32 s29, s29, s25; s_lshl_b32 s27, s3, 2; s_add_u32 s29, s29, s27; s_mul_i32 s29, s29, 6144; s_add_u32 s29, s29, {WS_K}')
    S(k,f's_lshl_b32 s34, s22, 5; s_lshl_b32 s27, s23, 3; s_add_u32 s34, s34, s27; s_mul_i32 s34, s34, 12288; s_mul_i32 s27, s3, 3072; s_add_u32 s34, s34, s27; s_add_u32 s34, s34, {WS_V}')
    S(k,'s_lshr_b32 s40, s22, 1; s_lshl_b32 s40, s40, 4; s_and_b32 s41, s22, 1; s_lshl_b32 s42, s23, 2; s_add_u32 s42, s42, s40; s_add_u32 s43, s40, s24')
    S(k,'v_and_b32 v10, 3, v1; v_add_u32 v10, s42, v10; v_lshlrev_b32 v10, 7, v10; v_lshrrev_b32 v11, 2, v1; v_lshl_add_u32 v10, v11, 3, v10; s_lshl_b32 s44, s41, 2; s_add_u32 s45, s44, 8; v_add_u32 v10, s45, v10')
    S(k,'s_lshl_b32 s45, s43, 7; s_add_u32 s45, s45, s44; v_mov_b32 v11, s45; v_cmp_gt_u32 vcc, 8, v1; s_nop 1; v_cndmask_b32 v10, v11, v10, vcc')
    S(k,'s_mul_i32 s27, s3, 6144; s_mov_b32 m0, s27; s_add_u32 s28, s26, 4096')
    poll(k,0,'a'); k.stamp(5)
    for i in range(4): k.vmem(f'buffer_load_dwordx4 v4, {W}, s26 offen offset:{i*1024} sc1 lds','q')
    S(k,'s_add_u32 s27, s27, 4096; s_mov_b32 m0, s27; s_nop 0')
    for i in range(2): k.vmem(f'buffer_load_dwordx4 v4, {W}, s28 offen offset:{i*1024} sc1 lds','q')
    for kb in range(6):
        for kt in range(4): ld.add(a((kb*4+kt)*4,4),29,kt*6144+kb*1024,f'K{kb}',' sc1')
    for j in range(8):
        for i in range(3): ld.add(a(96+(j*3+i)*4,4),34,j*12288+i*1024,f'V{j}',' sc1')
    for kb in range(3):
        for ct in range(6): ld.add(wo_reg(kb*6+ct),35,ct*12288+kb*1024,'wo')
    ld.issue(24)
    k.wvm('q'); k.e('s_barrier')
    def rdq(kb):
        for qt in range(4): k.ds(f'ds_read_b128 {v(QF+(kb&1)*16+4*qt,4)}, v4 offset:{(qt*6+kb)*1024}',f'q{kb}_{qt}')
    rdq(0)
    for kb in range(6):
        if kb<5: rdq(kb+1)
        k.wvm(f'K{kb}')
        for qt in range(4):
            k.wlg(f'q{kb}_{qt}')
            for kt in range(4):
                Dd=v(Sx+(qt*4+kt)*4,4)
                k.e(f'v_mfma_f32_16x16x32_bf16 {Dd}, {a((kb*4+kt)*4,4)}, {v(QF+(kb&1)*16+4*qt,4)}, {Dd if kb else 0}')
            ld.issue(1)
    k.stamp(6)
    S(k,'s_lshl_b32 s56, s33, 5; v_mov_b32 v5, 0'); k.vmem(f'buffer_load_dword v5, v5, s[96:99], s56 offen sc1','cnt')
    for kb in range(8):
        for ct in range(3): ld.add(a((kb*3+ct)*4,4),38,(ct*12+kb)*1024,'w1')
    k.e(f's_mov_b32 s40, {f2(192**-0.5*1.4426950408889634)}')
    S(k,'s_lshl_b32 s41, s3, 8; v_lshlrev_b32 v6, 4, v2; v_add_u32 v6, 57344, v6; v_add_u32 v7, s41, v6; s_mul_i32 s42, s3, 8192; s_add_u32 s42, s42, 24576; v_add_u32 v8, s42, v4; s_nop 4')
    for qt in range(4):
        b=Sx+qt*16
        k.e(f'v_max3_f32 v{T+qt}, v{b}, v{b+1}, v{b+2}')
        for i in range(3,15,2): k.e(f'v_max3_f32 v{T+qt}, v{T+qt}, v{b+i}, v{b+i+1}')
        k.e(f'v_max_f32 v{T+qt}, v{T+qt}, v{b+15}')
    xred(k,[T,T+1,T+2,T+3],[T+4,T+5,T+6,T+7],'v_max_f32')
    k.e(f'ds_write_b128 v7, {v(T,4)}'); ld.issue(1); k.e('s_waitcnt lgkmcnt(0)'); k.e('s_barrier')
    for w in range(4): k.e(f'ds_read_b128 {v(T+8+4*w,4)}, v6 offset:{w*256}')
    ld.issue(1)
    for i in range(4): k.e(f'v_mov_b32 v{T+4+i}, 0x3f803f80')
    S(k,'s_lshl_b32 s42, s3, 10; v_add_u32 v9, s42, v4; s_waitcnt lgkmcnt(0)')
    for qt in range(4):
        S(k,f'v_max3_f32 v{T+qt}, v{T+8+qt}, v{T+12+qt}, v{T+16+qt}; v_max_f32 v{T+qt}, v{T+qt}, v{T+20+qt}; v_mul_f32 v{T+qt}, s40, v{T+qt}')
    for qt in range(4):
        b=Sx+qt*16
        for hh in range(2):
            for i in range(8*hh,8*hh+8): k.e(f'v_fma_f32 v{b+i}, v{b+i}, s40, -v{T+qt}')
            ld.issue(1)
            for i in range(8*hh,8*hh+8): k.e(f'v_exp_f32 v{b+i}, v{b+i}')
            ld.issue(1)
            for i in range(4*hh,4*hh+4): k.e(f'v_cvt_pk_bf16_f32 v{b+i}, v{b+2*i}, v{b+2*i+1}')
            k.e(f'ds_write_b128 v8, {v(b+4*hh,4)} offset:{(hh*4+qt)*1024}')
    k.e('s_waitcnt lgkmcnt(0)'); k.e('s_barrier'); k.lg=[]
    k.stamp(7)
    LA=T+8; PW=T+16
    def rdp(j):
        for qt in range(4): k.ds(f'ds_read_b128 {v(QF+(j&1)*16+4*qt,4)}, v4 offset:{24576+(j*4+qt)*1024}',f'p{j}_{qt}')
        k.ds(f'ds_read_b128 {v(PW+(j&1)*4,4)}, v9 offset:{24576+j*4096}',f'pw{j}')
    rdp(0)
    for j in range(8):
        if j<7: rdp(j+1)
        k.wvm(f'V{j}')
        for qt in range(4):
            k.wlg(f'p{j}_{qt}')
            for i in range(3):
                D=v(O+(qt*3+i)*4,4)
                k.e(f'v_mfma_f32_16x16x32_bf16 {D}, {a(96+(j*3+i)*4,4)}, {v(QF+(j&1)*16+4*qt,4)}, {D if j else 0}')
            ld.issue(1)
        k.wlg(f'pw{j}')
        k.e(f'v_mfma_f32_16x16x32_bf16 {v(LA,4)}, {v(T+4,4)}, {v(PW+(j&1)*4,4)}, {v(LA,4) if j else 0}')
        if j==2:
            S(k,'s_lshr_b32 s26, s22, 1; s_lshl_b32 s26, s26, 6; s_lshl_b32 s27, s24, 2; s_add_u32 s26, s26, s27')
            S(k,f's_lshl_b32 s27, s23, 7; s_add_u32 s27, s27, s26; s_mul_i32 s27, s27, 12288; s_add_u32 s27, s27, {WS_OP}')
            S(k,'s_and_b32 s28, s22, 1; s_mul_i32 s29, s28, 6144; s_add_u32 s32, s29, s27')
            stage_setup(k)
        if j==3:
            k.wvm('cnt'); S(k,'v_readfirstlane_b32 s56, v5; s_cmp_ge_u32 s56, 32; s_cselect_b32 s63, s63, 0')
            k.e(f'v_mov_b32 v{T+12}, v{T}')
            for qt in range(1,4): S(k,f's_cmp_eq_u32 s3, {qt}; s_cselect_b64 vcc, -1, 0; v_cndmask_b32 v{T+12}, v{T+12}, v{T+qt}, vcc')
            S(k,f's_lshl_b32 s27, s23, 1; s_add_u32 s27, s27, s28; s_lshl_b32 s27, s27, 14; s_add_u32 s26, s26, s3; s_lshl_b32 s26, s26, 7; s_add_u32 s27, s27, s26; s_add_u32 s27, s27, {WS_ML}; v_lshlrev_b32 v10, 3, v1')
    assert not ld.q
    k.e('s_nop 4'); k.stamp(8)
    for qt in range(4):
        for i in range(3): stage_put(k,O+(qt*3+i)*4,qt,i)
    S(k,f'v_mov_b32 v{T+13}, v{LA}; s_mov_b64 exec, 0xffff')
    dual(k,lambda sc: k.e(f'buffer_store_dwordx2 {v(T+12,2)}, v10, {W}, s27 offen{sc}'),'ml',True)
    k.e('s_mov_b64 exec, -1')
    stage_out(k,32,12288,QF,'a')
    S(k,'s_lshl_b32 s44, s28, 2; s_add_u32 s44, s44, s23')
    publish(k,1,43,44,'a')
def wo_phase(k,ld):
    AC=16; OPR=64; Wt=160; T=184; E=200
    S(k,'s_lshr_b32 s40, s3, 1; s_min_u32 s41, s3, 2; s_mul_i32 s48, s37, 3; s_add_u32 s48, s48, s41')
    S(k,f's_mul_i32 s47, s36, {32*768}; s_lshl_b32 s25, s48, 10; s_add_u32 s25, s25, s47; s_add_u32 s25, s25, {WS_X1}; s_add_u32 s31, s25, 12288; s_lshl_b32 s49, s48, 6; s_add_u32 s47, s47, s49; s_add_u32 s49, s47, 12288')
    S(k,f's_lshr_b32 s26, s36, 5; s_mul_i32 s26, s26, 9216; s_lshl_b32 s27, s48, 7; s_add_u32 s26, s26, s27; s_add_u32 s26, s26, {768*4}')
    S(k,'v_mul_u32_u24 v6, 768, v2; v_lshl_add_u32 v6, v3, 4, v6; v_lshlrev_b32 v7, 5, v3')
    k.vmem(f'buffer_load_dwordx4 {v(E,4)}, v6, s[8:11], s47 offen','epi'); k.vmem(f'buffer_load_dwordx4 {v(E+4,4)}, v6, s[8:11], s49 offen','epi')
    k.vmem(f'buffer_load_dwordx4 {v(E+8,4)}, v7, {W}, s26 offen','epi'); k.vmem(f'buffer_load_dwordx4 {v(E+12,4)}, v7, {W}, s26 offen offset:16','epi')
    S(k,f's_lshl_b32 s27, s40, 14; s_lshl_b32 s28, s36, 8; s_add_u32 s27, s27, s28; s_add_u32 s27, s27, {WS_ML}; v_lshlrev_b32 v12, 3, v2')
    S(k,f's_mul_i32 s28, s3, 3072; s_mul_i32 s29, s36, {2*12288}; s_add_u32 s29, s29, s28; s_add_u32 s29, s29, {WS_OP}; s_lshr_b32 s30, s36, 1')
    poll8(k,1,30,'w'); k.stamp(9)
    for s in range(4):
        for rt in range(2): k.vmem(f'buffer_load_dwordx2 {v(Wt+(rt*4+s)*2,2)}, v12, {W}, s27 offen offset:{rt*128} sc1','ml')
        k.e('s_add_u32 s27, s27, 32768')
    for kb in range(3):
        for rt in range(2):
            for s in range(4): ld.add(v(OPR+((kb*2+rt)*4+s)*4,4),29,s*128*12288+rt*12288+kb*1024,f'o{kb}_{rt}',' sc1')
    ld.issue()
    for kb in range(8,12):
        for ct in range(3): ld.add(a((kb*3+ct)*4,4),38,(ct*12+kb)*1024,'w1')
    for i in range(12): ld.add(w2_reg(i),39,((i%3)*48+i//3)*1024,'w2')
    k.wvm('ml')
    for rt in range(2):
        b=Wt+rt*8
        S(k,f'v_max3_f32 v{T}, v{b}, v{b+2}, v{b+4}; v_max_f32 v{T}, v{T}, v{b+6}')
        for s in range(4): k.e(f'v_sub_f32 v{b+2*s}, v{b+2*s}, v{T}')
        for s in range(4): k.e(f'v_exp_f32 v{b+2*s}, v{b+2*s}')
        k.e('s_nop 0')
        S(k,f'v_mul_f32 v{T}, v{b}, v{b+1}; v_mul_f32 v{T+1}, v{b+2}, v{b+3}; v_fmac_f32 v{T}, v{b+4}, v{b+5}; v_fmac_f32 v{T+1}, v{b+6}, v{b+7}; v_add_f32 v{T}, v{T}, v{T+1}; v_rcp_f32 v{T}, v{T}; s_nop 0')
        for s in range(4): k.e(f'v_mul_f32 v{b+2*s}, v{b+2*s}, v{T}')
    for kb in range(3):
        for rt in range(2):
            k.wvm(f'o{kb}_{rt}')
            o=OPR+(kb*2+rt)*16
            for s in range(4):
                for p in range(4): S(k,f'v_lshlrev_b32 v{T+8+2*p}, 16, v{o+4*s+p}; v_and_b32 v{T+8+2*p+1}, 0xffff0000, v{o+4*s+p}')
                for p in range(8): k.e(f'v_mul_f32 v{T+p}, v{T+8+p}, v{Wt+rt*8}' if s==0 else f'v_fmac_f32 v{T+p}, v{T+8+p}, v{Wt+rt*8+2*s}')
            for p in range(4): k.e(f'v_cvt_pk_bf16_f32 v{o+p}, v{T+2*p}, v{T+2*p+1}')
            ld.issue(4)
            for ct in range(6):
                D=v(AC+(rt*6+ct)*4,4)
                k.e(f'v_mfma_f32_16x16x32_bf16 {D}, {wo_reg(kb*6+ct)}, {v(o,4)}, {D if kb else 0}')
    k.stamp(10)
    S(k,'s_mul_i32 s50, s3, 12288; v_add_u32 v8, s50, v4; s_lshl_b32 s50, s41, 11; v_lshrrev_b32 v9, 1, v3; v_lshlrev_b32 v9, 10, v9; v_and_b32 v13, 1, v3; v_lshl_add_u32 v9, v13, 9, v9; v_lshl_add_u32 v9, v2, 4, v9; v_add_u32 v9, s50, v9')
    for t in range(12): k.e(f'ds_write_b128 v8, {v(AC+4*t,4)} offset:{t*1024}')
    S(k,f's_waitcnt lgkmcnt(0); s_barrier; s_cmp_eq_u32 s3, 3; s_cbranch_scc1 {k.ln("wo3")}')
    for rt in range(2):
        for w in range(4):
            for e in range(2): k.e(f'ds_read_b128 {v(64+rt*32+w*8+e*4,4)}, v9 offset:{w*12288+rt*6144+e*256}')
    for rt in range(2):
        b=64+rt*32; t=128
        for p in range(4): S(k,f'v_lshlrev_b32 v{t+2*p}, 16, v{E+4*rt+p}; v_and_b32 v{t+2*p+1}, 0xffff0000, v{E+4*rt+p}')
        k.e(f's_waitcnt lgkmcnt({8-8*rt})')
        for h in range(8): S(k,f'v_add_f32 v{b+h}, v{b+h}, v{b+8+h}; v_add_f32 v{b+16+h}, v{b+16+h}, v{b+24+h}')
        for h in range(8): k.e(f'v_add_f32 v{b+h}, v{b+h}, v{b+16+h}')
        for h in range(8): k.e(f'v_fma_f32 v{b+h}, v{b+h}, v{E+8+h}, v{t+h}')
        for p in range(4): k.e(f'v_cvt_pk_bf16_f32 v{b+p}, v{b+2*p}, v{b+2*p+1}')
        dual(k,lambda sc: k.e(f'buffer_store_dwordx4 {v(b,4)}, v4, {W}, s{31 if rt else 25} offen{sc}'),f'x{rt}',True)
    k.lab('wo3')
    S(k,'s_and_b32 s44, s36, 1; s_lshl_b32 s44, s44, 2; s_add_u32 s44, s44, s37')
    publish(k,2,30,44,'w')
def k_mega():
    k=K('mega_kernel',256,256,90240,256,256)
    prologue(k,256,[('x',4,XS),('ws',6,WS),('out',60,OS),('dbg',58,96)])
    ld=Loads(k,59)
    S(k,'s_getreg_b32 s33, hwreg(HW_REG_XCC_ID, 0, 3)')
    S(k,'s_and_b32 s25, s2, 7; s_lshr_b32 s26, s2, 3; s_and_b32 s27, s26, 3; s_lshl_b32 s20, s25, 2; s_add_u32 s20, s20, s27; s_lshr_b32 s21, s26, 2')
    S(k,f's_lshl_b32 s28, s21, 2; s_add_u32 s28, s28, s3; s_mul_i32 s28, s28, {36*1024}; s_add_u32 s28, s28, {WS_WQKV}')
    S(k,f's_cmp_ge_u32 s21, 6; s_cbranch_scc1 {k.ln("idle")}')
    for kb in range(12):
        for ct in range(3): ld.add(a((kb*3+ct)*4,4),28,(ct*12+kb)*1024,f'B{kb}')
    S(k,f's_mul_i32 s46, s20, {64*768}; s_lshr_b32 s47, s20, 4; s_mul_i32 s48, s47, 9216')
    ln_phase(k,XS,46,48,'',ld,12,2); k.stamp(2)
    S(k,f's_lshl_b32 s27, s26, 2; s_add_u32 s27, s27, s3; s_mul_i32 s27, s27, {216*128}; s_add_u32 s27, s27, {WS_WO}; v_lshlrev_b32 v10, 7, v1')
    for i in range(4): k.vmem(f'buffer_load_dword v{X+i}, v10, {W}, s27 offen','warm'); k.e('s_add_u32 s27, s27, 8192')
    ticket(k,'q')
    S(k,f's_and_b32 s27, s21, 1; s_lshl_b32 s28, s47, 1; s_add_u32 s27, s27, s28; s_and_b32 s28, s20, 15; s_lshl_b32 s29, s27, 4; s_add_u32 s29, s29, s28; s_mul_i32 s29, s29, {24*1024}')
    S(k,f's_lshr_b32 s30, s21, 1; s_mul_i32 s31, s30, 0x180000; s_add_u32 s29, s29, s31; s_add_u32 s29, s29, {WS_Q}; s_cmp_eq_u32 s30, 2; s_cbranch_scc1 {k.ln("v")}')
    sv=(list(k.vm),list(k.lg))
    gemm(k,True,'B'); k.stamp(3); k.e('s_nop 7'); epi_half(k,29,6144,False); k.e(f's_branch {k.ln("qdone")}')
    k.lab('v'); k.vm,k.lg=sv
    gemm(k,False,'B'); k.stamp(3)
    S(k,'s_mul_i32 s56, s3, 3072; s_add_u32 s56, s56, s29; s_add_u32 s57, s56, 12288; s_nop 4')
    for p in range(2):
        for ct in range(3):
            x=ACC+(2*p*3+ct)*4; y=ACC+((2*p+1)*3+ct)*4
            S(k,f'v_cvt_pk_bf16_f32 v{x}, v{x}, v{x+1}; v_cvt_pk_bf16_f32 v{x+1}, v{x+2}, v{x+3}; v_cvt_pk_bf16_f32 v{x+2}, v{y}, v{y+1}; v_cvt_pk_bf16_f32 v{x+3}, v{y+2}, v{y+3}')
            k.e(f'buffer_store_dwordx4 {v(x,4)}, v4, {W}, s{56+p} offen offset:{ct*1024} sc1')
    k.lab('qdone'); publish(k,0,20,21,'q'); k.e(f's_branch {k.ln("attn")}')
    k.lab('idle')
    ticket(k,'i'); k.stamp(2); k.stamp(3)
    k.e('s_waitcnt vmcnt(0)'); k.vm=[]
    k.lab('attn'); roles(k)
    S(k,'s_and_b32 s27, s26, 3; s_lshl_b32 s20, s25, 2; s_add_u32 s20, s20, s27; s_lshr_b32 s21, s26, 2')
    S(k,'s_lshr_b32 s22, s20, 4; s_lshl_b32 s22, s22, 1; s_lshr_b32 s27, s21, 2; s_add_u32 s22, s22, s27; s_and_b32 s23, s21, 3; s_and_b32 s24, s20, 15')
    S(k,'s_and_b32 s27, s21, 1; s_lshl_b32 s36, s20, 1; s_add_u32 s36, s36, s27; s_lshr_b32 s37, s21, 1')
    S(k,f's_lshl_b32 s28, s21, 2; s_add_u32 s28, s28, s3; s_mul_i32 s28, s28, {36*1024}; s_add_u32 s38, s28, {WS_W1}')
    S(k,f's_mul_i32 s39, s21, {3*48*1024}; s_mul_i32 s29, s3, 12288; s_add_u32 s39, s39, s29; s_add_u32 s39, s39, {WS_W2}')
    S(k,f's_mul_i32 s35, s37, {6*12288}; s_mul_i32 s29, s3, 3072; s_add_u32 s35, s35, s29; s_add_u32 s35, s35, {WS_WO}')
    k.stamp(4)
    attn_phase(k,ld)
    wo_phase(k,ld)
    for i in range(12,28): ld.add(w2_reg(i),39,((i%3)*48+i//3)*1024,'w2')
    S(k,f's_mul_i32 s46, s20, {64*768}; s_add_u32 s46, s46, {WS_X1}; s_lshr_b32 s47, s20, 4; s_mul_i32 s48, s47, 9216; s_add_u32 s48, s48, {1152*4}')
    S(k,f's_mul_i32 s29, s20, {4*48*1024}; s_mul_i32 s30, s21, 6144; s_add_u32 s30, s29, s30; s_add_u32 s30, s30, {WS_G}')
    poll8(k,2,20,'f'); k.stamp(11)
    ln_phase(k,WS,46,48,' sc1',ld,4,1); k.stamp(12)
    c=-2*0.7978845608028654*1.4426950408889634
    S(k,f'v_mov_b32 v{T+12}, {f2(c)}; s_mov_b32 s61, {f2(c*0.044715)}')
    gemm(k,True,'none'); k.stamp(13)
    for i in range(28,36): ld.add(w2_reg(i),39,((i%3)*48+i//3)*1024,'w2')
    ld.issue()
    epi_half(k,30,48*1024,True,'g')
    publish(k,3,20,21,'f')
    S(k,f's_lshl_b32 s46, s20, 2; s_add_u32 s46, s46, s3; s_mul_i32 s46, s46, {16*768}; s_mul_i32 s25, s21, 1536; s_add_u32 s25, s25, s46; s_add_u32 s25, s25, {WS_X1}; s_mul_i32 s24, s21, 96; s_add_u32 s46, s46, s24')
    S(k,f's_mul_i32 s26, s47, 9216; s_mul_i32 s27, s21, 192; s_add_u32 s26, s26, s27; s_add_u32 s26, s26, {1920*4}')
    S(k,f's_mul_i32 s28, s3, 12288; s_add_u32 s29, s29, s28; s_add_u32 s29, s29, {WS_G}')
    poll8(k,3,20,'g'); k.stamp(14)
    for kb in range(12):
        for rt in range(4): ld.add(v(64+(kb*4+rt)*4,4),29,(rt*48+kb)*1024,f'G{kb}',' sc1')
    ld.issue(24)
    for kb in range(12):
        k.wvm(f'G{kb}')
        for rt in range(4):
            for ct in range(3):
                D=v(16+(rt*3+ct)*4,4)
                k.e(f'v_mfma_f32_16x16x32_bf16 {D}, {w2_reg(kb*3+ct)}, {v(64+(kb*4+rt)*4,4)}, {D if kb else 0}')
            ld.issue(1)
        if kb==6: epi_loads(k,WS,25,26,lambda o,n: a(32+o,n),' sc1')
    k.wvm('epi')
    for i in range(20):
        if i not in (6,7): k.e(f'v_accvgpr_read_b32 v{128+i}, a{32+i}')
    reduce_epi(k,16,OS,46,128,64,'')
    k.end(15)
    k.lab('end'); k.e('s_endpgm')
    return k
```

```python
WS_MOD=0; WS_WQKV=0x10000; WS_WO=WS_WQKV+884736; WS_W1=WS_WO+294912; WS_W2=WS_W1+1179648
WS_Q=0x400000; WS_K=WS_Q+0x180000; WS_V=WS_K+0x180000
WS_OP=0x900000; WS_ML=WS_OP+0x600000
WS_X1=0x1000000; WS_G=0x1200000; WS_SIZE=0x2000000
KA=dict(x=0,c=8,wqkv=16,wo=24,wmod=32,w1=40,w2=48,out=56,dbg=64,ws=72)
SZ=dict(x=1572864,c=1536,wqkv=884736,wo=294912,wmod=1769472,w1=1179648,w2=1179648,out=1572864,dbg=256,ws=WS_SIZE)
DIAG={}
class K:
    def __init__(s,name,grid,block,lds,nv,na):
        s.name=name; s.grid=grid; s.block=block; s.lds=lds; s.nv=nv; s.na=na; s.L=[]; s.vm=[]; s.lg=[]; s.nl=0; s.diag=DIAG.get(name)
    def e(s,t): s.L.append('  '+t)
    def lab(s,n): s.L.append(f'{s.name}_{n}:')
    def ln(s,n): return f'{s.name}_{n}'
    def srd(s,d,b,name):
        s.e(f's_mov_b32 s{d}, s{b}'); s.e(f's_and_b32 s{d+1}, s{b+1}, 0xffff')
        s.e(f's_mov_b32 s{d+2}, {SZ[name]}'); s.e(f's_mov_b32 s{d+3}, 0x20000')
    def vmem(s,t,tag=None): s.e(t); s.vm.append(tag)
    def wvm(s,tag):
        idx=max(i for i,x in enumerate(s.vm) if x==tag); n=len(s.vm)-1-idx
        assert n<=63,n
        s.e(f's_waitcnt vmcnt({n})')
    def ds(s,t,tag=None): s.e(t); s.lg.append(tag)
    def wlg(s,tag):
        idx=max(i for i,x in enumerate(s.lg) if x==tag); n=len(s.lg)-1-idx
        s.e(f's_waitcnt lgkmcnt({min(n,15)})')
    diag=None
    def stamp(s,i):
        if s.diag is None: return
        s.e(f's_memrealtime s[{64+2*i}:{65+2*i}]'); s.e('s_waitcnt lgkmcnt(0)'); s.nst=max(getattr(s,'nst',0),i+1)
    def end(s,last=None,wsrd=12):
        if s.diag is not None and last is not None:
            s.e('s_waitcnt vmcnt(0)'); s.stamp(last)
            s.e('s_lshl_b32 s62, s2, 2'); s.e('s_add_u32 s62, s62, s3'); s.e('s_lshl_b32 s62, s62, 7'); s.e(f's_add_u32 s62, s62, {0x1f00000+s.diag*131072}')
            s.e('v_mov_b32 v10, 0'); s.e('s_mov_b64 exec, 1')
            for i in range(last+1):
                s.e(f'v_mov_b32 v12, s{64+2*i}'); s.e(f'v_mov_b32 v13, s{65+2*i}')
                s.e(f'buffer_store_dwordx2 v[12:13], v10, s[{wsrd}:{wsrd+3}], s62 offen offset:{8*i}'); s.e('s_nop 1')
            if s.name=='mega_kernel':
                s.e('s_or_b32 s62, s2, s3'); s.e('s_cmp_lg_u32 s62, 0'); s.e(f's_cbranch_scc1 {s.ln("end")}')
                for n,i in enumerate([2,3,4,5,6,7,8,9,10,11,12,13,14,15]):
                    w=n+1 if n<7 else n+2
                    s.e(f's_sub_u32 s62, s{64+2*i}, s64'); s.e('v_mov_b32 v12, s62'); s.e(f'buffer_store_dword v12, v10, s[96:99], 0 offen offset:{4*w}'); s.e('s_nop 1')
        s.e('s_endpgm')
    def text(s):
        return f'.globl {s.name}\n.p2align 8\n.type {s.name},@function\n{s.name}:\n'+'\n'.join(s.L)+'\n'
    def desc(s):
        acc=(s.nv+3)//4*4
        return f'''.p2align 6
.amdhsa_kernel {s.name}
  .amdhsa_next_free_vgpr {acc+s.na if s.na else s.nv}
  .amdhsa_next_free_sgpr 100
  .amdhsa_accum_offset {acc}
  .amdhsa_group_segment_fixed_size 0
  .amdhsa_kernarg_size 80
  .amdhsa_user_sgpr_count 2
  .amdhsa_user_sgpr_kernarg_segment_ptr 1
  .amdhsa_system_sgpr_workgroup_id_x 1
.end_amdhsa_kernel
'''
def r(p,i,n=1): return f'{p}{i}' if n==1 else f'{p}[{i}:{i+n-1}]'
def v(i,n=1): return r('v',i,n)
def a(i,n=1): return r('a',i,n)
def build(ks,path):
    hdr=open('standalone__dit_block__diffusion.s.ref').read().split('; Override')[0]
    s=hdr
    for k in ks: s+=f"; @launch kernel={k.name} grid=({k.grid},1,1) block=({k.block},1,1) lds={k.lds}\n"
    s+='.amdgcn_target "amdgcn-amd-amdhsa--gfx950"\n.text\n'
    seen=[]
    for k in ks:
        if k.name not in [x.name for x in seen]: seen.append(k)
    for k in seen: s+=k.text()
    s+='.section .rodata,"a"\n'
    for k in seen: s+=k.desc()
    open(path,'w').write(s)
def prologue(k,nwg,ptrs):
    k.e(f's_cmp_ge_u32 s2, {nwg}'); k.e(f's_cbranch_scc1 {k.ln("end")}')
    k.stamp(0)
    for n,b,d in ptrs: k.e(f's_load_dwordx2 s[{b}:{b+1}], s[0:1], {KA[n]}')
    k.e('v_lshrrev_b32 v5, 6, v0'); k.e('v_and_b32 v1, 63, v0'); k.e('v_and_b32 v2, 15, v0')
    k.e('v_readfirstlane_b32 s3, v5'); k.e('v_lshrrev_b32 v3, 4, v1'); k.e('v_lshlrev_b32 v4, 4, v1')
    k.e('s_waitcnt lgkmcnt(0)')
    for n,b,d in ptrs: k.srd(d,b,n)
    k.stamp(1)
def xred(k,regs,tmp,op):
    for sw in ('v_permlane16_swap_b32','v_permlane32_swap_b32'):
        for x,t in zip(regs,tmp): k.e(f'v_mov_b32 v{t}, v{x}')
        k.e('s_nop 1')
        for x,t in zip(regs,tmp): k.e(f'{sw} v{x}, v{t}')
        k.e('s_nop 1')
        for x,t in zip(regs,tmp): k.e(f'{op} v{x}, v{x}, v{t}')
```

```python
WS_MOD=0; WS_WQKV=0; WS_WO=0x10000; WS_W1=WS_WO+294912; WS_W2=WS_W1+1179648
WS_X1=0x2A0000; WS_ML=0x420000
WS_Q=0x440000; WS_K=WS_Q+0x180000; WS_V=WS_K+0x180000
WS_OP=0x8C0000; WS_G=WS_OP; WS_SIZE=0x2000000
KA=dict(x=0,c=8,wqkv=16,wo=24,wmod=32,w1=40,w2=48,out=56,dbg=64,ws=72)
SZ=dict(x=1572864,c=1536,wqkv=884736,wo=294912,wmod=1769472,w1=1179648,w2=1179648,out=1572864,dbg=256,ws=WS_SIZE)
DIAG={}
class K:
    def __init__(s,name,grid,block,lds,nv,na):
        s.name=name; s.grid=grid; s.block=block; s.lds=lds; s.nv=nv; s.na=na; s.L=[]; s.vm=[]; s.lg=[]; s.nl=0; s.diag=DIAG.get(name)
    def e(s,t): s.L.append('  '+t)
    def lab(s,n): s.L.append(f'{s.name}_{n}:')
    def ln(s,n): return f'{s.name}_{n}'
    def srd(s,d,b,name):
        s.e(f's_mov_b32 s{d}, s{b}'); s.e(f's_and_b32 s{d+1}, s{b+1}, 0xffff')
        s.e(f's_mov_b32 s{d+2}, {SZ[name]}'); s.e(f's_mov_b32 s{d+3}, 0x20000')
    def vmem(s,t,tag=None): s.e(t); s.vm.append(tag)
    def wvm(s,tag):
        idx=max(i for i,x in enumerate(s.vm) if x==tag); n=len(s.vm)-1-idx
        assert n<=63,n
        s.e(f's_waitcnt vmcnt({n})')
    def ds(s,t,tag=None): s.e(t); s.lg.append(tag)
    def wlg(s,tag):
        idx=max(i for i,x in enumerate(s.lg) if x==tag); n=len(s.lg)-1-idx
        s.e(f's_waitcnt lgkmcnt({min(n,15)})')
    diag=None
    def stamp(s,i):
        if s.diag is None: return
        s.e('s_memrealtime s[100:101]'); s.e('s_waitcnt lgkmcnt(0)'); s.e(f'v_writelane_b32 v0, s100, {40+i}'); s.nst=max(getattr(s,'nst',0),i+1)
    def end(s,last=None,wsrd=12):
        if s.diag is not None and last is not None:
            s.e('s_waitcnt vmcnt(0)'); s.stamp(last)
            s.e('s_lshl_b32 s62, s2, 2'); s.e('s_add_u32 s62, s62, s3'); s.e('s_lshl_b32 s62, s62, 7'); s.e(f's_add_u32 s62, s62, {0x1f00000+s.diag*131072}')
            s.e('v_subrev_u32 v10, 40, v1'); s.e('v_lshlrev_b32 v10, 3, v10'); s.e('v_mov_b32 v12, v0'); s.e('v_mov_b32 v13, 0'); s.e('s_mov_b32 exec_lo, 0'); s.e('s_mov_b32 exec_hi, 0xffff00')
            s.e(f'buffer_store_dwordx2 v[12:13], v10, s[{wsrd}:{wsrd+3}], s62 offen')
        s.e('s_endpgm')
    def text(s):
        return f'.globl {s.name}\n.p2align 8\n.type {s.name},@function\n{s.name}:\n'+'\n'.join(s.L)+'\n'
    def desc(s):
        acc=(s.nv+3)//4*4
        return f'''.p2align 6
.amdhsa_kernel {s.name}
  .amdhsa_next_free_vgpr {acc+s.na if s.na else s.nv}
  .amdhsa_next_free_sgpr 102
  .amdhsa_accum_offset {acc}
  .amdhsa_group_segment_fixed_size 0
  .amdhsa_kernarg_size 80
  .amdhsa_user_sgpr_count 2
  .amdhsa_user_sgpr_kernarg_segment_ptr 1
  .amdhsa_system_sgpr_workgroup_id_x 1
.end_amdhsa_kernel
'''
def r(p,i,n=1): return f'{p}{i}' if n==1 else f'{p}[{i}:{i+n-1}]'
def v(i,n=1): return r('v',i,n)
def a(i,n=1): return r('a',i,n)
def build(ks,path):
    hdr=open('standalone__dit_block__diffusion.s.ref').read().split('; Override')[0]
    s=hdr
    for k in ks: s+=f"; @launch kernel={k.name} grid=({k.grid},1,1) block=({k.block},1,1) lds={k.lds}\n"
    s+='.amdgcn_target "amdgcn-amd-amdhsa--gfx950"\n.text\n'
    seen=[]
    for k in ks:
        if k.name not in [x.name for x in seen]: seen.append(k)
    for k in seen: s+=k.text()
    s+='.section .rodata,"a"\n'
    for k in seen: s+=k.desc()
    open(path,'w').write(s)
def prologue(k,nwg,ptrs):
    k.e(f's_cmp_ge_u32 s2, {nwg}'); k.e(f's_cbranch_scc1 {k.ln("end")}')
    for n,b,d in ptrs: k.e(f's_load_dwordx2 s[{b}:{b+1}], s[0:1], {KA[n]}')
    k.e('v_lshrrev_b32 v5, 6, v0'); k.e('v_and_b32 v1, 63, v0'); k.e('v_and_b32 v2, 15, v0')
    k.e('v_readfirstlane_b32 s3, v5'); k.e('v_lshrrev_b32 v3, 4, v1'); k.e('v_lshlrev_b32 v4, 4, v1')
    k.e('s_waitcnt lgkmcnt(0)')
    for n,b,d in ptrs: k.srd(d,b,n)
    if k.diag is not None: k.e('v_mov_b32 v247, v0')
    k.stamp(0)
def xred(k,regs,tmp,op):
    for sw in ('v_permlane16_swap_b32','v_permlane32_swap_b32'):
        for x,t in zip(regs,tmp): k.e(f'v_mov_b32 v{t}, v{x}')
        k.e('s_nop 1')
        for x,t in zip(regs,tmp): k.e(f'{sw} v{x}, v{t}')
        k.e('s_nop 1')
        for x,t in zip(regs,tmp): k.e(f'{op} v{x}, v{x}, v{t}')
```

```python
from base import *
import struct
f2=lambda x: hex(struct.unpack('<I',struct.pack('<f',x))[0])
WS_FL=0x8000
XS,WS,OS=8,12,16
W='s[12:15]'
def S(k,expr_list):
    for t in expr_list.split(';'):
        t=t.strip()
        if t: k.e(t)
def dual(k,fn,tag,local):
    if not local: fn(' sc1'); return
    S(k,f's_cmp_eq_u32 s63, 1; s_cbranch_scc1 {k.ln("df"+tag)}'); fn(' sc1'); k.e(f's_branch {k.ln("de"+tag)}')
    k.lab('df'+tag); fn(''); k.lab('de'+tag)
def publish(k,phase,s_grp,s_j,tag):
    k.e('s_waitcnt vmcnt(0)'); k.vm=[]; k.e('s_barrier')
    S(k,f's_cmp_lg_u32 s3, 0; s_cbranch_scc1 {k.ln("pub"+tag)}; s_lshl_b32 s56, s{s_grp}, 7; s_lshl_b32 s57, s{s_j}, 2; s_add_u32 s56, s56, s57; s_add_u32 s56, s56, {WS_FL+phase*4096}')
    S(k,'v_mov_b32 v10, 0; v_mov_b32 v11, 1; s_mov_b64 exec, 1')
    dual(k,lambda sc: k.e(f'buffer_store_dword v11, v10, {W}, s56 offen{sc}'),'p'+tag,phase>0)
    k.e('s_mov_b64 exec, -1')
    k.lab('pub'+tag)
def poll(k,phase,tag):
    S(k,f's_cmp_lg_u32 s3, 0; s_cbranch_scc1 {k.ln("pd"+tag)}; s_mov_b32 s56, {WS_FL+phase*4096}; s_mov_b32 s57, 0x100000')
    k.lab('pl'+tag)
    S(k,f'buffer_load_dword v11, v10, {W}, s56 offen sc1; s_waitcnt vmcnt(0); v_cmp_ne_u32 vcc, 1, v11; s_sub_u32 s57, s57, 1; s_cbranch_scc1 {k.ln("pd"+tag)}; s_cbranch_vccz {k.ln("pd"+tag)}; s_sleep {2 if phase==0 else 1}; s_branch {k.ln("pl"+tag)}')
    k.lab('pd'+tag); k.e('s_barrier')
def poll8(k,phase,s_grp,tag):
    S(k,f'v_and_b32 v10, 7, v1; v_lshlrev_b32 v10, 2, v10; s_lshl_b32 s58, s{s_grp}, 7; v_add_u32 v10, s58, v10')
    poll(k,phase,tag)
class Loads:
    def __init__(s,k,sreg): s.k=k; s.q=[]; s.sreg=sreg; s.cur=None
    def add(s,dst,sb,off,tag,fl=' sc1'): s.q.append((dst,sb,off,tag,fl))
    def issue(s,n=999):
        while n and s.q:
            dst,sb,off,tag,fl=s.q.pop(0); n-=1
            s.k.e(f's_add_u32 s{s.sreg}, s{sb}, {off}')
            s.k.vmem(f'buffer_load_dwordx4 {dst}, v4, {W}, s{s.sreg} offen{fl}',tag)
X=16; ACC=64; AF=112; MT=144; T=160
def ln_phase(k,xsrd,xsoff,modoff,fl,ld,pre,per):
    S(k,f's_lshl_b32 s50, s3, 10; s_add_u32 s51, s50, 49152; s_mov_b32 m0, s51; s_add_u32 s50, s50, s{modoff}')
    k.vmem(f'buffer_load_dwordx4 v4, {W}, s50 offen sc1 lds','mod')
    S(k,f'v_mul_u32_u24 v6, 768, v2; v_lshl_add_u32 v6, v3, 4, v6; s_mul_i32 s50, s3, {16*768}; s_add_u32 s50, s50, s{xsoff}; s_add_u32 s51, s50, 4096; s_add_u32 s52, s50, 8192')
    for f in range(12):
        if fl: k.vmem(f'buffer_load_dwordx4 {v(X+4*f,4)}, v4, {W}, s{50+f//4} offen offset:{1024*(f%4)}{fl}','x%d'%f)
        else: k.vmem(f'buffer_load_dwordx4 {v(X+4*f,4)}, v6, s[{xsrd}:{xsrd+3}], s50 offen offset:{64*f}','x%d'%f)
    ld.issue(pre)
    k.e('s_mov_b32 s55, 0x3f803f80')
    for i in range(8): k.e(f'v_mov_b32 v{T+i}, 0')
    S(k,'v_lshlrev_b32 v7, 5, v3; v_add_u32 v7, 49152, v7; s_mul_i32 s50, s3, 12288; v_add_u32 v8, s50, v4')
    for f in range(12):
        if f%4==0: k.wvm('x%d'%(f+3))
        for p in range(4):
            k.e(f'v_dot2c_f32_bf16 v{T+p}, s55, v{X+4*f+p}'); k.e(f'v_dot2c_f32_bf16 v{T+4+p}, v{X+4*f+p}, v{X+4*f+p}')
    k.e('s_barrier')
    def rdmod(f):
        o=MT+(f&1)*16+32
        for q in range(4): k.ds(f'ds_read_b128 {v(o+4*q,4)}, v7 offset:{f*128+(q&1)*16+(q>>1)*1536}',f'm{f}')
    rdmod(0); ld.issue(per); stage_setup(k)
    S(k,f'v_add_f32 v{T}, v{T}, v{T+1}; v_add_f32 v{T+2}, v{T+2}, v{T+3}; v_add_f32 v{T+4}, v{T+4}, v{T+5}; v_add_f32 v{T+6}, v{T+6}, v{T+7}; v_add_f32 v{T}, v{T}, v{T+2}; v_add_f32 v{T+1}, v{T+4}, v{T+6}')
    xred(k,[T,T+1],[T+2,T+3],'v_add_f32')
    S(k,f'v_mul_f32 v{T}, 0x3b2aaaab, v{T}; v_mul_f32 v{T+1}, 0x3b2aaaab, v{T+1}; v_fma_f32 v{T+1}, -v{T}, v{T}, v{T+1}; v_max_f32 v{T+1}, 0, v{T+1}; v_add_f32 v{T+1}, 0x3727c5ac, v{T+1}')
    S(k,f'v_rsq_f32 v{T+2}, v{T+1}; s_nop 0; v_mul_f32 v{T+4}, v{T}, v{T+2}; v_sub_f32 v{T+4}, 0, v{T+4}')
    for f in range(12):
        if f<11: rdmod(f+1)
        ld.issue(per)
        o=MT+(f&1)*16+32; t=MT+(f&1)*8
        for p in range(4):
            k.e(f'v_lshlrev_b32 v{t+2*p}, 16, v{X+4*f+p}'); k.e(f'v_and_b32 v{t+2*p+1}, 0xffff0000, v{X+4*f+p}')
        for p in range(8): k.e(f'v_fma_f32 v{t+p}, v{t+p}, v{T+2}, v{T+4}')
        k.wlg(f'm{f}')
        for p in range(8): k.e(f'v_fma_f32 v{t+p}, v{t+p}, v{o+8+p}, v{o+p}')
        for p in range(4): k.e(f'v_cvt_pk_bf16_f32 v{X+4*f+p}, v{t+2*p}, v{t+2*p+1}')
        k.ds(f'ds_write_b128 v8, {v(X+4*f,4)} offset:{f*1024}','w')
    ld.issue()
    k.e('s_waitcnt lgkmcnt(0)'); k.e('s_barrier'); k.lg=[]
def gemm(k,trans,btag):
    def rd(kb):
        for rt in range(4): k.ds(f'ds_read_b128 {v(AF+(kb&1)*16+4*rt,4)}, v4 offset:{(rt*12+kb)*1024}',f'a{kb}_{rt}')
    rd(0)
    for kb in range(12):
        if kb<11: rd(kb+1)
        if f'{btag}{kb}' in k.vm: k.wvm(f'{btag}{kb}')
        for rt in range(4):
            k.wlg(f'a{kb}_{rt}')
            for ct in range(3):
                A=v(AF+(kb&1)*16+4*rt,4); B=a((kb*3+ct)*4,4); D=v(ACC+(rt*3+ct)*4,4); C=D if kb else '0'
                k.e(f'v_mfma_f32_16x16x32_bf16 {D}, {B}, {A}, {C}' if trans else f'v_mfma_f32_16x16x32_bf16 {D}, {A}, {B}, {C}')
def gelu4(k,x,t):
    for op in ('v_mul_f32 v{t}, v{x}, v{x}','v_fma_f32 v{t}, v{t}, s61, v%d'%(T+12),'v_mul_f32 v{t}, v{t}, v{x}','v_exp_f32 v{t}, v{t}','v_add_f32 v{t}, 1.0, v{t}','v_rcp_f32 v{t}, v{t}','v_mul_f32 v{x}, v{x}, v{t}'):
        for i in range(4): k.e(op.format(t=t+i,x=x+i))
STG=65536
def stage_setup(k):
    k.e('s_mul_i32 s56, s3, 3')
    for ct in range(3):
        S(k,f's_add_u32 s57, s56, {ct}; s_lshr_b32 s58, s57, 1; s_lshl_b32 s58, s58, 10; s_and_b32 s57, s57, 1; s_lshl_b32 s57, s57, 3; s_add_u32 s58, s58, s57; s_add_u32 s58, s58, {STG}; v_add_u32 v{12+ct}, s58, v4')
    S(k,f's_mul_i32 s58, s3, 6144; s_add_u32 s58, s58, {STG}; v_add_u32 v15, s58, v4')
def stage_put(k,x,rt,ct):
    k.e(f'v_cvt_pk_bf16_f32 v{x}, v{x}, v{x+1}'); k.e(f'v_cvt_pk_bf16_f32 v{x+1}, v{x+2}, v{x+3}')
    k.e(f'ds_write_b64 v{12+ct}, {v(x,2)} offset:{rt*6144}')
def stage_out(k,sbase,rtstride,R,tag=None):
    S(k,f's_mul_i32 s52, s3, {rtstride}; s_add_u32 s52, s52, s{sbase}; s_add_u32 s53, s52, 4096; s_waitcnt lgkmcnt(0); s_barrier')
    for f in range(6): k.e(f'ds_read_b128 {v(R+4*f,4)}, v15 offset:{f*1024}')
    def st(sc):
        for f in range(6):
            k.e(f's_waitcnt lgkmcnt({5-f})')
            k.e(f'buffer_store_dwordx4 {v(R+4*f,4)}, v4, {W}, s{52+f//4} offen offset:{(f%4)*1024}{sc}')
    dual(k,st,'s%s'%tag,tag is not None)
def epi_half(k,sbase,rtstride,act,tag=None):
    for rt in range(4):
        for ct in range(3):
            x=ACC+(rt*3+ct)*4
            if act: gelu4(k,x,T+(ct&1)*4)
            stage_put(k,x,rt,ct)
    stage_out(k,sbase,rtstride,AF,tag)
def epi_loads(k,rsrd,s_res,s_gate,dst,fl):
    S(k,'v_mul_u32_u24 v6, 768, v2; v_lshl_add_u32 v6, v3, 3, v6; v_lshlrev_b32 v7, 4, v3')
    S(k,'v_lshrrev_b32 v12, 1, v3; v_lshlrev_b32 v12, 8, v12; v_lshl_add_u32 v12, v2, 4, v12; v_and_b32 v13, 1, v3; v_lshl_add_u32 v12, v13, 3, v12')
    for i in range(3): k.vmem(f'buffer_load_dwordx2 {dst(2*i,2)}, v12, s[{rsrd}:{rsrd+3}], s{s_res} offen offset:{512*i}{fl}','epi')
    for i in range(3): k.vmem(f'buffer_load_dwordx4 {dst(8+4*i,4)}, v7, {W}, s{s_gate} offen offset:{64*i} sc1','epi')
def reduce_epi(k,AC,osrd,s_out,E,T,sc):
    S(k,'s_mul_i32 s50, s3, 12288; v_add_u32 v8, s50, v4; s_mul_i32 s50, s3, 3072; v_add_u32 v9, s50, v4; s_nop 4')
    for t in range(12): k.e(f'ds_write_b128 v8, {v(AC+4*t,4)} offset:{t*1024}')
    k.e('s_waitcnt lgkmcnt(0)'); k.e('s_barrier')
    for i in range(3):
        for w in range(4): k.e(f'ds_read_b128 {v(T+(i*4+w)*4,4)}, v9 offset:{w*12288+i*1024}')
    for i in range(3):
        b=T+i*16; x=E+2*i; g=E+8+4*i; t=T+48
        S(k,f'v_lshlrev_b32 v{t}, 16, v{x}; v_and_b32 v{t+1}, 0xffff0000, v{x}; v_lshlrev_b32 v{t+2}, 16, v{x+1}; v_and_b32 v{t+3}, 0xffff0000, v{x+1}; s_waitcnt lgkmcnt({8-4*i})')
        for h in range(4): k.e(f'v_add_f32 v{b+h}, v{b+h}, v{b+4+h}'); k.e(f'v_add_f32 v{b+8+h}, v{b+8+h}, v{b+12+h}')
        for h in range(4): k.e(f'v_add_f32 v{b+h}, v{b+h}, v{b+8+h}')
        for h in range(4): k.e(f'v_fma_f32 v{b+h}, v{b+h}, v{g+h}, v{t+h}')
        k.e(f'v_cvt_pk_bf16_f32 v{b}, v{b}, v{b+1}'); k.e(f'v_cvt_pk_bf16_f32 v{b+1}, v{b+2}, v{b+3}')
        k.vmem(f'buffer_store_dwordx2 {v(b,2)}, v6, s[{osrd}:{osrd+3}], s{s_out} offen offset:{32*i}{sc}')
def wo_reg(i): return a(192+4*i,4) if i<16 else v(248+4*(i-16),4)
def w2_reg(i): return a(144+4*i,4) if i<28 else a(4*(i-28),4)

D='s[96:99]'
def ticket(k,tag):
    S(k,f's_cmp_lg_u32 s3, 0; s_cbranch_scc1 {k.ln("tk"+tag)}; s_lshl_b32 s56, s33, 2; v_mov_b32 v5, 1; v_mov_b32 v10, 0; s_mov_b64 exec, 1; buffer_atomic_add v5, v10, {D}, s56 offen sc0 sc1; s_mov_b64 exec, -1')
    k.lab('tk'+tag)
def roles(k):
    S(k,f's_cmp_lg_u32 s3, 0; s_cbranch_scc1 {k.ln("r1")}; v_readfirstlane_b32 s26, v5; s_mov_b32 s25, s33; s_mov_b32 s27, 1; s_cmp_lt_u32 s26, 32; s_cbranch_scc1 {k.ln("r0")}')
    S(k,'v_and_b32 v10, 7, v1; v_lshlrev_b32 v10, 2, v10; s_mov_b32 s57, 0x100000')
    k.lab('rl')
    S(k,f'buffer_load_dword v11, v10, {D}, 0 offen sc1; s_waitcnt vmcnt(0); s_mov_b32 s28, 0')
    for x in range(8): S(k,f'v_readlane_b32 s{40+x}, v11, {x}; s_nop 0; s_add_u32 s28, s28, s{40+x}')
    S(k,f's_sub_u32 s57, s57, 1; s_cbranch_scc1 {k.ln("rg")}; s_cmp_lt_u32 s28, 256; s_cbranch_scc1 {k.ln("rl")}')
    k.lab('rg')
    k.e('s_sub_u32 s26, s26, 32')
    for x in range(8): S(k,f's_max_u32 s28, s{40+x}, 32; s_sub_u32 s28, s28, 32; s_cmp_lt_u32 {x}, s33; s_cselect_b32 s28, s28, 0; s_add_u32 s26, s26, s28')
    k.e('s_mov_b32 s27, 0')
    for x in range(8):
        S(k,f's_min_u32 s28, s{40+x}, 32; s_sub_u32 s29, 32, s28; s_mov_b32 s25, {x}; s_cmp_lt_u32 s26, s29; s_cselect_b32 s28, s28, 0; s_cbranch_scc1 {k.ln("rf")}; s_sub_u32 s26, s26, s29')
    k.lab('rf'); S(k,'s_add_u32 s26, s26, s28; s_and_b32 s26, s26, 31')
    k.lab('r0')
    S(k,f'v_mov_b32 v10, s25; v_mov_b32 v11, s26; v_mov_b32 v12, s27; v_mov_b32 v13, {STG+24576}; ds_write_b96 v13, v[10:12]; s_waitcnt lgkmcnt(0)')
    k.lab('r1')
    S(k,f's_barrier; v_mov_b32 v13, {STG+24576}; ds_read_b96 v[10:12], v13; s_waitcnt lgkmcnt(0); v_readfirstlane_b32 s25, v10; v_readfirstlane_b32 s26, v11; v_readfirstlane_b32 s63, v12')
```

```python
from mega import *
from start import *
def attn_phase(k,ld):
    Sx=16; O=80; QF=128; T=160
    S(k,f's_lshl_b32 s25, s22, 6; s_lshl_b32 s26, s24, 2; s_add_u32 s26, s26, s25; s_add_u32 s26, s26, s3; s_mul_i32 s26, s26, 6144; s_add_u32 s26, s26, {WS_Q}')
    S(k,f's_lshl_b32 s29, s23, 4; s_add_u32 s29, s29, s25; s_lshl_b32 s27, s3, 2; s_add_u32 s29, s29, s27; s_mul_i32 s29, s29, 6144; s_add_u32 s29, s29, {WS_K}')
    S(k,f's_lshl_b32 s34, s22, 5; s_lshl_b32 s27, s23, 3; s_add_u32 s34, s34, s27; s_mul_i32 s34, s34, 12288; s_mul_i32 s27, s3, 3072; s_add_u32 s34, s34, s27; s_add_u32 s34, s34, {WS_V}')
    S(k,'s_lshr_b32 s40, s22, 1; s_lshl_b32 s40, s40, 4; s_and_b32 s41, s22, 1; s_lshl_b32 s42, s23, 2; s_add_u32 s42, s42, s40; s_add_u32 s43, s40, s24')
    S(k,'v_and_b32 v10, 3, v1; v_add_u32 v10, s42, v10; v_lshlrev_b32 v10, 7, v10; v_lshrrev_b32 v11, 2, v1; v_lshl_add_u32 v10, v11, 3, v10; s_lshl_b32 s44, s41, 2; s_add_u32 s45, s44, 8; v_add_u32 v10, s45, v10')
    S(k,'s_lshl_b32 s45, s43, 7; s_add_u32 s45, s45, s44; v_mov_b32 v11, s45; v_cmp_gt_u32 vcc, 8, v1; s_nop 1; v_cndmask_b32 v10, v11, v10, vcc')
    S(k,'s_mul_i32 s27, s3, 6144; s_mov_b32 m0, s27; s_add_u32 s28, s26, 4096')
    poll(k,0,'a'); k.stamp(5)
    for i in range(4): k.vmem(f'buffer_load_dwordx4 v4, {W}, s26 offen offset:{i*1024} sc1 lds','q')
    S(k,'s_add_u32 s27, s27, 4096; s_mov_b32 m0, s27; s_nop 0')
    for i in range(2): k.vmem(f'buffer_load_dwordx4 v4, {W}, s28 offen offset:{i*1024} sc1 lds','q')
    k.e('v_mov_b32 v9, 132'); k.vmem('buffer_load_dwordx2 v[6:7], v9, s[96:99], 0 offen sc1','hd')
    for kb in range(6):
        for kt in range(4): ld.add(a((kb*4+kt)*4,4),29,kt*6144+kb*1024,f'K{kb}',' sc1')
    for j in range(8):
        for i in range(3): ld.add(a(96+(j*3+i)*4,4),34,j*12288+i*1024,f'V{j}',' sc1')
    ld.issue(24)
    k.wvm('q'); k.e('s_barrier')
    def rdq(kb):
        for qt in range(4): k.ds(f'ds_read_b128 {v(QF+(kb&1)*16+4*qt,4)}, v4 offset:{(qt*6+kb)*1024}',f'q{kb}_{qt}')
    rdq(0)
    for kb in range(6):
        if kb<5: rdq(kb+1)
        k.wvm(f'K{kb}')
        for qt in range(4):
            k.wlg(f'q{kb}_{qt}')
            for kt in range(4):
                Dd=v(Sx+(qt*4+kt)*4,4)
                k.e(f'v_mfma_f32_16x16x32_bf16 {Dd}, {a((kb*4+kt)*4,4)}, {v(QF+(kb&1)*16+4*qt,4)}, {Dd if kb else 0}')
            ld.issue(1)
    k.stamp(6)
    k.e('s_mov_b32 s57, 0x100000'); k.lab('hl')
    S(k,f'v_readfirstlane_b32 s56, v6; v_readfirstlane_b32 s58, v7; s_add_u32 s56, s56, s58; s_cmp_eq_u32 s56, 9; s_cbranch_scc1 {k.ln("hk")}; s_sub_u32 s57, s57, 1; s_cbranch_scc1 {k.ln("hk")}; s_sleep 2; buffer_load_dwordx2 v[6:7], v9, s[96:99], 0 offen sc1; s_waitcnt vmcnt(0); s_branch {k.ln("hl")}')
    k.lab('hk')
    for kb in range(3):
        for ct in range(6): ld.add(wo_reg(kb*6+ct),35,ct*12288+kb*1024,'wo')
    S(k,'s_lshl_b32 s56, s33, 2; v_mov_b32 v5, 0'); k.vmem(f'buffer_load_dword v5, v5, s[96:99], s56 offen sc1','cnt')
    for kb in range(8):
        for ct in range(3): ld.add(a((kb*3+ct)*4,4),38,(ct*12+kb)*1024,'w1')
    k.e(f's_mov_b32 s40, {f2(192**-0.5*1.4426950408889634)}')
    S(k,'s_lshl_b32 s41, s3, 8; v_lshlrev_b32 v6, 4, v2; v_add_u32 v6, 57344, v6; v_add_u32 v7, s41, v6; s_mul_i32 s42, s3, 8192; s_add_u32 s42, s42, 24576; v_add_u32 v8, s42, v4; s_nop 4')
    for qt in range(4):
        b=Sx+qt*16
        k.e(f'v_max3_f32 v{T+qt}, v{b}, v{b+1}, v{b+2}')
        for i in range(3,15,2): k.e(f'v_max3_f32 v{T+qt}, v{T+qt}, v{b+i}, v{b+i+1}')
        k.e(f'v_max_f32 v{T+qt}, v{T+qt}, v{b+15}')
    xred(k,[T,T+1,T+2,T+3],[T+4,T+5,T+6,T+7],'v_max_f32')
    k.e(f'ds_write_b128 v7, {v(T,4)}'); ld.issue(1); k.e('s_waitcnt lgkmcnt(0)'); k.e('s_barrier')
    for w in range(4): k.e(f'ds_read_b128 {v(T+8+4*w,4)}, v6 offset:{w*256}')
    ld.issue(1)
    for i in range(4): k.e(f'v_mov_b32 v{T+4+i}, 0x3f803f80')
    S(k,'s_lshl_b32 s42, s3, 10; v_add_u32 v9, s42, v4; s_waitcnt lgkmcnt(0)')
    for qt in range(4):
        S(k,f'v_max3_f32 v{T+qt}, v{T+8+qt}, v{T+12+qt}, v{T+16+qt}; v_max_f32 v{T+qt}, v{T+qt}, v{T+20+qt}; v_mul_f32 v{T+qt}, s40, v{T+qt}')
    for qt in range(4):
        b=Sx+qt*16
        for hh in range(2):
            for i in range(8*hh,8*hh+8): k.e(f'v_fma_f32 v{b+i}, v{b+i}, s40, -v{T+qt}')
            ld.issue(1)
            for i in range(8*hh,8*hh+8): k.e(f'v_exp_f32 v{b+i}, v{b+i}')
            ld.issue(1)
            for i in range(4*hh,4*hh+4): k.e(f'v_cvt_pk_bf16_f32 v{b+i}, v{b+2*i}, v{b+2*i+1}')
            k.e(f'ds_write_b128 v8, {v(b+4*hh,4)} offset:{(hh*4+qt)*1024}')
    k.e('s_waitcnt lgkmcnt(0)'); k.e('s_barrier'); k.lg=[]
    k.stamp(7)
    LA=T+8; PW=T+16
    def rdp(j):
        for qt in range(4): k.ds(f'ds_read_b128 {v(QF+(j&1)*16+4*qt,4)}, v4 offset:{24576+(j*4+qt)*1024}',f'p{j}_{qt}')
        k.ds(f'ds_read_b128 {v(PW+(j&1)*4,4)}, v9 offset:{24576+j*4096}',f'pw{j}')
    rdp(0)
    for j in range(8):
        if j<7: rdp(j+1)
        k.wvm(f'V{j}')
        for qt in range(4):
            k.wlg(f'p{j}_{qt}')
            for i in range(3):
                D=v(O+(qt*3+i)*4,4)
                k.e(f'v_mfma_f32_16x16x32_bf16 {D}, {a(96+(j*3+i)*4,4)}, {v(QF+(j&1)*16+4*qt,4)}, {D if j else 0}')
            ld.issue(1)
        k.wlg(f'pw{j}')
        k.e(f'v_mfma_f32_16x16x32_bf16 {v(LA,4)}, {v(T+4,4)}, {v(PW+(j&1)*4,4)}, {v(LA,4) if j else 0}')
        if j==2:
            S(k,'s_lshr_b32 s26, s22, 1; s_lshl_b32 s26, s26, 6; s_lshl_b32 s27, s24, 2; s_add_u32 s26, s26, s27')
            S(k,f's_lshl_b32 s27, s20, 2; s_add_u32 s27, s27, s23; s_mul_i32 s27, s27, 49152; s_add_u32 s27, s27, {WS_OP}')
            S(k,'s_and_b32 s28, s22, 1; s_mul_i32 s29, s28, 6144; s_add_u32 s32, s29, s27')
            stage_setup(k)
        if j==3:
            k.wvm('cnt'); S(k,'v_readfirstlane_b32 s56, v5; s_cmp_ge_u32 s56, 32; s_cselect_b32 s63, s63, 0')
            k.e(f'v_mov_b32 v{T+12}, v{T}')
            for qt in range(1,4): S(k,f's_cmp_eq_u32 s3, {qt}; s_cselect_b64 vcc, -1, 0; v_cndmask_b32 v{T+12}, v{T+12}, v{T+qt}, vcc')
            S(k,f's_lshl_b32 s27, s23, 1; s_add_u32 s27, s27, s28; s_lshl_b32 s27, s27, 14; s_add_u32 s26, s26, s3; s_lshl_b32 s26, s26, 7; s_add_u32 s27, s27, s26; s_add_u32 s27, s27, {WS_ML}; v_lshlrev_b32 v10, 3, v1')
    assert not ld.q
    k.e('s_nop 4'); k.stamp(8)
    for qt in range(4):
        for i in range(3): stage_put(k,O+(qt*3+i)*4,qt,i)
    S(k,f'v_mov_b32 v{T+13}, v{LA}; s_mov_b64 exec, 0xffff')
    dual(k,lambda sc: k.e(f'buffer_store_dwordx2 {v(T+12,2)}, v10, {W}, s27 offen{sc}'),'ml',True)
    k.e('s_mov_b64 exec, -1')
    stage_out(k,32,12288,QF,'a')
    S(k,'s_lshl_b32 s44, s28, 2; s_add_u32 s44, s44, s23')
    publish(k,1,43,44,'a')
def wo_phase(k,ld):
    AC=16; OPR=64; Wt=160; T=184; E=200
    S(k,'s_lshr_b32 s40, s3, 1; s_min_u32 s41, s3, 2; s_mul_i32 s48, s37, 3; s_add_u32 s48, s48, s41')
    S(k,f's_mul_i32 s47, s36, {32*768}; s_lshl_b32 s25, s48, 10; s_add_u32 s25, s25, s47; s_add_u32 s25, s25, {WS_X1}; s_add_u32 s31, s25, 12288; s_lshl_b32 s49, s48, 6; s_add_u32 s47, s47, s49; s_add_u32 s49, s47, 12288')
    S(k,f's_lshr_b32 s26, s36, 5; s_mul_i32 s26, s26, 9216; s_lshl_b32 s27, s48, 7; s_add_u32 s26, s26, s27; s_add_u32 s26, s26, {768*4}')
    S(k,'v_mul_u32_u24 v6, 768, v2; v_lshl_add_u32 v6, v3, 4, v6; v_lshlrev_b32 v7, 5, v3')
    k.vmem(f'buffer_load_dwordx4 {v(E,4)}, v6, s[8:11], s47 offen','epi'); k.vmem(f'buffer_load_dwordx4 {v(E+4,4)}, v6, s[8:11], s49 offen','epi')
    k.vmem(f'buffer_load_dwordx4 {v(E+8,4)}, v7, {W}, s26 offen sc1','epi'); k.vmem(f'buffer_load_dwordx4 {v(E+12,4)}, v7, {W}, s26 offen offset:16 sc1','epi')
    S(k,f's_lshl_b32 s27, s40, 14; s_lshl_b32 s28, s36, 8; s_add_u32 s27, s27, s28; s_add_u32 s27, s27, {WS_ML}; v_lshlrev_b32 v12, 3, v2')
    S(k,f's_mul_i32 s28, s3, 3072; s_mul_i32 s29, s20, 196608; s_add_u32 s29, s29, s28; s_and_b32 s28, s36, 1; s_mul_i32 s28, s28, 24576; s_add_u32 s29, s29, s28; s_add_u32 s29, s29, {WS_OP}; s_lshr_b32 s30, s36, 1')
    poll8(k,1,30,'w'); k.stamp(9)
    for s in range(4):
        for rt in range(2): k.vmem(f'buffer_load_dwordx2 {v(Wt+(rt*4+s)*2,2)}, v12, {W}, s27 offen offset:{rt*128} sc1','ml')
        k.e('s_add_u32 s27, s27, 32768')
    for kb in range(3):
        for rt in range(2):
            for s in range(4): ld.add(v(OPR+((kb*2+rt)*4+s)*4,4),29,s*49152+rt*12288+kb*1024,f'o{kb}_{rt}',' sc1')
    ld.issue()
    for kb in range(8,12):
        for ct in range(3): ld.add(a((kb*3+ct)*4,4),38,(ct*12+kb)*1024,'w1')
    for i in range(12): ld.add(w2_reg(i),39,((i%3)*48+i//3)*1024,'w2')
    k.wvm('ml')
    for rt in range(2):
        b=Wt+rt*8
        S(k,f'v_max3_f32 v{T}, v{b}, v{b+2}, v{b+4}; v_max_f32 v{T}, v{T}, v{b+6}')
        for s in range(4): k.e(f'v_sub_f32 v{b+2*s}, v{b+2*s}, v{T}')
        for s in range(4): k.e(f'v_exp_f32 v{b+2*s}, v{b+2*s}')
        k.e('s_nop 0')
        S(k,f'v_mul_f32 v{T}, v{b}, v{b+1}; v_mul_f32 v{T+1}, v{b+2}, v{b+3}; v_fmac_f32 v{T}, v{b+4}, v{b+5}; v_fmac_f32 v{T+1}, v{b+6}, v{b+7}; v_add_f32 v{T}, v{T}, v{T+1}; v_rcp_f32 v{T}, v{T}; s_nop 0')
        for s in range(4): k.e(f'v_mul_f32 v{b+2*s}, v{b+2*s}, v{T}')
    for kb in range(3):
        for rt in range(2):
            k.wvm(f'o{kb}_{rt}')
            o=OPR+(kb*2+rt)*16
            for s in range(4):
                for p in range(4): S(k,f'v_lshlrev_b32 v{T+8+2*p}, 16, v{o+4*s+p}; v_and_b32 v{T+8+2*p+1}, 0xffff0000, v{o+4*s+p}')
                for p in range(8): k.e(f'v_mul_f32 v{T+p}, v{T+8+p}, v{Wt+rt*8}' if s==0 else f'v_fmac_f32 v{T+p}, v{T+8+p}, v{Wt+rt*8+2*s}')
            for p in range(4): k.e(f'v_cvt_pk_bf16_f32 v{o+p}, v{T+2*p}, v{T+2*p+1}')
            ld.issue(4)
            for ct in range(6):
                D=v(AC+(rt*6+ct)*4,4)
                k.e(f'v_mfma_f32_16x16x32_bf16 {D}, {wo_reg(kb*6+ct)}, {v(o,4)}, {D if kb else 0}')
    k.stamp(10)
    S(k,'s_mul_i32 s50, s3, 12288; v_add_u32 v8, s50, v4; s_lshl_b32 s50, s41, 11; v_lshrrev_b32 v9, 1, v3; v_lshlrev_b32 v9, 10, v9; v_and_b32 v13, 1, v3; v_lshl_add_u32 v9, v13, 9, v9; v_lshl_add_u32 v9, v2, 4, v9; v_add_u32 v9, s50, v9')
    for t in range(12): k.e(f'ds_write_b128 v8, {v(AC+4*t,4)} offset:{t*1024}')
    S(k,f's_waitcnt lgkmcnt(0); s_barrier; s_cmp_eq_u32 s3, 3; s_cbranch_scc1 {k.ln("wo3")}')
    for rt in range(2):
        for w in range(4):
            for e in range(2): k.e(f'ds_read_b128 {v(64+rt*32+w*8+e*4,4)}, v9 offset:{w*12288+rt*6144+e*256}')
    for rt in range(2):
        b=64+rt*32; t=128
        for p in range(4): S(k,f'v_lshlrev_b32 v{t+2*p}, 16, v{E+4*rt+p}; v_and_b32 v{t+2*p+1}, 0xffff0000, v{E+4*rt+p}')
        k.e(f's_waitcnt lgkmcnt({8-8*rt})')
        for h in range(8): S(k,f'v_add_f32 v{b+h}, v{b+h}, v{b+8+h}; v_add_f32 v{b+16+h}, v{b+16+h}, v{b+24+h}')
        for h in range(8): k.e(f'v_add_f32 v{b+h}, v{b+h}, v{b+16+h}')
        for h in range(8): k.e(f'v_fma_f32 v{b+h}, v{b+h}, v{E+8+h}, v{t+h}')
        for p in range(4): k.e(f'v_cvt_pk_bf16_f32 v{b+p}, v{b+2*p}, v{b+2*p+1}')
        dual(k,lambda sc: k.e(f'buffer_store_dwordx4 {v(b,4)}, v4, {W}, s{31 if rt else 25} offen{sc}'),f'x{rt}',True)
    k.lab('wo3')
    S(k,'s_and_b32 s44, s36, 1; s_lshl_b32 s44, s44, 2; s_add_u32 s44, s44, s37')
    publish(k,2,30,44,'w')
def k_mega():
    k=K('mega_kernel',256,256,152064,256,256)
    prologue(k,256,[('x',4,XS),('ws',6,WS),('out',60,OS),('dbg',58,96),('wqkv',84,84)])
    ld=Loads(k,59)
    S(k,'s_getreg_b32 s33, hwreg(HW_REG_XCC_ID, 0, 3)')
    S(k,'s_and_b32 s25, s2, 7; s_lshr_b32 s26, s2, 3; s_and_b32 s27, s26, 3; s_lshl_b32 s20, s25, 2; s_add_u32 s20, s20, s27; s_lshr_b32 s21, s26, 2')
    S(k,f's_cmp_ge_u32 s21, 6; s_cbranch_scc1 {k.ln("idle")}')
    qkv_front(k)
    S(k,f'v_lshlrev_b32 v10, 18, v1; buffer_load_dword v11, v10, {W}, 0 offen sc1; v_mul_u32_u24 v10, 24576, v1; buffer_load_dword v9, v10, s[16:19], 0 offen sc1; v_mov_b32 v10, 132; buffer_load_dword v246, v10, s[96:99], 0 offen sc1')
    S(k,f's_and_b32 s27, s21, 1; s_lshl_b32 s28, s47, 1; s_add_u32 s27, s27, s28; s_and_b32 s28, s20, 15; s_lshl_b32 s29, s27, 4; s_add_u32 s29, s29, s28; s_mul_i32 s29, s29, {24*1024}')
    S(k,f's_lshr_b32 s30, s21, 1; s_mul_i32 s31, s30, 0x180000; s_add_u32 s29, s29, s31; s_add_u32 s29, s29, {WS_Q}; s_cmp_eq_u32 s30, 2; s_cbranch_scc1 {k.ln("v")}')
    sv=(list(k.vm),list(k.lg))
    gemm(k,True,'B'); k.stamp(3); k.e('s_nop 7'); epi_half(k,29,6144,False); k.e(f's_branch {k.ln("qdone")}')
    k.lab('v'); k.vm,k.lg=sv
    gemm(k,False,'B'); k.stamp(3)
    S(k,'s_mul_i32 s56, s3, 3072; s_add_u32 s56, s56, s29; s_add_u32 s57, s56, 12288; s_nop 4')
    for p in range(2):
        for ct in range(3):
            x=ACC+(2*p*3+ct)*4; y=ACC+((2*p+1)*3+ct)*4
            S(k,f'v_cvt_pk_bf16_f32 v{x}, v{x}, v{x+1}; v_cvt_pk_bf16_f32 v{x+1}, v{x+2}, v{x+3}; v_cvt_pk_bf16_f32 v{x+2}, v{y}, v{y+1}; v_cvt_pk_bf16_f32 v{x+3}, v{y+2}, v{y+3}')
            k.e(f'buffer_store_dwordx4 {v(x,4)}, v4, {W}, s{56+p} offen offset:{ct*1024} sc1')
    k.lab('qdone'); publish(k,0,20,21,'q'); k.e(f's_branch {k.ln("attn")}')
    k.lab('idle')
    S(k,'s_sub_u32 s30, s2, 192'); helper(k); ticket(k,'i'); S(k,f'v_lshlrev_b32 v10, 18, v1; buffer_load_dword v11, v10, {W}, 0 offen sc1; v_mul_u32_u24 v10, 24576, v1; buffer_load_dword v9, v10, s[16:19], 0 offen sc1; v_mov_b32 v10, 132; buffer_load_dword v246, v10, s[96:99], 0 offen sc1'); k.stamp(2); k.stamp(3)
    k.e('s_waitcnt vmcnt(0)'); k.vm=[]
    k.lab('attn'); roles(k)
    S(k,'s_and_b32 s27, s26, 3; s_lshl_b32 s20, s25, 2; s_add_u32 s20, s20, s27; s_lshr_b32 s21, s26, 2')
    S(k,'s_lshr_b32 s22, s20, 4; s_lshl_b32 s22, s22, 1; s_lshr_b32 s27, s21, 2; s_add_u32 s22, s22, s27; s_and_b32 s23, s21, 3; s_and_b32 s24, s20, 15')
    S(k,'s_and_b32 s27, s21, 1; s_lshl_b32 s36, s20, 1; s_add_u32 s36, s36, s27; s_lshr_b32 s37, s21, 1')
    S(k,f's_lshl_b32 s28, s21, 2; s_add_u32 s28, s28, s3; s_mul_i32 s28, s28, {36*1024}; s_add_u32 s38, s28, {WS_W1}')
    S(k,f's_mul_i32 s39, s21, {3*48*1024}; s_mul_i32 s29, s3, 12288; s_add_u32 s39, s39, s29; s_add_u32 s39, s39, {WS_W2}')
    S(k,f's_mul_i32 s35, s37, {6*12288}; s_mul_i32 s29, s3, 3072; s_add_u32 s35, s35, s29; s_add_u32 s35, s35, {WS_WO}')
    k.stamp(4)
    S(k,f'v_readfirstlane_b32 s56, v246; s_cmp_eq_u32 s3, 0; s_cselect_b32 s56, 0, s56; s_cmp_lg_u32 s56, 1; s_cbranch_scc1 {k.ln("nowarm")}')
    S(k,f's_mul_i32 s56, s26, 3; s_add_u32 s56, s56, s3; s_mul_i32 s56, s56, {216*128}; s_add_u32 s56, s56, {WS_WO-216*128}; v_lshlrev_b32 v10, 7, v1')
    for i in range(4): S(k,f'buffer_load_dword v{16+i}, v10, {W}, s56 offen sc1; s_add_u32 s56, s56, {8192 if i<2 else 3072}')
    k.lab('nowarm')
    attn_phase(k,ld)
    wo_phase(k,ld)
    for i in range(12,28): ld.add(w2_reg(i),39,((i%3)*48+i//3)*1024,'w2')
    S(k,f's_mul_i32 s46, s20, {64*768}; s_add_u32 s46, s46, {WS_X1}; s_lshr_b32 s47, s20, 4; s_mul_i32 s48, s47, 9216; s_add_u32 s48, s48, {1152*4}')
    S(k,f's_mul_i32 s29, s20, {4*48*1024}; s_mul_i32 s30, s21, 6144; s_add_u32 s30, s29, s30; s_add_u32 s30, s30, {WS_G}')
    poll8(k,2,20,'f'); k.stamp(11)
    ln_phase(k,WS,46,48,' sc1',ld,4,1); k.stamp(12)
    c=-2*0.7978845608028654*1.4426950408889634
    S(k,f'v_mov_b32 v{T+12}, {f2(c)}; s_mov_b32 s61, {f2(c*0.044715)}')
    gemm(k,True,'none'); k.stamp(13)
    for i in range(28,36): ld.add(w2_reg(i),39,((i%3)*48+i//3)*1024,'w2')
    ld.issue()
    epi_half(k,30,48*1024,True,'g')
    publish(k,3,20,21,'f')
    S(k,f's_lshl_b32 s46, s20, 2; s_add_u32 s46, s46, s3; s_mul_i32 s46, s46, {16*768}; s_mul_i32 s25, s21, 1536; s_add_u32 s25, s25, s46; s_add_u32 s25, s25, {WS_X1}; s_mul_i32 s24, s21, 96; s_add_u32 s46, s46, s24')
    S(k,f's_mul_i32 s26, s47, 9216; s_mul_i32 s27, s21, 192; s_add_u32 s26, s26, s27; s_add_u32 s26, s26, {1920*4}')
    S(k,f's_mul_i32 s28, s3, 12288; s_add_u32 s29, s29, s28; s_add_u32 s29, s29, {WS_G}')
    poll8(k,3,20,'g'); k.stamp(14)
    for kb in range(12):
        for rt in range(4): ld.add(v(64+(kb*4+rt)*4,4),29,(rt*48+kb)*1024,f'G{kb}',' sc1')
    ld.issue(24)
    for kb in range(12):
        k.wvm(f'G{kb}')
        for rt in range(4):
            for ct in range(3):
                D=v(16+(rt*3+ct)*4,4)
                k.e(f'v_mfma_f32_16x16x32_bf16 {D}, {w2_reg(kb*3+ct)}, {v(64+(kb*4+rt)*4,4)}, {D if kb else 0}')
            ld.issue(1)
        if kb==6: epi_loads(k,WS,25,26,lambda o,n: a(32+o,n),' sc1')
    k.wvm('epi')
    for i in range(20):
        if i not in (6,7): k.e(f'v_accvgpr_read_b32 v{128+i}, a{32+i}')
    reduce_epi(k,16,OS,46,128,64,'')
    k.end(15)
    k.lab('end'); k.e('s_endpgm')
    return k
```

```python
from mega import *
import k_prep as kp
MODL=147968
CTS=12288+16
def prep_params(k,t,B):
    S(k,f's_cmp_lt_u32 s{t}, 180; s_cselect_b32 s{B}, s86, s88; s_cselect_b32 s{B+1}, s87, s89; s_cselect_b32 s{B+5}, 3072, 768; s_cselect_b32 s{B+6}, 0, 1; s_cselect_b32 s{B+7}, {WS_W1}, {WS_W2}'.replace(f's_cselect_b32 s{B+7}, {WS_W1}, {WS_W2}',f's_mov_b32 s56, {WS_W2}; s_cselect_b32 s{B+7}, {WS_W1}, s56').replace(f's_cselect_b32 s{B+5}, 3072, 768',f's_movk_i32 s56, 768; s_cselect_b32 s{B+5}, 3072, s56'))
    S(k,f's_cselect_b32 s57, 12, 48; s_cselect_b32 s58, 19, 21; s_movk_i32 s56, 180; s_cselect_b32 s56, 36, s56; s_mov_b32 s{B+2}, 1179648')
    S(k,f's_cmp_lt_u32 s{t}, 36; s_cselect_b32 s{B}, s84, s{B}; s_cselect_b32 s{B+1}, s85, s{B+1}; s_cselect_b32 s{B+5}, 768, s{B+5}; s_cselect_b32 s{B+6}, 1, s{B+6}; s_cselect_b32 s{B+7}, {WS_WO}, s{B+7}; s_cselect_b32 s56, 0, s56; s_cselect_b32 s{B+2}, 294912, s{B+2}')
    S(k,f's_and_b32 s{B+1}, s{B+1}, 0xffff; s_mov_b32 s{B+3}, 0x20000; s_sub_u32 s56, s{t}, s56; s_mul_i32 s55, s56, 43691; s_lshr_b32 s55, s55, s58; s_mul_i32 s54, s55, s57; s_sub_u32 s56, s56, s54')
    S(k,f's_lshl_b32 s54, s54, 3; s_add_u32 s54, s54, s56; s_lshl_b32 s54, s54, 10; s_add_u32 s{B+7}, s{B+7}, s54; s_lshl_b32 s{B+8}, s57, 10')
    S(k,f's_mul_i32 s{B+4}, s56, s{B+5}; s_lshl_b32 s{B+4}, s{B+4}, 5; s_lshl_b32 s55, s55, 8; s_add_u32 s{B+4}, s{B+4}, s55')
def prep_load(k,B,R,va):
    S(k,f's_sub_u32 s56, 3, s{B+6}; s_lshl_b32 s56, s{B+5}, s56; v_mul_lo_u32 v{va}, v3, s56; v_lshl_add_u32 v{va}, v2, 4, v{va}; s_mul_i32 s57, s{B+6}, 12; s_mul_i32 s57, s57, s{B+5}; s_mov_b32 s58, s{B+4}')
    for j in range(8):
        k.e(f'buffer_load_dwordx4 {v(R+4*j,4)}, v{va}, s[{B}:{B+3}], s58 offen'); k.e(f's_add_u32 s58, s58, s{B+5}')
        if j==3: k.e('s_add_u32 s58, s58, s57')
def prep_store(k,B,R,O):
    S(k,'v_lshrrev_b32 v7, 1, v2; v_mul_u32_u24 v7, 1040, v7; v_lshl_add_u32 v7, v3, 8, v7; v_and_b32 v8, 1, v2; v_lshl_add_u32 v7, v8, 7, v7; s_mul_i32 s56, s3, 8320; s_add_u32 s56, s56, 8192; v_add_u32 v7, s56, v7; v_add_u32 v8, s56, v4; s_mov_b32 s47, 0x05040100; s_mov_b32 s48, 0x07060302')
    for f in range(8):
        for p in range(4): k.e(f'v_perm_b32 v{O+4*f+p}, v{R+4*(2*p+1)+(f>>1)}, v{R+4*(2*p)+(f>>1)}, s{48 if f&1 else 47}')
        k.e(f'ds_write_b128 v7, {v(O+4*f,4)} offset:{16*f}')
    k.e('s_waitcnt lgkmcnt(0)')
    for f in range(8): k.e(f'ds_read_b128 {v(R+4*f,4)}, v8 offset:{1040*f}')
    k.e(f's_mov_b32 s56, s{B+7}')
    for f in range(8): S(k,f's_waitcnt lgkmcnt({7-f}); buffer_store_dwordx4 {v(R+4*f,4)}, v4, {W}, s56 offen sc1; s_add_u32 s56, s56, s{B+8}')
def helper(k):
    S(k,f's_load_dwordx2 s[84:85], s[0:1], {KA["wo"]}; s_load_dwordx4 s[88:91], s[0:1], {KA["w1"]}; s_load_dwordx2 s[36:37], s[0:1], {KA["c"]}; s_load_dwordx2 s[92:93], s[0:1], {KA["wmod"]}; s_waitcnt lgkmcnt(0)')
    S(k,'s_mov_b32 s86, s88; s_mov_b32 s87, s89; s_mov_b32 s88, s90; s_mov_b32 s89, s91')
    k.srd(36,36,'c'); k.srd(92,92,'wmod')
    S(k,f's_cmp_lg_u32 s30, 0; s_cbranch_scc1 {k.ln("nz")}; v_lshlrev_b32 v6, 4, v0; v_mov_b32 v8, 0; v_mov_b32 v9, 0; v_mov_b32 v10, 0; v_mov_b32 v11, 0')
    for p in range(4): S(k,f's_mov_b32 s40, {WS_FL+p*4096}; buffer_store_dwordx4 v[8:11], v6, {W}, s40 offen sc1')
    k.e('s_waitcnt vmcnt(0)')
    k.lab('nz')
    S(k,'s_lshl_b32 s31, s30, 2; s_add_u32 s31, s31, s3; s_add_u32 s32, s31, 160; s_min_u32 s32, s32, 323; s_mov_b32 s34, s30')
    prep_params(k,31,68); prep_params(k,32,20)
    S(k,'v_lshrrev_b32 v15, 5, v1; v_mul_u32_u24 v15, 3072, v15; v_and_b32 v12, 30, v1; v_lshl_add_u32 v15, v12, 2, v15; s_min_u32 s35, s30, 23; s_lshl_b32 s35, s35, 7; s_add_u32 s35, s35, 0x5000')
    k.e(f'buffer_load_dwordx2 v[224:225], v15, {W}, s35 offen sc1')
    k.lab('modl')
    k2=K(k.name,0,0,0,0,0); kp.mod_body(k2,0,36,92,12,' sc1')
    L=[x.replace('s_sub_u32 s40, s2, 0','s_mov_b32 s40, s34') for x in k2.L]
    i=[n for n,x in enumerate(L) if 'v_mov_b32 v64, 0' in x][0]
    k.L+=L[:i]
    S(k,f's_cmp_ge_u32 s34, 64; s_cbranch_scc1 {k.ln("nopl")}; s_cmp_lt_u32 s34, 24; s_cselect_b32 s56, s3, 1; s_cmp_eq_u32 s56, 0; s_cbranch_scc1 {k.ln("nopl")}'); prep_load(k,68,96,13); prep_load(k,20,128,14); k.e('s_waitcnt vmcnt(16)'); k.e(f's_branch {k.ln("npl2")}')
    k.lab('nopl'); k.e('s_waitcnt vmcnt(0)'); k.lab('npl2')
    j=[n for n,x in enumerate(L) if 'moddone:' in x][0]
    k.L+=[x for x in L[i:j] if 's_waitcnt vmcnt' not in x]
    S(k,f's_cmp_ge_u32 s34, 24; s_cbranch_scc1 {k.ln("moddone")}; s_nop 1; v_mov_b32_dpp v17, v16 quad_perm:[1,1,3,3] row_mask:0xf bank_mask:0xf; v_lshrrev_b32 v224, 16, v16; v_or_b32 v224, v224, v17; v_add_u32 v225, 1, v225; s_mov_b32 exec_lo, 0x55555555; s_mov_b32 exec_hi, 0x55555555; buffer_store_dwordx2 v[224:225], v15, {W}, s35 offen sc1; s_waitcnt vmcnt(0); v_mov_b32 v10, 0; v_mov_b32 v11, 1; s_mov_b64 exec, 1; buffer_atomic_add v11, v10, {D}, 0 offen offset:64 sc0 sc1; s_waitcnt vmcnt(0); v_readfirstlane_b32 s56, v11; v_mov_b32 v11, 1; s_cmp_lg_u32 s56, 23; s_cbranch_scc1 {k.ln("moddone")}; buffer_store_dword v11, v10, {D}, 0 offen offset:128 sc1')
    k.lab('moddone'); k.e('s_mov_b64 exec, -1'); k.stamp(1)
    S(k,f's_cmp_ge_u32 s34, 64; s_cbranch_scc1 {k.ln("m2")}; s_cmp_lt_u32 s34, 24; s_cselect_b32 s56, s3, 1; s_cmp_lg_u32 s56, 0; s_cbranch_scc1 {k.ln("late")}'); prep_load(k,68,96,13); k.lab('late')
    k.e('s_waitcnt vmcnt(0)')
    prep_store(k,68,96,160)
    S(k,f's_sub_u32 s56, s31, 96; s_cmp_ge_u32 s56, 68; s_cbranch_scc1 {k.ln("np2")}'); prep_store(k,20,128,192); k.lab('np2')
    S(k,f's_waitcnt vmcnt(0); s_barrier; s_cmp_lg_u32 s3, 0; s_cbranch_scc1 {k.ln("hd")}; v_mov_b32 v10, 0; v_mov_b32 v11, 1; s_mov_b64 exec, 1; buffer_atomic_add v11, v10, {D}, 0 offen offset:68 sc0 sc1; s_waitcnt vmcnt(0); v_readfirstlane_b32 s56, v11; v_mov_b32 v11, 1; s_cmp_lg_u32 s56, 63; s_cbranch_scc1 {k.ln("hd")}; buffer_store_dword v11, v10, {D}, 0 offen offset:132 sc1')
    k.lab('hd'); k.e('s_mov_b64 exec, -1')
    S(k,f's_add_u32 s34, s34, 8; s_cmp_ge_u32 s34, 64; s_cbranch_scc1 {k.ln("modl")}; s_branch {k.ln("m3")}')
    k.lab('m2')
    S(k,f's_cmp_lg_u32 s3, 0; s_cbranch_scc1 {k.ln("m3")}; s_waitcnt vmcnt(0); v_mov_b32 v10, 0; v_mov_b32 v11, 1; s_mov_b64 exec, 1; buffer_atomic_add v11, v10, {D}, 0 offen offset:136 sc1')
    k.lab('m3'); k.e('s_mov_b64 exec, -1')
    dpoll(k,'v_mov_b32 v10, 128',1,'w',False)
def dpoll(k,voff,val,tag,bar=True):
    S(k,f's_cmp_lg_u32 s3, 0; s_cbranch_scc1 {k.ln("dd"+tag)}; {voff}; s_mov_b32 s57, 0x100000')
    k.lab('dl'+tag)
    S(k,f'buffer_load_dword v11, v10, {D}, 0 offen sc1; s_waitcnt vmcnt(0); v_cmp_ne_u32 vcc, {val}, v11; s_sub_u32 s57, s57, 1; s_cbranch_scc1 {k.ln("dd"+tag)}; s_cbranch_vccz {k.ln("dd"+tag)}; s_sleep 2; s_branch {k.ln("dl"+tag)}')
    k.lab('dd'+tag)
    if bar: k.e('s_barrier')
def qkv_front(k):
    R=64; PO=208; T=224; XH=64
    S(k,f'v_mul_u32_u24 v6, 768, v2; v_lshl_add_u32 v6, v3, 4, v6; s_mul_i32 s50, s3, {16*768}; s_mul_i32 s46, s20, {64*768}; s_add_u32 s50, s50, s46')
    for f in range(12): k.vmem(f'buffer_load_dwordx4 {v(X+4*f,4)}, v6, s[8:11], s50 offen offset:{64*f}','x%d'%f)
    S(k,f'v_lshrrev_b32 v7, 3, v1; v_mul_u32_u24 v8, {4*2304}, v7; v_and_b32 v9, 7, v1; v_lshl_add_u32 v8, v9, 4, v8; s_mul_i32 s51, s3, {96*2304}; s_mul_i32 s52, s21, 384; s_add_u32 s51, s51, s52')
    S(k,f'v_lshrrev_b32 v12, 1, v9; v_mul_u32_u24 v12, {CTS}, v12; v_and_b32 v13, 1, v9; v_lshl_add_u32 v12, v13, 7, v12; v_lshrrev_b32 v13, 1, v7; v_lshl_add_u32 v12, v13, 8, v12; v_and_b32 v13, 1, v7; v_lshl_add_u32 v12, v13, 3, v12; s_mul_i32 s52, s3, 3072; v_add_u32 v12, s52, v12')
    S(k,f'v_add_u32 v13, {4*CTS}, v12; v_add_u32 v14, {8*CTS}, v12; s_mul_i32 s52, s3, {3*CTS}; v_add_u32 v15, s52, v4; s_mov_b32 s47, 0x05040100; s_mov_b32 s48, 0x07060302; s_mov_b32 s55, 0x3f803f80')
    def ldu(n):
        u,cg=n//3,n%3
        for j in range(4):
            k.e(f's_add_u32 s59, s51, {(32*u+j)*2304}'); k.vmem(f'buffer_load_dwordx4 {v(R+16*n+4*j,4)}, v8, s[84:87], s59 offen offset:{128*cg}',f'u{n}')
    S(k,f's_lshr_b32 s53, s20, 4; s_mul_i32 s53, s53, 3072; s_min_u32 s54, s3, 2; s_lshl_b32 s54, s54, 10; s_add_u32 s53, s53, s54; s_add_u32 s53, s53, 0x5000')
    k.vmem(f'buffer_load_dwordx4 v[232:235], v4, {W}, s53 offen sc1','snap')
    for n in range(4): ldu(n)
    ticket(k,'q')
    for i in range(8): k.e(f'v_mov_b32 v{T+i}, 0')
    for f in range(12):
        if f%4==0: k.wvm('x%d'%(f+3))
        for p in range(4): k.e(f'v_dot2c_f32_bf16 v{T+p}, s55, v{X+4*f+p}'); k.e(f'v_dot2c_f32_bf16 v{T+4+p}, v{X+4*f+p}, v{X+4*f+p}')
    S(k,f's_nop 2; v_add_f32 v{T}, v{T}, v{T+1}; v_add_f32 v{T+2}, v{T+2}, v{T+3}; v_add_f32 v{T+4}, v{T+4}, v{T+5}; v_add_f32 v{T+6}, v{T+6}, v{T+7}; v_add_f32 v{T}, v{T}, v{T+2}; v_add_f32 v{T+1}, v{T+4}, v{T+6}')
    xred(k,[T,T+1],[T+2,T+3],'v_add_f32')
    S(k,f'v_mul_f32 v{T}, 0x3b2aaaab, v{T}; v_mul_f32 v{T+1}, 0x3b2aaaab, v{T+1}; v_fma_f32 v{T+1}, -v{T}, v{T}, v{T+1}; v_max_f32 v{T+1}, 0, v{T+1}; v_add_f32 v{T+1}, 0x3727c5ac, v{T+1}')
    S(k,f'v_rsq_f32 v{T+2}, v{T+1}; s_nop 0; v_mul_f32 v{T+4}, v{T}, v{T+2}; v_sub_f32 v{T+4}, 0, v{T+4}')
    def xhat(f):
        for p in range(4): S(k,f'v_lshlrev_b32 v{XH+8*f+2*p}, 16, v{X+4*f+p}; v_and_b32 v{XH+8*f+2*p+1}, 0xffff0000, v{X+4*f+p}')
        for p in range(8): k.e(f'v_fma_f32 v{XH+8*f+p}, v{XH+8*f+p}, v{T+2}, v{T+4}')
    for n in range(9):
        if n==7:
            S(k,f'v_mov_b32 v10, 128; s_mov_b32 s57, 0x100000; s_waitcnt vmcnt(0); s_branch {k.ln("gc")}'); k.lab('gl')
            S(k,f's_sub_u32 s57, s57, 1; s_cbranch_scc1 {k.ln("gd")}; s_mov_b32 s56, 0; s_and_b32 s58, s57, 7; s_cbranch_scc1 {k.ln("gn")}; buffer_load_dword v11, v10, {D}, 0 offen sc1; s_waitcnt vmcnt(0); v_readfirstlane_b32 s56, v11')
            k.lab('gn')
            S(k,f'buffer_load_dwordx4 v[236:239], v4, {W}, s53 offen sc1; s_waitcnt vmcnt(0); s_cmp_eq_u32 s56, 1; s_cbranch_scc1 {k.ln("gd")}')
            k.lab('gc')
            S(k,f'v_cmp_eq_u32 vcc, v233, v237; v_cmp_eq_u32 s[58:59], v235, v239; s_or_b64 vcc, vcc, s[58:59]; s_cbranch_vccnz {k.ln("gl")}')
            k.lab('gd')
            S(k,f'v_lshlrev_b32 v240, 16, v236; v_and_b32 v241, 0xffff0000, v236; v_lshlrev_b32 v242, 16, v238; v_and_b32 v243, 0xffff0000, v238; s_add_u32 s54, s54, {MODL}; v_add_u32 v10, s54, v4; ds_write_b128 v10, v[240:243]')
        if n<7: k.wvm(f'u{n}')
        if n==0: k.stamp(1)
        u,cg=n//3,n%3; r=R+16*n
        for f in range(8):
            for p in range(2): k.e(f'v_perm_b32 v{PO+2*f+p}, v{r+4*(2*p+1)+(f>>1)}, v{r+4*(2*p)+(f>>1)}, s{48 if f&1 else 47}')
            k.e(f'ds_write_b64 v{12+cg}, {v(PO+2*f,2)} offset:{u*1024+f*16}')
        if n<5: ldu(n+4)
        if n==5: k.vmem(f'buffer_load_dwordx4 v[236:239], v4, {W}, s53 offen sc1','gr')
        if n<6: xhat(2*n); xhat(2*n+1)
    k.stamp(2)
    S(k,'s_waitcnt lgkmcnt(0); s_barrier')
    for kb in range(12):
        for ct in range(3): k.e(f'ds_read_b128 {a((kb*3+ct)*4,4)}, v15 offset:{ct*CTS+kb*1024}')
    S(k,f's_lshr_b32 s47, s20, 4; v_lshlrev_b32 v7, 5, v3; v_add_u32 v7, {MODL}, v7; s_mul_i32 s50, s3, 12288; v_add_u32 v8, s50, v4')
    stage_setup(k)
    S(k,'s_waitcnt vmcnt(0) lgkmcnt(0); s_barrier'); k.vm=[]; k.lg=[]
    def rdmod(f):
        for q in range(4): k.ds(f'ds_read_b128 {v(160+(f%3)*16+4*q,4)}, v7 offset:{f*128+(q&1)*16+(q>>1)*1536}',f'm{f}')
    rdmod(0); rdmod(1)
    for f in range(12):
        if f<10: rdmod(f+2)
        o=160+(f%3)*16; t=XH+8*f
        k.wlg(f'm{f}')
        for p in range(8): k.e(f'v_fma_f32 v{t+p}, v{t+p}, v{o+8+p}, v{o+p}')
        for p in range(4): k.e(f'v_cvt_pk_bf16_f32 v{X+4*f+p}, v{t+2*p}, v{t+2*p+1}')
        k.ds(f'ds_write_b128 v8, {v(X+4*f,4)} offset:{f*1024}','w')
    S(k,'s_waitcnt lgkmcnt(0); s_barrier'); k.lg=[]
```

```python
import sys, base
if len(sys.argv)>2: base.DIAG.update({'mega_kernel':1})
from base import *
from mega2 import *
k=k_mega()
if len(sys.argv)>2:
    import re
    k.L=[re.sub(r'(v_lsh[lr]rev_b32 v\d+, \d+|v_and_b32 v\d+, \d+), v0$',r'\1, v247',x) if n>30 else x for n,x in enumerate(k.L)]
build([k],sys.argv[1])
```

```python
from mega import *
from start import *
def attn_phase(k,ld):
    Sx=16; O=80; QF=128; T=160
    S(k,f's_lshl_b32 s25, s22, 6; s_lshl_b32 s26, s24, 2; s_add_u32 s26, s26, s25; s_add_u32 s26, s26, s3; s_mul_i32 s26, s26, 6144; s_add_u32 s26, s26, {WS_Q}')
    S(k,f's_lshl_b32 s29, s23, 4; s_add_u32 s29, s29, s25; s_lshl_b32 s27, s3, 2; s_add_u32 s29, s29, s27; s_mul_i32 s29, s29, 6144; s_add_u32 s29, s29, {WS_K}')
    S(k,f's_lshl_b32 s34, s22, 5; s_lshl_b32 s27, s23, 3; s_add_u32 s34, s34, s27; s_mul_i32 s34, s34, 12288; s_mul_i32 s27, s3, 3072; s_add_u32 s34, s34, s27; s_add_u32 s34, s34, {WS_V}')
    S(k,'s_lshr_b32 s40, s22, 1; s_lshl_b32 s40, s40, 4; s_and_b32 s41, s22, 1; s_lshl_b32 s42, s23, 2; s_add_u32 s42, s42, s40; s_add_u32 s43, s40, s24')
    S(k,'v_and_b32 v10, 3, v1; v_add_u32 v10, s42, v10; v_lshlrev_b32 v10, 7, v10; v_lshrrev_b32 v11, 2, v1; v_lshl_add_u32 v10, v11, 3, v10; s_lshl_b32 s44, s41, 2; s_add_u32 s45, s44, 8; v_add_u32 v10, s45, v10')
    S(k,'s_lshl_b32 s45, s43, 7; s_add_u32 s45, s45, s44; v_mov_b32 v11, s45; v_cmp_gt_u32 vcc, 8, v1; s_nop 1; v_cndmask_b32 v10, v11, v10, vcc')
    S(k,'s_mul_i32 s27, s3, 6144; s_mov_b32 m0, s27; s_add_u32 s28, s26, 4096')
    poll(k,0,'a'); k.stamp(5)
    for i in range(4): k.vmem(f'buffer_load_dwordx4 v4, {W}, s26 offen offset:{i*1024} sc1 lds','q')
    S(k,'s_add_u32 s27, s27, 4096; s_mov_b32 m0, s27; s_nop 0')
    for i in range(2): k.vmem(f'buffer_load_dwordx4 v4, {W}, s28 offen offset:{i*1024} sc1 lds','q')
    k.e('v_mov_b32 v9, 132'); k.vmem('buffer_load_dwordx2 v[6:7], v9, s[96:99], 0 offen sc1','hd')
    for kb in range(6):
        for kt in range(4): ld.add(a((kb*4+kt)*4,4),29,kt*6144+kb*1024,f'K{kb}',' sc1')
    for j in range(8):
        for i in range(3): ld.add(a(96+(j*3+i)*4,4),34,j*12288+i*1024,f'V{j}',' sc1')
    ld.issue(24)
    k.wvm('q'); k.e('s_barrier')
    def rdq(kb):
        for qt in range(4): k.ds(f'ds_read_b128 {v(QF+(kb&1)*16+4*qt,4)}, v4 offset:{(qt*6+kb)*1024}',f'q{kb}_{qt}')
    rdq(0)
    for kb in range(6):
        if kb<5: rdq(kb+1)
        k.wvm(f'K{kb}')
        for qt in range(4):
            k.wlg(f'q{kb}_{qt}')
            for kt in range(4):
                Dd=v(Sx+(qt*4+kt)*4,4)
                k.e(f'v_mfma_f32_16x16x32_bf16 {Dd}, {a((kb*4+kt)*4,4)}, {v(QF+(kb&1)*16+4*qt,4)}, {Dd if kb else 0}')
            ld.issue(1)
    k.stamp(6)
    k.e('s_mov_b32 s57, 0x100000'); k.lab('hl')
    S(k,f'v_readfirstlane_b32 s56, v6; v_readfirstlane_b32 s58, v7; s_add_u32 s56, s56, s58; s_cmp_eq_u32 s56, 9; s_cbranch_scc1 {k.ln("hk")}; s_sub_u32 s57, s57, 1; s_cbranch_scc1 {k.ln("hk")}; s_sleep 2; buffer_load_dwordx2 v[6:7], v9, s[96:99], 0 offen sc1; s_waitcnt vmcnt(0); s_branch {k.ln("hl")}')
    k.lab('hk')
    for kb in range(3):
        for ct in range(6): ld.add(wo_reg(kb*6+ct),35,ct*12288+kb*1024,'wo')
    S(k,'s_lshl_b32 s56, s33, 2; v_mov_b32 v5, 0'); k.vmem(f'buffer_load_dword v5, v5, s[96:99], s56 offen sc1','cnt')
    for kb in range(8):
        for ct in range(3): ld.add(a((kb*3+ct)*4,4),38,(ct*12+kb)*1024,'w1')
    k.e(f's_mov_b32 s40, {f2(192**-0.5*1.4426950408889634)}')
    S(k,'s_lshl_b32 s41, s3, 8; v_lshlrev_b32 v6, 4, v2; v_add_u32 v6, 57344, v6; v_add_u32 v7, s41, v6; s_mul_i32 s42, s3, 8192; s_add_u32 s42, s42, 24576; v_add_u32 v8, s42, v4; s_nop 4')
    for qt in range(4):
        b=Sx+qt*16
        k.e(f'v_max3_f32 v{T+qt}, v{b}, v{b+1}, v{b+2}')
        for i in range(3,15,2): k.e(f'v_max3_f32 v{T+qt}, v{T+qt}, v{b+i}, v{b+i+1}')
        k.e(f'v_max_f32 v{T+qt}, v{T+qt}, v{b+15}')
    xred(k,[T,T+1,T+2,T+3],[T+4,T+5,T+6,T+7],'v_max_f32')
    k.e(f'ds_write_b128 v7, {v(T,4)}'); ld.issue(1); k.e('s_waitcnt lgkmcnt(0)'); k.e('s_barrier')
    for w in range(4): k.e(f'ds_read_b128 {v(T+8+4*w,4)}, v6 offset:{w*256}')
    ld.issue(1)
    for i in range(4): k.e(f'v_mov_b32 v{T+4+i}, 0x3f803f80')
    S(k,'s_lshl_b32 s42, s3, 10; v_add_u32 v9, s42, v4; s_waitcnt lgkmcnt(0)')
    for qt in range(4):
        S(k,f'v_max3_f32 v{T+qt}, v{T+8+qt}, v{T+12+qt}, v{T+16+qt}; v_max_f32 v{T+qt}, v{T+qt}, v{T+20+qt}; v_mul_f32 v{T+qt}, s40, v{T+qt}')
    for qt in range(4):
        b=Sx+qt*16
        for hh in range(2):
            for i in range(8*hh,8*hh+8): k.e(f'v_fma_f32 v{b+i}, v{b+i}, s40, -v{T+qt}')
            ld.issue(1)
            for i in range(8*hh,8*hh+8): k.e(f'v_exp_f32 v{b+i}, v{b+i}')
            ld.issue(1)
            for i in range(4*hh,4*hh+4): k.e(f'v_cvt_pk_bf16_f32 v{b+i}, v{b+2*i}, v{b+2*i+1}')
            k.e(f'ds_write_b128 v8, {v(b+4*hh,4)} offset:{(hh*4+qt)*1024}')
    k.e('s_waitcnt lgkmcnt(0)'); k.e('s_barrier'); k.lg=[]
    k.stamp(7)
    LA=T+8; PW=T+16
    def rdp(j):
        for qt in range(4): k.ds(f'ds_read_b128 {v(QF+(j&1)*16+4*qt,4)}, v4 offset:{24576+(j*4+qt)*1024}',f'p{j}_{qt}')
        k.ds(f'ds_read_b128 {v(PW+(j&1)*4,4)}, v9 offset:{24576+j*4096}',f'pw{j}')
    rdp(0)
    for j in range(8):
        if j<7: rdp(j+1)
        k.wvm(f'V{j}')
        for qt in range(4):
            k.wlg(f'p{j}_{qt}')
            for i in range(3):
                D=v(O+(qt*3+i)*4,4)
                k.e(f'v_mfma_f32_16x16x32_bf16 {D}, {a(96+(j*3+i)*4,4)}, {v(QF+(j&1)*16+4*qt,4)}, {D if j else 0}')
            ld.issue(1)
        k.wlg(f'pw{j}')
        k.e(f'v_mfma_f32_16x16x32_bf16 {v(LA,4)}, {v(T+4,4)}, {v(PW+(j&1)*4,4)}, {v(LA,4) if j else 0}')
        if j==2:
            S(k,'s_lshr_b32 s26, s22, 1; s_lshl_b32 s26, s26, 6; s_lshl_b32 s27, s24, 2; s_add_u32 s26, s26, s27')
            S(k,f's_lshl_b32 s27, s20, 2; s_add_u32 s27, s27, s23; s_mul_i32 s27, s27, 49152; s_add_u32 s27, s27, {WS_OP}')
            S(k,'s_and_b32 s28, s22, 1; s_mul_i32 s29, s28, 6144; s_add_u32 s32, s29, s27')
            stage_setup(k)
        if j==3:
            k.wvm('cnt'); S(k,'v_readfirstlane_b32 s56, v5; s_cmp_ge_u32 s56, 32; s_cselect_b32 s63, s63, 0')
            k.e(f'v_mov_b32 v{T+12}, v{T}')
            for qt in range(1,4): S(k,f's_cmp_eq_u32 s3, {qt}; s_cselect_b64 vcc, -1, 0; v_cndmask_b32 v{T+12}, v{T+12}, v{T+qt}, vcc')
            S(k,f's_lshl_b32 s27, s23, 1; s_add_u32 s27, s27, s28; s_lshl_b32 s27, s27, 14; s_add_u32 s26, s26, s3; s_lshl_b32 s26, s26, 7; s_add_u32 s27, s27, s26; s_add_u32 s27, s27, {WS_ML}; v_lshlrev_b32 v10, 3, v1')
    assert not ld.q
    k.e('s_nop 4'); k.stamp(8)
    for qt in range(4):
        for i in range(3): stage_put(k,O+(qt*3+i)*4,qt,i)
    S(k,f'v_mov_b32 v{T+13}, v{LA}; s_mov_b64 exec, 0xffff')
    dual(k,lambda sc: k.e(f'buffer_store_dwordx2 {v(T+12,2)}, v10, {W}, s27 offen{sc}'),'ml',True)
    k.e('s_mov_b64 exec, -1')
    stage_out(k,32,12288,QF,'a')
    S(k,'s_lshl_b32 s44, s28, 2; s_add_u32 s44, s44, s23')
    publish(k,1,43,44,'a')
def wo_phase(k,ld):
    AC=16; OPR=64; Wt=160; T=184; E=200
    S(k,'s_lshr_b32 s40, s3, 1; s_min_u32 s41, s3, 2; s_mul_i32 s48, s37, 3; s_add_u32 s48, s48, s41')
    S(k,f's_mul_i32 s47, s36, {32*768}; s_lshl_b32 s25, s48, 10; s_add_u32 s25, s25, s47; s_add_u32 s25, s25, {WS_X1}; s_add_u32 s31, s25, 12288; s_lshl_b32 s49, s48, 6; s_add_u32 s47, s47, s49; s_add_u32 s49, s47, 12288')
    S(k,f's_lshr_b32 s26, s36, 5; s_mul_i32 s26, s26, 9216; s_lshl_b32 s27, s48, 7; s_add_u32 s26, s26, s27; s_add_u32 s26, s26, {768*4}')
    S(k,'v_mul_u32_u24 v6, 768, v2; v_lshl_add_u32 v6, v3, 4, v6; v_lshlrev_b32 v7, 5, v3')
    k.vmem(f'buffer_load_dwordx4 {v(E,4)}, v6, s[8:11], s47 offen','epi'); k.vmem(f'buffer_load_dwordx4 {v(E+4,4)}, v6, s[8:11], s49 offen','epi')
    k.vmem(f'buffer_load_dwordx4 {v(E+8,4)}, v7, {W}, s26 offen sc1','epi'); k.vmem(f'buffer_load_dwordx4 {v(E+12,4)}, v7, {W}, s26 offen offset:16 sc1','epi')
    S(k,f's_lshl_b32 s27, s40, 14; s_lshl_b32 s28, s36, 8; s_add_u32 s27, s27, s28; s_add_u32 s27, s27, {WS_ML}; v_lshlrev_b32 v12, 3, v2')
    S(k,f's_mul_i32 s28, s3, 3072; s_mul_i32 s29, s20, 196608; s_add_u32 s29, s29, s28; s_and_b32 s28, s36, 1; s_mul_i32 s28, s28, 24576; s_add_u32 s29, s29, s28; s_add_u32 s29, s29, {WS_OP}; s_lshr_b32 s30, s36, 1')
    poll8(k,1,30,'w'); k.stamp(9)
    for s in range(4):
        for rt in range(2): k.vmem(f'buffer_load_dwordx2 {v(Wt+(rt*4+s)*2,2)}, v12, {W}, s27 offen offset:{rt*128} sc1','ml')
        k.e('s_add_u32 s27, s27, 32768')
    for kb in range(3):
        for rt in range(2):
            for s in range(4): ld.add(v(OPR+((kb*2+rt)*4+s)*4,4),29,s*49152+rt*12288+kb*1024,f'o{kb}_{rt}',' sc1')
    ld.issue()
    for kb in range(8,12):
        for ct in range(3): ld.add(a((kb*3+ct)*4,4),38,(ct*12+kb)*1024,'w1')
    for i in range(12): ld.add(w2_reg(i),39,((i%3)*48+i//3)*1024,'w2')
    k.wvm('ml')
    for rt in range(2):
        b=Wt+rt*8
        S(k,f'v_max3_f32 v{T}, v{b}, v{b+2}, v{b+4}; v_max_f32 v{T}, v{T}, v{b+6}')
        for s in range(4): k.e(f'v_sub_f32 v{b+2*s}, v{b+2*s}, v{T}')
        for s in range(4): k.e(f'v_exp_f32 v{b+2*s}, v{b+2*s}')
        k.e('s_nop 0')
        S(k,f'v_mul_f32 v{T}, v{b}, v{b+1}; v_mul_f32 v{T+1}, v{b+2}, v{b+3}; v_fmac_f32 v{T}, v{b+4}, v{b+5}; v_fmac_f32 v{T+1}, v{b+6}, v{b+7}; v_add_f32 v{T}, v{T}, v{T+1}; v_rcp_f32 v{T}, v{T}; s_nop 0')
        for s in range(4): k.e(f'v_mul_f32 v{b+2*s}, v{b+2*s}, v{T}')
    for kb in range(3):
        for rt in range(2):
            k.wvm(f'o{kb}_{rt}')
            o=OPR+(kb*2+rt)*16
            for s in range(4):
                for p in range(4): S(k,f'v_lshlrev_b32 v{T+8+2*p}, 16, v{o+4*s+p}; v_and_b32 v{T+8+2*p+1}, 0xffff0000, v{o+4*s+p}')
                for p in range(8): k.e(f'v_mul_f32 v{T+p}, v{T+8+p}, v{Wt+rt*8}' if s==0 else f'v_fmac_f32 v{T+p}, v{T+8+p}, v{Wt+rt*8+2*s}')
            for p in range(4): k.e(f'v_cvt_pk_bf16_f32 v{o+p}, v{T+2*p}, v{T+2*p+1}')
            ld.issue(4)
            for ct in range(6):
                D=v(AC+(rt*6+ct)*4,4)
                k.e(f'v_mfma_f32_16x16x32_bf16 {D}, {wo_reg(kb*6+ct)}, {v(o,4)}, {D if kb else 0}')
    k.stamp(10)
    S(k,'s_mul_i32 s50, s3, 12288; v_add_u32 v8, s50, v4; s_lshl_b32 s50, s41, 11; v_lshrrev_b32 v9, 1, v3; v_lshlrev_b32 v9, 10, v9; v_and_b32 v13, 1, v3; v_lshl_add_u32 v9, v13, 9, v9; v_lshl_add_u32 v9, v2, 4, v9; v_add_u32 v9, s50, v9')
    for t in range(12): k.e(f'ds_write_b128 v8, {v(AC+4*t,4)} offset:{t*1024}')
    S(k,f's_waitcnt lgkmcnt(0); s_barrier; s_cmp_eq_u32 s3, 3; s_cbranch_scc1 {k.ln("wo3")}')
    for rt in range(2):
        for w in range(4):
            for e in range(2): k.e(f'ds_read_b128 {v(64+rt*32+w*8+e*4,4)}, v9 offset:{w*12288+rt*6144+e*256}')
    for rt in range(2):
        b=64+rt*32; t=128
        for p in range(4): S(k,f'v_lshlrev_b32 v{t+2*p}, 16, v{E+4*rt+p}; v_and_b32 v{t+2*p+1}, 0xffff0000, v{E+4*rt+p}')
        k.e(f's_waitcnt lgkmcnt({8-8*rt})')
        for h in range(8): S(k,f'v_add_f32 v{b+h}, v{b+h}, v{b+8+h}; v_add_f32 v{b+16+h}, v{b+16+h}, v{b+24+h}')
        for h in range(8): k.e(f'v_add_f32 v{b+h}, v{b+h}, v{b+16+h}')
        for h in range(8): k.e(f'v_fma_f32 v{b+h}, v{b+h}, v{E+8+h}, v{t+h}')
        for p in range(4): k.e(f'v_cvt_pk_bf16_f32 v{b+p}, v{b+2*p}, v{b+2*p+1}')
        dual(k,lambda sc: k.e(f'buffer_store_dwordx4 {v(b,4)}, v4, {W}, s{31 if rt else 25} offen{sc}'),f'x{rt}',True)
    k.lab('wo3')
    S(k,'s_and_b32 s44, s36, 1; s_lshl_b32 s44, s44, 2; s_add_u32 s44, s44, s37')
    publish(k,2,30,44,'w')
def k_mega():
    k=K('mega_kernel',256,256,152064,256,256)
    prologue(k,256,[('x',4,XS),('ws',6,WS),('out',60,OS),('dbg',58,96),('wqkv',84,84)])
    ld=Loads(k,59)
    S(k,'s_getreg_b32 s33, hwreg(HW_REG_XCC_ID, 0, 3)')
    S(k,f's_cmp_lg_u32 s3, 3; s_cbranch_scc1 {k.ln("nocode")}; s_getpc_b64 s[40:41]')
    k.lab('pc')
    S(k,f's_lshr_b32 s42, s2, 3; s_lshl_b32 s42, s42, 11; v_lshlrev_b32 v10, 7, v2; v_add_u32 v10, s42, v10; v_min_u32 v10, {k.ln("end")}-{k.ln("pc")}, v10; v_mov_b32 v11, s41; v_add_co_u32 v10, vcc, s40, v10; s_nop 1; v_addc_co_u32 v11, vcc, 0, v11, vcc; global_load_dword v245, v[10:11], off')
    k.lab('nocode')
    S(k,'s_and_b32 s25, s2, 7; s_lshr_b32 s26, s2, 3; s_and_b32 s27, s26, 3; s_lshl_b32 s20, s25, 2; s_add_u32 s20, s20, s27; s_lshr_b32 s21, s26, 2')
    S(k,f's_cmp_ge_u32 s21, 6; s_cbranch_scc1 {k.ln("idle")}')
    qkv_front(k)
    S(k,f'v_lshlrev_b32 v10, 18, v1; buffer_load_dword v11, v10, {W}, 0 offen sc1; v_mul_u32_u24 v10, 24576, v1; buffer_load_dword v9, v10, s[16:19], 0 offen sc1; v_mov_b32 v10, 132; buffer_load_dword v246, v10, s[96:99], 0 offen sc1')
    S(k,f's_and_b32 s27, s21, 1; s_lshl_b32 s28, s47, 1; s_add_u32 s27, s27, s28; s_and_b32 s28, s20, 15; s_lshl_b32 s29, s27, 4; s_add_u32 s29, s29, s28; s_mul_i32 s29, s29, {24*1024}')
    S(k,f's_lshr_b32 s30, s21, 1; s_mul_i32 s31, s30, 0x180000; s_add_u32 s29, s29, s31; s_add_u32 s29, s29, {WS_Q}; s_cmp_eq_u32 s30, 2; s_cbranch_scc1 {k.ln("v")}')
    sv=(list(k.vm),list(k.lg))
    gemm(k,True,'B'); k.stamp(3); k.e('s_nop 7'); epi_half(k,29,6144,False); k.e(f's_branch {k.ln("qdone")}')
    k.lab('v'); k.vm,k.lg=sv
    gemm(k,False,'B'); k.stamp(3)
    S(k,'s_mul_i32 s56, s3, 3072; s_add_u32 s56, s56, s29; s_add_u32 s57, s56, 12288; s_nop 4')
    for p in range(2):
        for ct in range(3):
            x=ACC+(2*p*3+ct)*4; y=ACC+((2*p+1)*3+ct)*4
            S(k,f'v_cvt_pk_bf16_f32 v{x}, v{x}, v{x+1}; v_cvt_pk_bf16_f32 v{x+1}, v{x+2}, v{x+3}; v_cvt_pk_bf16_f32 v{x+2}, v{y}, v{y+1}; v_cvt_pk_bf16_f32 v{x+3}, v{y+2}, v{y+3}')
            k.e(f'buffer_store_dwordx4 {v(x,4)}, v4, {W}, s{56+p} offen offset:{ct*1024} sc1')
    k.lab('qdone'); publish(k,0,20,21,'q'); k.e(f's_branch {k.ln("attn")}')
    k.lab('idle')
    S(k,'s_sub_u32 s30, s2, 192'); helper(k); ticket(k,'i'); S(k,f'v_lshlrev_b32 v10, 18, v1; buffer_load_dword v11, v10, {W}, 0 offen sc1; v_mul_u32_u24 v10, 24576, v1; buffer_load_dword v9, v10, s[16:19], 0 offen sc1; v_mov_b32 v10, 132; buffer_load_dword v246, v10, s[96:99], 0 offen sc1'); k.stamp(2); k.stamp(3)
    k.e('s_waitcnt vmcnt(0)'); k.vm=[]
    k.lab('attn'); roles(k)
    S(k,'s_and_b32 s27, s26, 3; s_lshl_b32 s20, s25, 2; s_add_u32 s20, s20, s27; s_lshr_b32 s21, s26, 2')
    S(k,'s_lshr_b32 s22, s20, 4; s_lshl_b32 s22, s22, 1; s_lshr_b32 s27, s21, 2; s_add_u32 s22, s22, s27; s_and_b32 s23, s21, 3; s_and_b32 s24, s20, 15')
    S(k,'s_and_b32 s27, s21, 1; s_lshl_b32 s36, s20, 1; s_add_u32 s36, s36, s27; s_lshr_b32 s37, s21, 1')
    S(k,f's_lshl_b32 s28, s21, 2; s_add_u32 s28, s28, s3; s_mul_i32 s28, s28, {36*1024}; s_add_u32 s38, s28, {WS_W1}')
    S(k,f's_mul_i32 s39, s21, {3*48*1024}; s_mul_i32 s29, s3, 12288; s_add_u32 s39, s39, s29; s_add_u32 s39, s39, {WS_W2}')
    S(k,f's_mul_i32 s35, s37, {6*12288}; s_mul_i32 s29, s3, 3072; s_add_u32 s35, s35, s29; s_add_u32 s35, s35, {WS_WO}')
    k.stamp(4)
    S(k,f'v_readfirstlane_b32 s56, v246; s_cmp_eq_u32 s3, 0; s_cselect_b32 s56, 0, s56; s_cmp_lg_u32 s56, 1; s_cbranch_scc1 {k.ln("nowarm")}')
    S(k,f's_mul_i32 s56, s26, 3; s_add_u32 s56, s56, s3; s_mul_i32 s56, s56, {216*128}; s_add_u32 s56, s56, {WS_WO-216*128}; v_lshlrev_b32 v10, 7, v1')
    for i in range(4): S(k,f'buffer_load_dword v{16+i}, v10, {W}, s56 offen sc1; s_add_u32 s56, s56, {8192 if i<2 else 3072}')
    k.lab('nowarm')
    attn_phase(k,ld)
    wo_phase(k,ld)
    for i in range(12,28): ld.add(w2_reg(i),39,((i%3)*48+i//3)*1024,'w2')
    S(k,f's_mul_i32 s46, s20, {64*768}; s_add_u32 s46, s46, {WS_X1}; s_lshr_b32 s47, s20, 4; s_mul_i32 s48, s47, 9216; s_add_u32 s48, s48, {1152*4}')
    S(k,f's_mul_i32 s29, s20, {4*48*1024}; s_mul_i32 s30, s21, 6144; s_add_u32 s30, s29, s30; s_add_u32 s30, s30, {WS_G}')
    poll8(k,2,20,'f'); k.stamp(11)
    ln_phase(k,WS,46,48,' sc1',ld,4,1); k.stamp(12)
    c=-2*0.7978845608028654*1.4426950408889634
    S(k,f'v_mov_b32 v{T+12}, {f2(c)}; s_mov_b32 s61, {f2(c*0.044715)}')
    gemm(k,True,'none'); k.stamp(13)
    for i in range(28,36): ld.add(w2_reg(i),39,((i%3)*48+i//3)*1024,'w2')
    ld.issue()
    epi_half(k,30,48*1024,True,'g')
    publish(k,3,20,21,'f')
    S(k,f's_lshl_b32 s46, s20, 2; s_add_u32 s46, s46, s3; s_mul_i32 s46, s46, {16*768}; s_mul_i32 s25, s21, 1536; s_add_u32 s25, s25, s46; s_add_u32 s25, s25, {WS_X1}; s_mul_i32 s24, s21, 96; s_add_u32 s46, s46, s24')
    S(k,f's_mul_i32 s26, s47, 9216; s_mul_i32 s27, s21, 192; s_add_u32 s26, s26, s27; s_add_u32 s26, s26, {1920*4}')
    S(k,f's_mul_i32 s28, s3, 12288; s_add_u32 s29, s29, s28; s_add_u32 s29, s29, {WS_G}')
    poll8(k,3,20,'g'); k.stamp(14)
    for kb in range(12):
        for rt in range(4): ld.add(v(64+(kb*4+rt)*4,4),29,(rt*48+kb)*1024,f'G{kb}',' sc1')
    ld.issue(24)
    for kb in range(12):
        k.wvm(f'G{kb}')
        for rt in range(4):
            for ct in range(3):
                D=v(16+(rt*3+ct)*4,4)
                k.e(f'v_mfma_f32_16x16x32_bf16 {D}, {w2_reg(kb*3+ct)}, {v(64+(kb*4+rt)*4,4)}, {D if kb else 0}')
            ld.issue(1)
        if kb==6: epi_loads(k,WS,25,26,lambda o,n: a(32+o,n),' sc1')
    k.wvm('epi')
    for i in range(20):
        if i not in (6,7): k.e(f'v_accvgpr_read_b32 v{128+i}, a{32+i}')
    reduce_epi(k,16,OS,46,128,64,'')
    k.end(15)
    k.lab('end'); k.e('s_endpgm')
    return k
```

```python
import os
WS_MOD=0; WS_WQKV=0; WS_WO=0x10000; WS_W1=WS_WO+294912; WS_W2=WS_W1+1179648
WS_X1=0x2A0000; WS_ML=0x420000
WS_Q=0x440000; WS_K=WS_Q+0x180000; WS_V=WS_K+0x180000
WS_OP=0x8C0000; WS_G=WS_OP; WS_SIZE=0x2000000
KA=dict(x=0,c=8,wqkv=16,wo=24,wmod=32,w1=40,w2=48,out=56,dbg=64,ws=72)
SZ=dict(x=1572864,c=1536,wqkv=884736,wo=294912,wmod=1769472,w1=1179648,w2=1179648,out=1572864,dbg=256,ws=WS_SIZE)
DIAG={}
class K:
    def __init__(s,name,grid,block,lds,nv,na):
        s.name=name; s.grid=grid; s.block=block; s.lds=lds; s.nv=nv; s.na=na; s.L=[]; s.vm=[]; s.lg=[]; s.nl=0; s.diag=DIAG.get(name)
    def e(s,t): s.L.append('  '+t)
    def lab(s,n): s.L.append(f'{s.name}_{n}:')
    def ln(s,n): return f'{s.name}_{n}'
    def srd(s,d,b,name):
        s.e(f's_mov_b32 s{d}, s{b}'); s.e(f's_and_b32 s{d+1}, s{b+1}, 0xffff')
        s.e(f's_mov_b32 s{d+2}, {SZ[name]}'); s.e(f's_mov_b32 s{d+3}, 0x20000')
    def vmem(s,t,tag=None): s.e(t); s.vm.append(tag)
    def wvm(s,tag):
        idx=max(i for i,x in enumerate(s.vm) if x==tag); n=len(s.vm)-1-idx
        assert n<=63,n
        s.e(f's_waitcnt vmcnt({n})')
    def ds(s,t,tag=None): s.e(t); s.lg.append(tag)
    def wlg(s,tag):
        idx=max(i for i,x in enumerate(s.lg) if x==tag); n=len(s.lg)-1-idx
        s.e(f's_waitcnt lgkmcnt({min(n,15)})')
    diag=None
    def xs(s,name):
        m=os.environ.get('XS','').split(',')
        if name in m: s.stamp(1+m.index(name),True)
    def stamp(s,i,force=False):
        if s.diag is None: return
        if not force and os.environ.get('XS') and 1<=i<=len(os.environ['XS'].split(',')): return
        s.e('s_memrealtime s[100:101]'); s.e('s_waitcnt lgkmcnt(0)'); s.e(f'v_writelane_b32 v0, s100, {40+i}'); s.nst=max(getattr(s,'nst',0),i+1)
    def end(s,last=None,wsrd=12):
        if s.diag is not None and last is not None:
            s.e('s_waitcnt vmcnt(0)'); s.stamp(last)
            s.e('s_lshl_b32 s62, s2, 2'); s.e('s_add_u32 s62, s62, s3'); s.e('s_lshl_b32 s62, s62, 7'); s.e(f's_add_u32 s62, s62, {0x1f00000+s.diag*131072}')
            s.e('v_subrev_u32 v10, 40, v1'); s.e('v_lshlrev_b32 v10, 3, v10'); s.e('v_mov_b32 v12, v0'); s.e('v_mov_b32 v13, 0'); s.e('s_mov_b32 exec_lo, 0'); s.e('s_mov_b32 exec_hi, 0xffff00')
            s.e(f'buffer_store_dwordx2 v[12:13], v10, s[{wsrd}:{wsrd+3}], s62 offen')
        s.e('s_endpgm')
    def text(s):
        return f'.globl {s.name}\n.p2align 8\n.type {s.name},@function\n{s.name}:\n'+'\n'.join(s.L)+'\n'
    def desc(s):
        acc=(s.nv+3)//4*4
        return f'''.p2align 6
.amdhsa_kernel {s.name}
  .amdhsa_next_free_vgpr {acc+s.na if s.na else s.nv}
  .amdhsa_next_free_sgpr 102
  .amdhsa_accum_offset {acc}
  .amdhsa_group_segment_fixed_size 0
  .amdhsa_kernarg_size 80
  .amdhsa_user_sgpr_count 2
  .amdhsa_user_sgpr_kernarg_segment_ptr 1
  .amdhsa_system_sgpr_workgroup_id_x 1
.end_amdhsa_kernel
'''
def r(p,i,n=1): return f'{p}{i}' if n==1 else f'{p}[{i}:{i+n-1}]'
def v(i,n=1): return r('v',i,n)
def a(i,n=1): return r('a',i,n)
def build(ks,path):
    hdr=open('standalone__dit_block__diffusion.s.ref').read().split('; Override')[0]
    s=hdr
    for k in ks: s+=f"; @launch kernel={k.name} grid=({k.grid},1,1) block=({k.block},1,1) lds={k.lds}\n"
    s+='.amdgcn_target "amdgcn-amd-amdhsa--gfx950"\n.text\n'
    seen=[]
    for k in ks:
        if k.name not in [x.name for x in seen]: seen.append(k)
    for k in seen: s+=k.text()
    s+='.section .rodata,"a"\n'
    for k in seen: s+=k.desc()
    open(path,'w').write(s)
def prologue(k,nwg,ptrs):
    k.e(f's_cmp_ge_u32 s2, {nwg}'); k.e(f's_cbranch_scc1 {k.ln("end")}')
    for n,b,d in ptrs: k.e(f's_load_dwordx2 s[{b}:{b+1}], s[0:1], {KA[n]}')
    k.e('v_lshrrev_b32 v5, 6, v0'); k.e('v_and_b32 v1, 63, v0'); k.e('v_and_b32 v2, 15, v0')
    k.e('v_readfirstlane_b32 s3, v5'); k.e('v_lshrrev_b32 v3, 4, v1'); k.e('v_lshlrev_b32 v4, 4, v1')
    k.e('s_waitcnt lgkmcnt(0)')
    for n,b,d in ptrs: k.srd(d,b,n)
    if k.diag is not None: k.e('v_mov_b32 v247, v0')
    k.stamp(0)
def xred(k,regs,tmp,op):
    for sw in ('v_permlane16_swap_b32','v_permlane32_swap_b32'):
        for x,t in zip(regs,tmp): k.e(f'v_mov_b32 v{t}, v{x}')
        k.e('s_nop 1')
        for x,t in zip(regs,tmp): k.e(f'{sw} v{x}, v{t}')
        k.e('s_nop 1')
        for x,t in zip(regs,tmp): k.e(f'{op} v{x}, v{x}, v{t}')
```

```python
from base import *
import struct
f2=lambda x: hex(struct.unpack('<I',struct.pack('<f',x))[0])
WS_FL=0x8000
XS,WS,OS=8,12,16
W='s[12:15]'
def S(k,expr_list):
    for t in expr_list.split(';'):
        t=t.strip()
        if t: k.e(t)
def dual(k,fn,tag,local):
    if not local: fn(' sc1'); return
    S(k,f's_cmp_eq_u32 s63, 1; s_cbranch_scc1 {k.ln("df"+tag)}'); fn(' sc1'); k.e(f's_branch {k.ln("de"+tag)}')
    k.lab('df'+tag); fn(''); k.lab('de'+tag)
def publish(k,phase,s_grp,s_j,tag):
    k.e('s_waitcnt vmcnt(0)'); k.vm=[]; k.xs('p%d'%phase); k.e('s_barrier')
    S(k,f's_cmp_lg_u32 s3, 0; s_cbranch_scc1 {k.ln("pub"+tag)}; s_lshl_b32 s56, s{s_grp}, 7; s_lshl_b32 s57, s{s_j}, 2; s_add_u32 s56, s56, s57; s_add_u32 s56, s56, {WS_FL+phase*4096}')
    S(k,'v_mov_b32 v10, 0; v_mov_b32 v11, 1; s_mov_b64 exec, 1')
    dual(k,lambda sc: k.e(f'buffer_store_dword v11, v10, {W}, s56 offen{sc}'),'p'+tag,phase>0)
    k.e('s_mov_b64 exec, -1')
    k.lab('pub'+tag)
def poll(k,phase,tag):
    S(k,f's_cmp_lg_u32 s3, 0; s_cbranch_scc1 {k.ln("pd"+tag)}; s_mov_b32 s56, {WS_FL+phase*4096}; s_mov_b32 s57, 0x100000')
    k.lab('pl'+tag)
    S(k,f'buffer_load_dword v11, v10, {W}, s56 offen sc1; s_waitcnt vmcnt(0); v_cmp_ne_u32 vcc, 1, v11; s_sub_u32 s57, s57, 1; s_cbranch_scc1 {k.ln("pd"+tag)}; s_cbranch_vccz {k.ln("pd"+tag)}; s_sleep {2 if phase==0 else 1}; s_branch {k.ln("pl"+tag)}')
    k.lab('pd'+tag); k.e('s_barrier')
def poll8(k,phase,s_grp,tag):
    S(k,f'v_and_b32 v10, 7, v1; v_lshlrev_b32 v10, 2, v10; s_lshl_b32 s58, s{s_grp}, 7; v_add_u32 v10, s58, v10')
    poll(k,phase,tag)
class Loads:
    def __init__(s,k,sreg): s.k=k; s.q=[]; s.sreg=sreg; s.cur=None
    def add(s,dst,sb,off,tag,fl=' sc1'): s.q.append((dst,sb,off,tag,fl))
    def issue(s,n=999):
        while n and s.q:
            dst,sb,off,tag,fl=s.q.pop(0); n-=1
            s.k.e(f's_add_u32 s{s.sreg}, s{sb}, {off}')
            s.k.vmem(f'buffer_load_dwordx4 {dst}, v4, {W}, s{s.sreg} offen{fl}',tag)
X=16; ACC=64; AF=112; MT=144; T=160
def ln_phase(k,xsrd,xsoff,modoff,fl,ld,pre,per):
    S(k,f's_lshl_b32 s50, s3, 10; s_add_u32 s51, s50, 49152; s_mov_b32 m0, s51; s_add_u32 s50, s50, s{modoff}')
    k.vmem(f'buffer_load_dwordx4 v4, {W}, s50 offen sc1 lds','mod')
    S(k,f'v_mul_u32_u24 v6, 768, v2; v_lshl_add_u32 v6, v3, 4, v6; s_mul_i32 s50, s3, {16*768}; s_add_u32 s50, s50, s{xsoff}; s_add_u32 s51, s50, 4096; s_add_u32 s52, s50, 8192')
    for f in range(12):
        if fl: k.vmem(f'buffer_load_dwordx4 {v(X+4*f,4)}, v4, {W}, s{50+f//4} offen offset:{1024*(f%4)}{fl}','x%d'%f)
        else: k.vmem(f'buffer_load_dwordx4 {v(X+4*f,4)}, v6, s[{xsrd}:{xsrd+3}], s50 offen offset:{64*f}','x%d'%f)
    ld.issue(pre)
    k.e('s_mov_b32 s55, 0x3f803f80')
    for i in range(8): k.e(f'v_mov_b32 v{T+i}, 0')
    S(k,'v_lshlrev_b32 v7, 5, v3; v_add_u32 v7, 49152, v7; s_mul_i32 s50, s3, 12288; v_add_u32 v8, s50, v4')
    for f in range(12):
        if f%4==0: k.wvm('x%d'%(f+3))
        if f==0: k.xs('l1')
        for p in range(4):
            k.e(f'v_dot2c_f32_bf16 v{T+p}, s55, v{X+4*f+p}'); k.e(f'v_dot2c_f32_bf16 v{T+4+p}, v{X+4*f+p}, v{X+4*f+p}')
    k.xs('l2'); k.e('s_barrier')
    def rdmod(f):
        o=MT+(f&1)*16+32
        for q in range(4): k.ds(f'ds_read_b128 {v(o+4*q,4)}, v7 offset:{f*128+(q&1)*16+(q>>1)*1536}',f'm{f}')
    rdmod(0); ld.issue(per); stage_setup(k)
    S(k,f'v_add_f32 v{T}, v{T}, v{T+1}; v_add_f32 v{T+2}, v{T+2}, v{T+3}; v_add_f32 v{T+4}, v{T+4}, v{T+5}; v_add_f32 v{T+6}, v{T+6}, v{T+7}; v_add_f32 v{T}, v{T}, v{T+2}; v_add_f32 v{T+1}, v{T+4}, v{T+6}')
    xred(k,[T,T+1],[T+2,T+3],'v_add_f32')
    S(k,f'v_mul_f32 v{T}, 0x3b2aaaab, v{T}; v_mul_f32 v{T+1}, 0x3b2aaaab, v{T+1}; v_fma_f32 v{T+1}, -v{T}, v{T}, v{T+1}; v_max_f32 v{T+1}, 0, v{T+1}; v_add_f32 v{T+1}, 0x3727c5ac, v{T+1}')
    S(k,f'v_rsq_f32 v{T+2}, v{T+1}; s_nop 0; v_mul_f32 v{T+4}, v{T}, v{T+2}; v_sub_f32 v{T+4}, 0, v{T+4}')
    k.xs('l3')
    for f in range(12):
        if f<11: rdmod(f+1)
        ld.issue(per)
        o=MT+(f&1)*16+32; t=MT+(f&1)*8
        for p in range(4):
            k.e(f'v_lshlrev_b32 v{t+2*p}, 16, v{X+4*f+p}'); k.e(f'v_and_b32 v{t+2*p+1}, 0xffff0000, v{X+4*f+p}')
        for p in range(4): k.e(f'v_pk_fma_f32 {v(t+2*p,2)}, {v(t+2*p,2)}, {v(T+2,2)}, {v(T+4,2)} op_sel_hi:[1,0,0]')
        k.wlg(f'm{f}')
        for p in range(4): k.e(f'v_pk_fma_f32 {v(t+2*p,2)}, {v(t+2*p,2)}, {v(o+8+2*p,2)}, {v(o+2*p,2)}')
        for p in range(4): k.e(f'v_cvt_pk_bf16_f32 v{X+4*f+p}, v{t+2*p}, v{t+2*p+1}')
        k.ds(f'ds_write_b128 v8, {v(X+4*f,4)} offset:{f*1024}','w')
    ld.issue()
    k.e('s_waitcnt lgkmcnt(0)'); k.e('s_barrier'); k.lg=[]
def gemm(k,trans,epi=None,ld=None):
    seq=[(rt,kb) for rt in range(4) for kb in range(12)]
    def rd(n):
        rt,kb=seq[n]; k.ds(f'ds_read_b128 {v(AF+(n%8)*4,4)}, v4 offset:{(rt*12+kb)*1024}',f'a{n}')
    for n in range(6): rd(n)
    pend=[]
    for n,(rt,kb) in enumerate(seq):
        if n+6<48: rd(n+6)
        if kb==3 and rt>0 and epi: pend=epi(rt-1); per=-(-len(pend)//27)
        k.wlg(f'a{n}')
        for ct in range(3):
            A=v(AF+(n%8)*4,4); B=a((kb*3+ct)*4,4); D=v(ACC+(rt*3+ct)*4,4); C=D if kb else '0'
            k.e(f'v_mfma_f32_16x16x32_bf16 {D}, {B}, {A}, {C}' if trans else f'v_mfma_f32_16x16x32_bf16 {D}, {A}, {B}, {C}')
            for _ in range(per if pend else 0):
                if pend:
                    t=pend.pop(0)
                    k.ds(t,'e') if t.startswith('ds_') else k.e(t)
        if ld and n%4!=3: ld.issue(1)
    assert not pend
    k.e('s_nop 7')
    if epi:
        for t in epi(3): k.e(t)
def epi_list(act):
    def f(rt):
        kk=K('tmp',0,0,0,0,0)
        if act:
            x=ACC+rt*12
            for i in range(12): kk.e(f'v_fma_f32 v{x+i}, v{x+i}, v{220+rt}, v{208+i}')
            for op in ('v_mul_f32 v{t}, v{x}, v{x}','v_fma_f32 v{t}, v{t}, s61, v%d'%(T+12),'v_mul_f32 v{t}, v{t}, v{x}','v_exp_f32 v{t}, v{t}','v_add_f32 v{t}, 1.0, v{t}','v_rcp_f32 v{t}, v{t}','v_mul_f32 v{x}, v{x}, v{t}'):
                for i in range(12): kk.e(op.format(t=T+i,x=x+i))
        for ct in range(3): stage_put(kk,ACC+(rt*3+ct)*4,rt,ct)
        return [t.strip() for t in kk.L]
    return f
def gelu4(k,x,t):
    for op in ('v_mul_f32 v{t}, v{x}, v{x}','v_fma_f32 v{t}, v{t}, s61, v%d'%(T+12),'v_mul_f32 v{t}, v{t}, v{x}','v_exp_f32 v{t}, v{t}','v_add_f32 v{t}, 1.0, v{t}','v_rcp_f32 v{t}, v{t}','v_mul_f32 v{x}, v{x}, v{t}'):
        for i in range(4): k.e(op.format(t=t+i,x=x+i))
STG=65536
def stage_setup(k):
    k.e('s_mul_i32 s56, s3, 3')
    for ct in range(3):
        S(k,f's_add_u32 s57, s56, {ct}; s_lshr_b32 s58, s57, 1; s_lshl_b32 s58, s58, 10; s_and_b32 s57, s57, 1; s_lshl_b32 s57, s57, 3; s_add_u32 s58, s58, s57; s_add_u32 s58, s58, {STG}; v_add_u32 v{12+ct}, s58, v4')
    S(k,f's_mul_i32 s58, s3, 6144; s_add_u32 s58, s58, {STG}; v_add_u32 v15, s58, v4')
def stage_put(k,x,rt,ct):
    k.e(f'v_cvt_pk_bf16_f32 v{x}, v{x}, v{x+1}'); k.e(f'v_cvt_pk_bf16_f32 v{x+1}, v{x+2}, v{x+3}')
    k.e(f'ds_write_b64 v{12+ct}, {v(x,2)} offset:{rt*6144}')
def stage_out(k,sbase,rtstride,R,tag=None):
    S(k,f's_mul_i32 s52, s3, {rtstride}; s_add_u32 s52, s52, s{sbase}; s_add_u32 s53, s52, 4096; s_waitcnt lgkmcnt(0); s_barrier')
    for f in range(6): k.e(f'ds_read_b128 {v(R+4*f,4)}, v15 offset:{f*1024}')
    def st(sc):
        for f in range(6):
            k.e(f's_waitcnt lgkmcnt({5-f})')
            k.e(f'buffer_store_dwordx4 {v(R+4*f,4)}, v4, {W}, s{52+f//4} offen offset:{(f%4)*1024}{sc}')
    dual(k,st,'s%s'%tag,tag is not None)
def epi_half(k,sbase,rtstride,act,tag=None):
    for rt in range(4):
        for ct in range(3):
            x=ACC+(rt*3+ct)*4
            if act: gelu4(k,x,T+(ct&1)*4)
            stage_put(k,x,rt,ct)
    if act: k.xs('g1')
    stage_out(k,sbase,rtstride,AF,tag)
    if act: k.xs('g2')
def epi_loads(k,rsrd,s_res,s_gate,dst,fl):
    S(k,'v_mul_u32_u24 v6, 768, v2; v_lshl_add_u32 v6, v3, 3, v6; v_lshlrev_b32 v7, 4, v3')
    S(k,'v_lshrrev_b32 v12, 1, v3; v_lshlrev_b32 v12, 8, v12; v_lshl_add_u32 v12, v2, 4, v12; v_and_b32 v13, 1, v3; v_lshl_add_u32 v12, v13, 3, v12')
    for i in range(3): k.vmem(f'buffer_load_dwordx2 {dst(2*i,2)}, v12, s[{rsrd}:{rsrd+3}], s{s_res} offen offset:{512*i}{fl}','epi')
    for i in range(3): k.vmem(f'buffer_load_dwordx4 {dst(8+4*i,4)}, v7, {W}, s{s_gate} offen offset:{64*i} sc1','epi')
def reduce_epi(k,AC,osrd,s_out,E,T,sc):
    S(k,'s_mul_i32 s50, s3, 12288; v_add_u32 v8, s50, v4; s_mul_i32 s50, s3, 3072; v_add_u32 v9, s50, v4; s_nop 4')
    for t in range(12): k.e(f'ds_write_b128 v8, {v(AC+4*t,4)} offset:{t*1024}')
    k.e('s_waitcnt lgkmcnt(0)'); k.e('s_barrier')
    for i in range(3):
        for w in range(4): k.e(f'ds_read_b128 {v(T+(i*4+w)*4,4)}, v9 offset:{w*12288+i*1024}')
    for i in range(3):
        b=T+i*16; x=E+2*i; g=E+8+4*i; t=T+48
        S(k,f'v_lshlrev_b32 v{t}, 16, v{x}; v_and_b32 v{t+1}, 0xffff0000, v{x}; v_lshlrev_b32 v{t+2}, 16, v{x+1}; v_and_b32 v{t+3}, 0xffff0000, v{x+1}; s_waitcnt lgkmcnt({8-4*i})')
        for h in range(4): k.e(f'v_add_f32 v{b+h}, v{b+h}, v{b+4+h}'); k.e(f'v_add_f32 v{b+8+h}, v{b+8+h}, v{b+12+h}')
        for h in range(4): k.e(f'v_add_f32 v{b+h}, v{b+h}, v{b+8+h}')
        for h in range(4): k.e(f'v_fma_f32 v{b+h}, v{b+h}, v{g+h}, v{t+h}')
        k.e(f'v_cvt_pk_bf16_f32 v{b}, v{b}, v{b+1}'); k.e(f'v_cvt_pk_bf16_f32 v{b+1}, v{b+2}, v{b+3}')
        k.vmem(f'buffer_store_dwordx2 {v(b,2)}, v6, s[{osrd}:{osrd+3}], s{s_out} offen offset:{32*i}{sc}')
def wo_reg(i): return a(192+4*i,4) if i<16 else v(248+4*(i-16),4)
def w2_reg(i): return a(144+4*i,4) if i<28 else v(224+4*(i-28),4)

D='s[96:99]'
def ticket(k,tag):
    S(k,f's_cmp_lg_u32 s3, 0; s_cbranch_scc1 {k.ln("tk"+tag)}; s_lshl_b32 s56, s33, 2; v_mov_b32 v5, 1; v_mov_b32 v10, 0; s_mov_b64 exec, 1; buffer_atomic_add v5, v10, {D}, s56 offen sc0 sc1; s_mov_b64 exec, -1')
    k.lab('tk'+tag)
def roles(k):
    S(k,f's_cmp_lg_u32 s3, 0; s_cbranch_scc1 {k.ln("r1")}; v_readfirstlane_b32 s26, v5; s_mov_b32 s25, s33; s_mov_b32 s27, 1; s_cmp_lt_u32 s26, 32; s_cbranch_scc1 {k.ln("r0")}')
    S(k,'v_and_b32 v10, 7, v1; v_lshlrev_b32 v10, 2, v10; s_mov_b32 s57, 0x100000')
    k.lab('rl')
    S(k,f'buffer_load_dword v11, v10, {D}, 0 offen sc1; s_waitcnt vmcnt(0); s_mov_b32 s28, 0')
    for x in range(8): S(k,f'v_readlane_b32 s{40+x}, v11, {x}; s_nop 0; s_add_u32 s28, s28, s{40+x}')
    S(k,f's_sub_u32 s57, s57, 1; s_cbranch_scc1 {k.ln("rg")}; s_cmp_lt_u32 s28, 256; s_cbranch_scc1 {k.ln("rl")}')
    k.lab('rg')
    k.e('s_sub_u32 s26, s26, 32')
    for x in range(8): S(k,f's_max_u32 s28, s{40+x}, 32; s_sub_u32 s28, s28, 32; s_cmp_lt_u32 {x}, s33; s_cselect_b32 s28, s28, 0; s_add_u32 s26, s26, s28')
    k.e('s_mov_b32 s27, 0')
    for x in range(8):
        S(k,f's_min_u32 s28, s{40+x}, 32; s_sub_u32 s29, 32, s28; s_mov_b32 s25, {x}; s_cmp_lt_u32 s26, s29; s_cselect_b32 s28, s28, 0; s_cbranch_scc1 {k.ln("rf")}; s_sub_u32 s26, s26, s29')
    k.lab('rf'); S(k,'s_add_u32 s26, s26, s28; s_and_b32 s26, s26, 31')
    k.lab('r0')
    S(k,f'v_mov_b32 v10, s25; v_mov_b32 v11, s26; v_mov_b32 v12, s27; v_mov_b32 v13, {STG+24576}; ds_write_b96 v13, v[10:12]; s_waitcnt lgkmcnt(0)')
    k.lab('r1')
    S(k,f's_barrier; v_mov_b32 v13, {STG+24576}; ds_read_b96 v[10:12], v13; s_waitcnt lgkmcnt(0); v_readfirstlane_b32 s25, v10; v_readfirstlane_b32 s26, v11; v_readfirstlane_b32 s63, v12')
```

```python
from mega import *
from start import *
MAP2=int(os.environ.get('MAP2','1'))
WBL2=int(os.environ.get('WBL2','0'))
def attn_phase(k,ld):
    Sx=16; O=80; QF=128; T=160
    S(k,f's_lshl_b32 s25, s22, 6; s_lshl_b32 s26, s24, 2; s_add_u32 s26, s26, s25; s_add_u32 s26, s26, s3; s_mul_i32 s26, s26, 6144; s_add_u32 s26, s26, {WS_Q}')
    S(k,f's_lshl_b32 s29, s23, 4; s_add_u32 s29, s29, s25; s_lshl_b32 s27, s3, 2; s_add_u32 s29, s29, s27; s_mul_i32 s29, s29, 6144; s_add_u32 s29, s29, {WS_K}')
    S(k,f's_lshl_b32 s34, s22, 5; s_lshl_b32 s27, s23, 3; s_add_u32 s34, s34, s27; s_mul_i32 s34, s34, 12288; s_mul_i32 s27, s3, 3072; s_add_u32 s34, s34, s27; s_add_u32 s34, s34, {WS_V}')
    S(k,'s_lshr_b32 s40, s22, 1; s_lshl_b32 s40, s40, 4; s_and_b32 s41, s22, 1; s_lshl_b32 s42, s23, 2; s_add_u32 s42, s42, s40; s_add_u32 s43, s40, s24')
    S(k,'v_and_b32 v10, 3, v1; v_add_u32 v10, s42, v10; v_lshlrev_b32 v10, 7, v10; v_lshrrev_b32 v11, 2, v1; v_lshl_add_u32 v10, v11, 3, v10; s_lshl_b32 s44, s41, 2; s_add_u32 s45, s44, 8; v_add_u32 v10, s45, v10')
    S(k,'s_lshl_b32 s45, s43, 7; s_add_u32 s45, s45, s44; v_mov_b32 v11, s45; v_cmp_gt_u32 vcc, 8, v1; s_nop 1; v_cndmask_b32 v10, v11, v10, vcc')
    S(k,'s_mul_i32 s27, s3, 6144; s_mov_b32 m0, s27; s_add_u32 s28, s26, 4096')
    poll(k,0,'a'); k.stamp(5)
    for i in range(4): k.vmem(f'buffer_load_dwordx4 v4, {W}, s26 offen offset:{i*1024} sc1 lds','q')
    S(k,'s_add_u32 s27, s27, 4096; s_mov_b32 m0, s27; s_nop 0')
    for i in range(2): k.vmem(f'buffer_load_dwordx4 v4, {W}, s28 offen offset:{i*1024} sc1 lds','q')
    k.e('v_mov_b32 v9, 132'); k.vmem('buffer_load_dwordx2 v[6:7], v9, s[96:99], 0 offen sc1','hd')
    for kb in range(6):
        for kt in range(4): ld.add(a((kb*4+kt)*4,4),29,kt*6144+kb*1024,f'K{kb}',' sc1')
    for j in range(8):
        for i in range(3): ld.add(a(96+(j*3+i)*4,4),34,j*12288+i*1024,f'V{j}',' sc1')
    ld.issue(24)
    k.wvm('q'); k.e('s_barrier')
    def rdq(kb):
        for qt in range(4): k.ds(f'ds_read_b128 {v(QF+(kb&1)*16+4*qt,4)}, v4 offset:{(qt*6+kb)*1024}',f'q{kb}_{qt}')
    rdq(0)
    for kb in range(6):
        if kb<5: rdq(kb+1)
        k.wvm(f'K{kb}')
        for qt in range(4):
            k.wlg(f'q{kb}_{qt}')
            for kt in range(4):
                Dd=v(Sx+(qt*4+kt)*4,4)
                k.e(f'v_mfma_f32_16x16x32_bf16 {Dd}, {a((kb*4+kt)*4,4)}, {v(QF+(kb&1)*16+4*qt,4)}, {Dd if kb else 0}')
            ld.issue(1)
    k.stamp(6)
    k.e('s_mov_b32 s57, 0x100000'); k.lab('hl')
    S(k,f'v_readfirstlane_b32 s56, v6; v_readfirstlane_b32 s58, v7; s_add_u32 s56, s56, s58; s_cmp_eq_u32 s56, 9; s_cbranch_scc1 {k.ln("hk")}; s_sub_u32 s57, s57, 1; s_cbranch_scc1 {k.ln("hk")}; s_sleep 2; buffer_load_dwordx2 v[6:7], v9, s[96:99], 0 offen sc1; s_waitcnt vmcnt(0); s_branch {k.ln("hl")}')
    k.lab('hk')
    S(k,f's_lshr_b32 s56, s20, 4; s_mul_i32 s56, s56, 9216; s_lshl_b32 s57, s3, 10; s_add_u32 s56, s56, s57; s_add_u32 s56, s56, {1152*4}; s_add_u32 m0, s57, 92160; s_nop 0')
    k.vmem(f'buffer_load_dwordx4 v4, {W}, s56 offen sc1 lds','mod')
    for kb in range(3):
        for ct in range(6): ld.add(wo_reg(kb*6+ct),35,ct*12288+kb*1024,'wo')
    S(k,'s_lshl_b32 s56, s33, 2; v_mov_b32 v5, 0'); k.vmem(f'buffer_load_dword v5, v5, s[96:99], s56 offen sc1','cnt')
    for kb in range(8):
        for ct in range(3): ld.add(a((kb*3+ct)*4,4),38,(ct*12+kb)*1024,'w1')
    k.e(f's_mov_b32 s40, {f2(192**-0.5*1.4426950408889634)}')
    S(k,'s_lshl_b32 s41, s3, 8; v_lshlrev_b32 v6, 4, v2; v_add_u32 v6, 57344, v6; v_add_u32 v7, s41, v6; s_mul_i32 s42, s3, 8192; s_add_u32 s42, s42, 24576; v_add_u32 v8, s42, v4; s_nop 4')
    for qt in range(4):
        b=Sx+qt*16
        k.e(f'v_max3_f32 v{T+qt}, v{b}, v{b+1}, v{b+2}')
        for i in range(3,15,2): k.e(f'v_max3_f32 v{T+qt}, v{T+qt}, v{b+i}, v{b+i+1}')
        k.e(f'v_max_f32 v{T+qt}, v{T+qt}, v{b+15}')
    xred(k,[T,T+1,T+2,T+3],[T+4,T+5,T+6,T+7],'v_max_f32')
    k.e(f'ds_write_b128 v7, {v(T,4)}'); ld.issue(1); k.e('s_waitcnt lgkmcnt(0)'); k.e('s_barrier')
    for w in range(4): k.e(f'ds_read_b128 {v(T+8+4*w,4)}, v6 offset:{w*256}')
    ld.issue(1)
    for i in range(4): k.e(f'v_mov_b32 v{T+4+i}, 0x3f803f80')
    S(k,'s_lshl_b32 s42, s3, 10; v_add_u32 v9, s42, v4; s_waitcnt lgkmcnt(0)')
    for qt in range(4):
        S(k,f'v_max3_f32 v{T+qt}, v{T+8+qt}, v{T+12+qt}, v{T+16+qt}; v_max_f32 v{T+qt}, v{T+qt}, v{T+20+qt}; v_mul_f32 v{T+qt}, s40, v{T+qt}; v_ceil_f32 v{T+qt}, v{T+qt}')
    for qt in range(4):
        b=Sx+qt*16
        for hh in range(2):
            for i in range(8*hh,8*hh+8): k.e(f'v_fma_f32 v{b+i}, v{b+i}, s40, -v{T+qt}')
            ld.issue(1)
            for i in range(8*hh,8*hh+8): k.e(f'v_exp_f32 v{b+i}, v{b+i}')
            ld.issue(1)
            for i in range(4*hh,4*hh+4): k.e(f'v_cvt_pk_bf16_f32 v{b+i}, v{b+2*i}, v{b+2*i+1}')
            k.e(f'ds_write_b128 v8, {v(b+4*hh,4)} offset:{(hh*4+qt)*1024}')
    k.e('s_waitcnt lgkmcnt(0)'); k.e('s_barrier'); k.lg=[]
    k.stamp(7)
    LA=T+8; PW=T+16
    def rdp(j):
        for qt in range(4): k.ds(f'ds_read_b128 {v(QF+(j&1)*16+4*qt,4)}, v4 offset:{24576+(j*4+qt)*1024}',f'p{j}_{qt}')
        k.ds(f'ds_read_b128 {v(PW+(j&1)*4,4)}, v9 offset:{24576+j*4096}',f'pw{j}')
    rdp(0)
    for j in range(8):
        if j<7: rdp(j+1)
        k.wvm(f'V{j}')
        for qt in range(4):
            k.wlg(f'p{j}_{qt}')
            for i in range(3):
                D=v(O+(qt*3+i)*4,4)
                k.e(f'v_mfma_f32_16x16x32_bf16 {D}, {a(96+(j*3+i)*4,4)}, {v(QF+(j&1)*16+4*qt,4)}, {D if j else 0}')
            ld.issue(1)
        k.wlg(f'pw{j}')
        k.e(f'v_mfma_f32_16x16x32_bf16 {v(LA,4)}, {v(T+4,4)}, {v(PW+(j&1)*4,4)}, {v(LA,4) if j else 0}')
        if j==2:
            S(k,'s_lshr_b32 s26, s22, 1; s_lshl_b32 s26, s26, 6; s_lshl_b32 s27, s24, 2; s_add_u32 s26, s26, s27')
            S(k,f's_lshl_b32 s27, s20, 2; s_add_u32 s27, s27, s23; s_mul_i32 s27, s27, 49152; s_add_u32 s27, s27, {WS_OP}')
            S(k,'s_and_b32 s28, s22, 1; s_mul_i32 s29, s28, 6144; s_add_u32 s32, s29, s27')
            stage_setup(k)
        if j==3:
            k.wvm('cnt'); S(k,'v_readfirstlane_b32 s56, v5; s_cmp_ge_u32 s56, 32; s_cselect_b32 s63, s63, 0')
            k.e(f'v_mov_b32 v{T+12}, v{T}')
            for qt in range(1,4): S(k,f's_cmp_eq_u32 s3, {qt}; s_cselect_b64 vcc, -1, 0; v_cndmask_b32 v{T+12}, v{T+12}, v{T+qt}, vcc')
            S(k,f's_lshl_b32 s27, s23, 1; s_add_u32 s27, s27, s28; s_lshl_b32 s27, s27, 14; s_add_u32 s26, s26, s3; s_lshl_b32 s26, s26, 7; s_add_u32 s27, s27, s26; s_add_u32 s27, s27, {WS_ML}; v_lshlrev_b32 v10, 3, v1')
    assert not ld.q
    k.e('s_nop 4'); k.stamp(8)
    for qt in range(4):
        for i in range(3): stage_put(k,O+(qt*3+i)*4,qt,i)
    S(k,f'v_mov_b32 v{T+13}, v{LA}; s_mov_b64 exec, 0xffff')
    dual(k,lambda sc: k.e(f'buffer_store_dwordx2 {v(T+12,2)}, v10, {W}, s27 offen{sc}'),'ml',True)
    k.e('s_mov_b64 exec, -1')
    stage_out(k,32,12288,QF,'a')
    S(k,'s_lshl_b32 s44, s28, 2; s_add_u32 s44, s44, s23')
    publish(k,1,43,44,'a')
def wo_phase(k,ld):
    AC=16; OPR=64; Wt=160; T=184; E=200
    S(k,'s_lshr_b32 s40, s3, 1; s_min_u32 s41, s3, 2; s_mul_i32 s48, s37, 3; s_add_u32 s48, s48, s41')
    S(k,f's_mul_i32 s47, s36, {32*768}; s_lshl_b32 s25, s48, 10; s_add_u32 s25, s25, s47; s_add_u32 s25, s25, {WS_X1}; s_add_u32 s31, s25, 12288; s_lshl_b32 s49, s48, 6; s_add_u32 s47, s47, s49; s_add_u32 s49, s47, 12288')
    S(k,f's_lshr_b32 s26, s36, 5; s_mul_i32 s26, s26, 9216; s_lshl_b32 s27, s48, 7; s_add_u32 s26, s26, s27; s_add_u32 s26, s26, {768*4}')
    S(k,'v_mul_u32_u24 v6, 768, v2; v_lshl_add_u32 v6, v3, 4, v6; v_lshlrev_b32 v7, 5, v3')
    k.vmem(f'buffer_load_dwordx4 {v(E,4)}, v6, s[8:11], s47 offen','epi'); k.vmem(f'buffer_load_dwordx4 {v(E+4,4)}, v6, s[8:11], s49 offen','epi')
    k.vmem(f'buffer_load_dwordx4 {v(E+8,4)}, v7, {W}, s26 offen sc1','epi'); k.vmem(f'buffer_load_dwordx4 {v(E+12,4)}, v7, {W}, s26 offen offset:16 sc1','epi')
    S(k,f's_lshl_b32 s27, s40, 14; s_lshl_b32 s28, s36, 8; s_add_u32 s27, s27, s28; s_add_u32 s27, s27, {WS_ML}; v_lshlrev_b32 v12, 3, v2')
    S(k,f's_mul_i32 s28, s3, 3072; s_mul_i32 s29, s20, 196608; s_add_u32 s29, s29, s28; s_and_b32 s28, s36, 1; s_mul_i32 s28, s28, 24576; s_add_u32 s29, s29, s28; s_add_u32 s29, s29, {WS_OP}; s_lshr_b32 s30, s36, 1')
    for kb in range(8,12):
        for ct in range(3): ld.add(a((kb*3+ct)*4,4),38,(ct*12+kb)*1024,'w1')
    ld.issue()
    S(k,'v_lshlrev_b32 v13, 5, v3; v_add_u32 v13, 92160, v13')
    for f in range(12):
        for q in range(2): k.e(f'ds_read_b128 {v(64+8*f+4*q,4)}, v13 offset:{f*128+q*16}')
    k.e('s_waitcnt lgkmcnt(0)')
    for f in range(12):
        for p in range(4): k.e(f'v_cvt_pk_bf16_f32 v{16+4*f+p}, v{64+8*f+2*p}, v{64+8*f+2*p+1}')
    for f in range(12):
        if f==8: k.wvm('w1')
        for ct in range(3): k.e(f'v_mfma_f32_16x16x32_bf16 {a(144+4*ct,4)}, {a((f*3+ct)*4,4)}, {v(16+4*f,4)}, {a(144+4*ct,4) if f else 0}')
    poll8(k,1,30,'w'); k.stamp(9)
    for s in range(4):
        for rt in range(2): k.vmem(f'buffer_load_dwordx2 {v(Wt+(rt*4+s)*2,2)}, v12, {W}, s27 offen offset:{rt*128} sc1','ml')
        k.e('s_add_u32 s27, s27, 32768')
    for kb in range(3):
        for rt in range(2):
            for s in range(4): ld.add(v(OPR+((kb*2+rt)*4+s)*4,4),29,s*49152+rt*12288+kb*1024,f'o{kb}_{rt}',' sc1')
    ld.issue(16)
    k.xs('w0'); k.wvm('ml'); k.xs('w1')
    for rt in range(2):
        b=Wt+rt*8
        S(k,f'v_max3_f32 v{T}, v{b}, v{b+2}, v{b+4}; v_max_f32 v{T}, v{T}, v{b+6}')
        for s in range(4): k.e(f'v_sub_f32 v{b+2*s}, v{b+2*s}, v{T}')
        for s in range(4): k.e(f'v_exp_f32 v{b+2*s}, v{b+2*s}')
        k.e('s_nop 0')
        S(k,f'v_mul_f32 v{T}, v{b}, v{b+1}; v_mul_f32 v{T+1}, v{b+2}, v{b+3}; v_fmac_f32 v{T}, v{b+4}, v{b+5}; v_fmac_f32 v{T+1}, v{b+6}, v{b+7}; v_add_f32 v{T}, v{T}, v{T+1}; v_rcp_f32 v{T}, v{T}; s_nop 0')
        k.e(f'v_mov_b32 v{176+rt}, v{T}')
        for s in range(4): S(k,f'v_and_b32 v{b+2*s+1}, 0xffff0000, v{b+2*s}; v_lshrrev_b32 v{b+2*s}, 16, v{b+2*s}')
    for kb in range(3):
        for rt in range(2):
            k.wvm(f'o{kb}_{rt}')
            if rt==0: k.xs('o%d'%kb)
            o=OPR+(kb*2+rt)*16
            for s in range(4):
                for p in range(8):
                    k.e(f'v_dot2_f32_bf16 v{T+p}, v{o+4*s+p//2}, v{Wt+rt*8+2*s+(p&1)}, '+('0' if s==0 else f'v{T+p}'))
                ld.issue(1)
            k.e('s_nop 2')
            for p in range(8): k.e(f'v_mul_f32 v{T+p}, v{T+p}, v{176+rt}')
            for p in range(4): k.e(f'v_cvt_pk_bf16_f32 v{o+p}, v{T+2*p}, v{T+2*p+1}')
            k.e('s_nop 1')
            for ct in range(6):
                D=v(AC+(rt*6+ct)*4,4)
                k.e(f'v_mfma_f32_16x16x32_bf16 {D}, {wo_reg(kb*6+ct)}, {v(o,4)}, {D if kb else 0}')
    k.stamp(10)
    S(k,'s_mul_i32 s50, s3, 12288; v_add_u32 v8, s50, v4; s_lshl_b32 s50, s41, 11; v_lshrrev_b32 v9, 1, v3; v_lshlrev_b32 v9, 10, v9; v_and_b32 v13, 1, v3; v_lshl_add_u32 v9, v13, 9, v9; v_lshl_add_u32 v9, v2, 4, v9; v_add_u32 v9, s50, v9')
    for t in range(12): k.e(f'ds_write_b128 v8, {v(AC+4*t,4)} offset:{t*1024}')
    S(k,f's_waitcnt lgkmcnt(0); s_barrier; s_cmp_eq_u32 s3, 3; s_cbranch_scc1 {k.ln("wo3")}')
    for rt in range(2):
        for w in range(4):
            for e in range(2): k.e(f'ds_read_b128 {v(64+rt*32+w*8+e*4,4)}, v9 offset:{w*12288+rt*6144+e*256}')
    for rt in range(2):
        b=64+rt*32; t=128
        for p in range(4): S(k,f'v_lshlrev_b32 v{t+2*p}, 16, v{E+4*rt+p}; v_and_b32 v{t+2*p+1}, 0xffff0000, v{E+4*rt+p}')
        k.e(f's_waitcnt lgkmcnt({8-8*rt})')
        for h in range(8): S(k,f'v_add_f32 v{b+h}, v{b+h}, v{b+8+h}; v_add_f32 v{b+16+h}, v{b+16+h}, v{b+24+h}')
        for h in range(8): k.e(f'v_add_f32 v{b+h}, v{b+h}, v{b+16+h}')
        for h in range(8): k.e(f'v_fma_f32 v{b+h}, v{b+h}, v{E+8+h}, v{t+h}')
        for p in range(4): k.e(f'v_cvt_pk_bf16_f32 v{b+p}, v{b+2*p}, v{b+2*p+1}')
        dual(k,lambda sc: k.e(f'buffer_store_dwordx4 {v(b,4)}, v4, {W}, s{31 if rt else 25} offen{sc}'),f'x{rt}',True)
    k.lab('wo3')
    S(k,'s_and_b32 s44, s36, 1; s_lshl_b32 s44, s44, 2; s_add_u32 s44, s44, s37')
    publish(k,2,30,44,'w')
def ln2(k):
    SC=112; BI=208; RS=220; T2=64
    S(k,'v_lshlrev_b32 v7, 5, v3; v_add_u32 v7, 92160, v7; s_mul_i32 s50, s3, 12288; v_add_u32 v8, s50, v4; s_add_u32 s50, s50, s46; s_add_u32 s51, s50, 4096; s_add_u32 s52, s50, 8192')
    for f in range(12):
        for q in range(2): k.e(f'ds_read_b128 {v(SC+8*f+4*q,4)}, v7 offset:{1536+f*128+q*16}')
    for i in range(12): k.e(f'v_accvgpr_read_b32 v{BI+i}, a{144+i}')
    stage_setup(k)
    S(k,'s_mov_b32 s55, 0x3f803f80; v_mov_b32 v5, 0x3f80; v_mov_b32 v6, 0x3f800000; s_lshl_b32 s56, s3, 6; s_add_u32 s56, s56, 53248; v_lshlrev_b32 v9, 2, v2; v_add_u32 v7, s56, v9; v_add_u32 v9, 53248, v9')
    for i in range(8): k.e(f'v_mov_b32 v{T2+i}, 0')
    k.e('s_waitcnt lgkmcnt(0)')
    poll8(k,2,20,'f'); k.stamp(11)
    for f in range(12): k.vmem(f'buffer_load_dwordx4 {v(X+4*f,4)}, v4, {W}, s{50+f//4} offen offset:{1024*(f%4)} sc1','x%d'%f)
    for f in range(12):
        if f%2==0: k.wvm('x%d'%(f+1))
        for p in range(4): k.e(f'v_dot2c_f32_bf16 v{T2+p}, s55, v{X+4*f+p}'); k.e(f'v_dot2c_f32_bf16 v{T2+4+p}, v{X+4*f+p}, v{X+4*f+p}')
    t=T2
    S(k,f's_nop 2; v_add_f32 v{t}, v{t}, v{t+1}; v_add_f32 v{t+2}, v{t+2}, v{t+3}; v_add_f32 v{t+4}, v{t+4}, v{t+5}; v_add_f32 v{t+6}, v{t+6}, v{t+7}; v_add_f32 v{t}, v{t}, v{t+2}; v_add_f32 v{t+1}, v{t+4}, v{t+6}')
    xred(k,[t,t+1],[t+2,t+3],'v_add_f32')
    S(k,f'v_mul_f32 v{t}, 0xbb2aaaab, v{t}; v_mul_f32 v{t+1}, 0x3b2aaaab, v{t+1}; v_fma_f32 v{t+1}, -v{t}, v{t}, v{t+1}; v_max_f32 v{t+1}, 0, v{t+1}; v_add_f32 v{t+1}, 0x3727c5ac, v{t+1}; v_rsq_f32 v{t+2}, v{t+1}')
    def ctr(f):
        for p in range(8): k.e(f'v_dot2_f32_bf16 v{T2+8+(f&1)*8+p}, v{X+4*f+p//2}, v{5+(p&1)}, v{t}')
    ctr(0); k.e(f'ds_write_b32 v7, v{t+2}')
    for f in range(12):
        if f<11: ctr(f+1)
        else: k.e('s_nop 2')
        c=T2+8+(f&1)*8
        for p in range(8): k.e(f'v_mul_f32 v{c+p}, v{c+p}, v{SC+8*f+p}')
        for p in range(4): k.e(f'v_cvt_pk_bf16_f32 v{X+4*f+p}, v{c+2*p}, v{c+2*p+1}')
        k.e(f'ds_write_b128 v8, {v(X+4*f,4)} offset:{f*1024}')
    S(k,'s_waitcnt lgkmcnt(0); s_barrier'); k.lg=[]
    for rt in range(4): k.ds(f'ds_read_b32 v{RS+rt}, v9 offset:{64*rt}','rs')
    k.stamp(12)
def k_mega():
    k=K('mega_kernel',256,256,152064,256,256)
    S(k,f's_load_dwordx2 s[84:85], s[0:1], {KA["wo"]}; s_load_dwordx4 s[88:91], s[0:1], {KA["w1"]}; s_load_dwordx2 s[36:37], s[0:1], {KA["c"]}; s_load_dwordx2 s[92:93], s[0:1], {KA["wmod"]}')
    prologue(k,256,[('x',4,XS),('ws',6,WS),('out',60,OS),('dbg',58,96),('wqkv',80,80)])
    ld=Loads(k,59)
    S(k,'s_getreg_b32 s33, hwreg(HW_REG_XCC_ID, 0, 3)')
    S(k,f's_cmp_lg_u32 s3, 3; s_cbranch_scc1 {k.ln("nocode")}; s_getpc_b64 s[40:41]')
    k.lab('pc')
    S(k,f's_lshr_b32 s42, s2, 3; s_lshl_b32 s42, s42, 11; v_lshlrev_b32 v10, 7, v2; v_add_u32 v10, s42, v10; v_min_u32 v10, {k.ln("end")}-{k.ln("pc")}, v10; v_mov_b32 v11, s41; v_add_co_u32 v10, vcc, s40, v10; s_nop 1; v_addc_co_u32 v11, vcc, 0, v11, vcc; global_load_dword v243, v[10:11], off')
    k.lab('nocode')
    S(k,'s_and_b32 s25, s2, 7; s_lshr_b32 s26, s2, 3; s_and_b32 s27, s26, 3; s_lshl_b32 s20, s25, 2; s_add_u32 s20, s20, s27; s_lshr_b32 s21, s26, 2')
    if MAP2: S(k,'s_lshr_b32 s27, s25, 1; s_lshl_b32 s20, s27, 3; s_and_b32 s27, s26, 7; s_add_u32 s20, s20, s27; s_lshr_b32 s27, s26, 3; s_and_b32 s28, s25, 1; s_mul_i32 s28, s28, 3; s_add_u32 s28, s28, s27; s_cmp_ge_u32 s21, 6; s_cselect_b32 s21, s21, s28')
    S(k,f's_cmp_ge_u32 s21, 6; s_cbranch_scc1 {k.ln("idle")}')
    qkv_front(k)
    S(k,f'v_lshlrev_b32 v10, 18, v1; buffer_load_dword v11, v10, {W}, 0 offen sc1; v_mul_u32_u24 v10, 24576, v1; buffer_load_dword v9, v10, s[16:19], 0 offen sc1')
    S(k,f's_and_b32 s27, s21, 1; s_lshl_b32 s28, s47, 1; s_add_u32 s27, s27, s28; s_and_b32 s28, s20, 15; s_lshl_b32 s29, s27, 4; s_add_u32 s29, s29, s28; s_mul_i32 s29, s29, {24*1024}')
    S(k,f's_lshr_b32 s30, s21, 1; s_mul_i32 s31, s30, 0x180000; s_add_u32 s29, s29, s31; s_add_u32 s29, s29, {WS_Q}; s_cmp_eq_u32 s30, 2; s_cbranch_scc1 {k.ln("v")}')
    sv=(list(k.vm),list(k.lg))
    gemm(k,True,epi_list(False)); k.stamp(3); k.e('v_mov_b32 v246, 0'); stage_out(k,29,6144,AF); k.e(f's_branch {k.ln("qdone")}')
    k.lab('v'); k.vm,k.lg=sv
    gemm(k,False); k.stamp(3); S(k,'s_nop 0; s_nop 0; v_mov_b32 v246, 0')
    S(k,'s_mul_i32 s56, s3, 3072; s_add_u32 s56, s56, s29; s_add_u32 s57, s56, 12288; s_nop 4')
    for p in range(2):
        for ct in range(3):
            x=ACC+(2*p*3+ct)*4; y=ACC+((2*p+1)*3+ct)*4
            S(k,f'v_cvt_pk_bf16_f32 v{x}, v{x}, v{x+1}; v_cvt_pk_bf16_f32 v{x+1}, v{x+2}, v{x+3}; v_cvt_pk_bf16_f32 v{x+2}, v{y}, v{y+1}; v_cvt_pk_bf16_f32 v{x+3}, v{y+2}, v{y+3}')
            k.e(f'buffer_store_dwordx4 {v(x,4)}, v4, {W}, s{56+p} offen offset:{ct*1024} sc1')
    k.lab('qdone'); publish(k,0,20,21,'q'); k.e(f's_branch {k.ln("attn")}')
    k.lab('idle')
    S(k,'s_sub_u32 s30, s2, 192'); helper(k); k.e('v_mov_b32 v246, 1'); ticket(k,'i'); S(k,f'v_lshlrev_b32 v10, 18, v1; buffer_load_dword v11, v10, {W}, 0 offen sc1; v_mul_u32_u24 v10, 24576, v1; buffer_load_dword v9, v10, s[16:19], 0 offen sc1'); k.stamp(2); k.stamp(3)
    k.e('s_waitcnt vmcnt(0)'); k.vm=[]
    k.lab('attn'); roles(k)
    S(k,'s_and_b32 s27, s26, 3; s_lshl_b32 s20, s25, 2; s_add_u32 s20, s20, s27; s_lshr_b32 s21, s26, 2')
    S(k,'s_lshr_b32 s22, s20, 4; s_lshl_b32 s22, s22, 1; s_lshr_b32 s27, s21, 2; s_add_u32 s22, s22, s27; s_and_b32 s23, s21, 3; s_and_b32 s24, s20, 15')
    S(k,'s_and_b32 s27, s21, 1; s_lshl_b32 s36, s20, 1; s_add_u32 s36, s36, s27; s_lshr_b32 s37, s21, 1')
    S(k,f's_lshl_b32 s28, s21, 2; s_add_u32 s28, s28, s3; s_mul_i32 s28, s28, {36*1024}; s_add_u32 s38, s28, {WS_W1}')
    S(k,f's_mul_i32 s39, s21, {3*48*1024}; s_mul_i32 s29, s3, 12288; s_add_u32 s39, s39, s29; s_add_u32 s39, s39, {WS_W2}')
    S(k,f's_mul_i32 s35, s37, {6*12288}; s_mul_i32 s29, s3, 3072; s_add_u32 s35, s35, s29; s_add_u32 s35, s35, {WS_WO}')
    k.stamp(4)
    S(k,f'v_readfirstlane_b32 s56, v246; s_cmp_eq_u32 s3, 0; s_cselect_b32 s56, 0, s56; s_cmp_lg_u32 s56, 1; s_cbranch_scc1 {k.ln("nowarm")}')
    S(k,f's_mul_i32 s56, s26, 3; s_add_u32 s56, s56, s3; s_mul_i32 s56, s56, {216*128}; s_add_u32 s56, s56, {WS_WO-216*128}; v_lshlrev_b32 v10, 7, v1')
    for i in range(4): S(k,f'buffer_load_dword v{16+i}, v10, {W}, s56 offen sc1; s_add_u32 s56, s56, {8192 if i<2 else 3072}')
    k.lab('nowarm')
    attn_phase(k,ld)
    wo_phase(k,ld)
    S(k,f's_mul_i32 s46, s20, {64*768}; s_add_u32 s46, s46, {WS_X1}; s_lshr_b32 s47, s20, 4; s_mul_i32 s48, s47, 9216; s_add_u32 s48, s48, {1152*4}')
    S(k,f's_mul_i32 s29, s20, {4*48*1024}; s_mul_i32 s30, s21, 6144; s_add_u32 s30, s29, s30; s_add_u32 s30, s30, {WS_G}')
    ln2(k)
    c=-2*0.7978845608028654*1.4426950408889634
    S(k,f'v_mov_b32 v{T+12}, {f2(c)}; s_mov_b32 s61, {f2(c*0.044715)}')
    for i in range(36): ld.add(w2_reg(i),39,((i%3)*48+i//3)*1024,'w2')
    gemm(k,True,epi_list(True),ld); k.stamp(13)
    assert not ld.q
    stage_out(k,30,48*1024,AF,'g')
    publish(k,3,20,21,'f')
    S(k,f's_lshl_b32 s46, s20, 2; s_add_u32 s46, s46, s3; s_mul_i32 s46, s46, {16*768}; s_mul_i32 s25, s21, 1536; s_add_u32 s25, s25, s46; s_add_u32 s25, s25, {WS_X1}; s_mul_i32 s24, s21, 96; s_add_u32 s46, s46, s24')
    S(k,f's_mul_i32 s26, s47, 9216; s_mul_i32 s27, s21, 192; s_add_u32 s26, s26, s27; s_add_u32 s26, s26, {1920*4}')
    S(k,f's_mul_i32 s28, s3, 12288; s_add_u32 s29, s29, s28; s_add_u32 s29, s29, {WS_G}')
    poll8(k,3,20,'g'); k.stamp(14)
    for kb in range(12):
        for rt in range(4): ld.add(v(64+((kb%10)*4+rt)*4,4),29,(rt*48+kb)*1024,f'G{kb}',' sc1')
    ld.issue(24)
    for kb in range(12):
        k.wvm(f'G{kb}')
        if kb==0: k.xs('f0')
        for rt in range(4):
            for ct in range(3):
                D=v(16+(rt*3+ct)*4,4)
                k.e(f'v_mfma_f32_16x16x32_bf16 {D}, {w2_reg(kb*3+ct)}, {v(64+((kb%10)*4+rt)*4,4)}, {D if kb else 0}')
            ld.issue(1)
        if kb==6: epi_loads(k,WS,25,26,lambda o,n: a(32+o,n),' sc1')
    k.xs('f1'); k.wvm('epi')
    if WBL2: S(k,f's_or_b32 s56, s21, s3; s_cmp_lg_u32 s56, 0; s_cbranch_scc1 {k.ln("nowb")}; buffer_wbl2 sc1'); k.lab('nowb')
    for i in range(20):
        if i not in (6,7): k.e(f'v_accvgpr_read_b32 v{128+i}, a{32+i}')
    reduce_epi(k,16,OS,46,128,64,'')
    k.xs('f2'); k.end(15)
    k.lab('end'); k.e('s_endpgm')
    return k
```

```python
from mega import *
import k_prep as kp
MODL=147968
CTS=12288+16
def prep_params(k,t,B):
    S(k,f's_cmp_lt_u32 s{t}, 180; s_cselect_b32 s{B}, s86, s88; s_cselect_b32 s{B+1}, s87, s89; s_cselect_b32 s{B+5}, 3072, 768; s_cselect_b32 s{B+6}, 0, 1; s_cselect_b32 s{B+7}, {WS_W1}, {WS_W2}'.replace(f's_cselect_b32 s{B+7}, {WS_W1}, {WS_W2}',f's_mov_b32 s56, {WS_W2}; s_cselect_b32 s{B+7}, {WS_W1}, s56').replace(f's_cselect_b32 s{B+5}, 3072, 768',f's_movk_i32 s56, 768; s_cselect_b32 s{B+5}, 3072, s56'))
    S(k,f's_cselect_b32 s57, 12, 48; s_cselect_b32 s58, 19, 21; s_movk_i32 s56, 180; s_cselect_b32 s56, 36, s56; s_mov_b32 s{B+2}, 1179648')
    S(k,f's_cmp_lt_u32 s{t}, 36; s_cselect_b32 s{B}, s84, s{B}; s_cselect_b32 s{B+1}, s85, s{B+1}; s_cselect_b32 s{B+5}, 768, s{B+5}; s_cselect_b32 s{B+6}, 1, s{B+6}; s_cselect_b32 s{B+7}, {WS_WO}, s{B+7}; s_cselect_b32 s56, 0, s56; s_cselect_b32 s{B+2}, 294912, s{B+2}')
    S(k,f's_and_b32 s{B+1}, s{B+1}, 0xffff; s_mov_b32 s{B+3}, 0x20000; s_sub_u32 s56, s{t}, s56; s_mul_i32 s55, s56, 43691; s_lshr_b32 s55, s55, s58; s_mul_i32 s54, s55, s57; s_sub_u32 s56, s56, s54')
    S(k,f's_lshl_b32 s54, s54, 3; s_add_u32 s54, s54, s56; s_lshl_b32 s54, s54, 10; s_add_u32 s{B+7}, s{B+7}, s54; s_lshl_b32 s{B+8}, s57, 10')
    S(k,f's_mul_i32 s{B+4}, s56, s{B+5}; s_lshl_b32 s{B+4}, s{B+4}, 5; s_lshl_b32 s55, s55, 8; s_add_u32 s{B+4}, s{B+4}, s55')
def prep_load(k,B,R,va):
    S(k,f's_sub_u32 s56, 3, s{B+6}; s_lshl_b32 s56, s{B+5}, s56; v_mul_lo_u32 v{va}, v3, s56; v_lshl_add_u32 v{va}, v2, 4, v{va}; s_mul_i32 s57, s{B+6}, 12; s_mul_i32 s57, s57, s{B+5}; s_mov_b32 s58, s{B+4}')
    for j in range(8):
        k.e(f'buffer_load_dwordx4 {v(R+4*j,4)}, v{va}, s[{B}:{B+3}], s58 offen'); k.e(f's_add_u32 s58, s58, s{B+5}')
        if j==3: k.e('s_add_u32 s58, s58, s57')
def prep_store(k,B,R,O):
    S(k,'v_lshrrev_b32 v7, 1, v2; v_mul_u32_u24 v7, 1040, v7; v_lshl_add_u32 v7, v3, 8, v7; v_and_b32 v8, 1, v2; v_lshl_add_u32 v7, v8, 7, v7; s_mul_i32 s56, s3, 8320; s_add_u32 s56, s56, 8192; v_add_u32 v7, s56, v7; v_add_u32 v8, s56, v4; s_mov_b32 s47, 0x05040100; s_mov_b32 s48, 0x07060302')
    for f in range(8):
        for p in range(4): k.e(f'v_perm_b32 v{O+4*f+p}, v{R+4*(2*p+1)+(f>>1)}, v{R+4*(2*p)+(f>>1)}, s{48 if f&1 else 47}')
        k.e(f'ds_write_b128 v7, {v(O+4*f,4)} offset:{16*f}')
    k.e('s_waitcnt lgkmcnt(0)')
    for f in range(8): k.e(f'ds_read_b128 {v(R+4*f,4)}, v8 offset:{1040*f}')
    k.e(f's_mov_b32 s56, s{B+7}')
    for f in range(8): S(k,f's_waitcnt lgkmcnt({7-f}); buffer_store_dwordx4 {v(R+4*f,4)}, v4, {W}, s56 offen sc1; s_add_u32 s56, s56, s{B+8}')
def helper(k):
    S(k,'s_mov_b32 s86, s88; s_mov_b32 s87, s89; s_mov_b32 s88, s90; s_mov_b32 s89, s91')
    k.srd(36,36,'c'); k.srd(92,92,'wmod')
    S(k,f's_cmp_lg_u32 s30, 0; s_cbranch_scc1 {k.ln("nz")}; v_lshlrev_b32 v6, 4, v0; v_mov_b32 v8, 0; v_mov_b32 v9, 0; v_mov_b32 v10, 0; v_mov_b32 v11, 0')
    for p in range(4): S(k,f's_mov_b32 s40, {WS_FL+p*4096}; buffer_store_dwordx4 v[8:11], v6, {W}, s40 offen sc1')
    k.lab('nz')
    S(k,'s_lshl_b32 s31, s30, 2; s_add_u32 s31, s31, s3; s_add_u32 s32, s31, 160; s_min_u32 s32, s32, 323; s_mov_b32 s34, s30')
    S(k,'v_lshrrev_b32 v15, 5, v1; v_mul_u32_u24 v15, 3072, v15; v_and_b32 v12, 30, v1; v_lshl_add_u32 v15, v12, 2, v15; s_min_u32 s35, s30, 23; s_lshl_b32 s35, s35, 7; s_add_u32 s35, s35, 0x5000')
    k.e(f'buffer_load_dwordx2 v[224:225], v15, {W}, s35 offen sc1')
    k.lab('modl')
    k2=K(k.name,0,0,0,0,0); kp.mod_body(k2,0,36,92,12,' sc1')
    L=[x.replace('s_sub_u32 s40, s2, 0','s_mov_b32 s40, s34') for x in k2.L]
    i=[n for n,x in enumerate(L) if 's_waitcnt vmcnt(5)' in x][0]
    i0=[n for n,x in enumerate(L) if 'v_mov_b32 v64, 0' in x][0]
    k.L+=L[:i0]; prep_params(k,31,68); prep_params(k,32,20); k.L+=L[i0:i]
    S(k,f's_cmp_ge_u32 s34, 64; s_cbranch_scc1 {k.ln("nopl")}; s_cmp_lt_u32 s34, 24; s_cselect_b32 s56, s3, 1; s_cmp_eq_u32 s56, 0; s_cbranch_scc1 {k.ln("nopl")}'); prep_load(k,68,96,13); prep_load(k,20,128,14); k.e('s_waitcnt vmcnt(16)'); k.e(f's_branch {k.ln("npl2")}')
    k.lab('nopl'); k.e('s_waitcnt vmcnt(0)'); k.lab('npl2')
    j=[n for n,x in enumerate(L) if 'moddone:' in x][0]
    k.L+=[x for x in L[i:j] if 's_waitcnt vmcnt' not in x]
    S(k,f's_cmp_ge_u32 s34, 24; s_cbranch_scc1 {k.ln("moddone")}; s_nop 1; v_mov_b32_dpp v17, v16 quad_perm:[1,1,3,3] row_mask:0xf bank_mask:0xf; v_lshrrev_b32 v224, 16, v16; v_or_b32 v224, v224, v17; v_add_u32 v225, 1, v225; s_mov_b32 exec_lo, 0x55555555; s_mov_b32 exec_hi, 0x55555555; buffer_store_dwordx2 v[224:225], v15, {W}, s35 offen sc1; s_waitcnt vmcnt(0); v_mov_b32 v10, 0; v_mov_b32 v11, 1; s_mov_b64 exec, 1; buffer_atomic_add v11, v10, {D}, 0 offen offset:64 sc0 sc1; s_waitcnt vmcnt(0); v_readfirstlane_b32 s56, v11; v_mov_b32 v11, 1; s_cmp_lg_u32 s56, 23; s_cbranch_scc1 {k.ln("moddone")}; buffer_store_dword v11, v10, {D}, 0 offen offset:128 sc1')
    k.lab('moddone'); k.e('s_mov_b64 exec, -1'); k.stamp(1)
    S(k,f's_cmp_ge_u32 s34, 64; s_cbranch_scc1 {k.ln("m2")}; s_cmp_lt_u32 s34, 24; s_cselect_b32 s56, s3, 1; s_cmp_lg_u32 s56, 0; s_cbranch_scc1 {k.ln("late")}'); prep_load(k,68,96,13); k.lab('late')
    k.e('s_waitcnt vmcnt(0)')
    prep_store(k,68,96,160)
    S(k,f's_sub_u32 s56, s31, 96; s_cmp_ge_u32 s56, 68; s_cbranch_scc1 {k.ln("np2")}'); prep_store(k,20,128,192); k.lab('np2')
    S(k,f's_waitcnt vmcnt(0); s_barrier; s_cmp_lg_u32 s3, 0; s_cbranch_scc1 {k.ln("hd")}; v_mov_b32 v10, 0; v_mov_b32 v11, 1; s_mov_b64 exec, 1; buffer_atomic_add v11, v10, {D}, 0 offen offset:68 sc0 sc1; s_waitcnt vmcnt(0); v_readfirstlane_b32 s56, v11; v_mov_b32 v11, 1; s_cmp_lg_u32 s56, 63; s_cbranch_scc1 {k.ln("hd")}; buffer_store_dword v11, v10, {D}, 0 offen offset:132 sc1')
    k.lab('hd'); k.e('s_mov_b64 exec, -1')
    S(k,f's_add_u32 s34, s34, 8; s_cmp_ge_u32 s34, 64; s_cbranch_scc1 {k.ln("modl")}; s_branch {k.ln("m3")}')
    k.lab('m2')
    S(k,f's_cmp_lg_u32 s3, 0; s_cbranch_scc1 {k.ln("m3")}; s_waitcnt vmcnt(0); v_mov_b32 v10, 0; v_mov_b32 v11, 1; s_mov_b64 exec, 1; buffer_atomic_add v11, v10, {D}, 0 offen offset:136 sc1')
    k.lab('m3'); k.e('s_mov_b64 exec, -1')
    dpoll(k,'v_mov_b32 v10, 132',1,'w',False)
def dpoll(k,voff,val,tag,bar=True):
    S(k,f's_cmp_lg_u32 s3, 0; s_cbranch_scc1 {k.ln("dd"+tag)}; {voff}; s_mov_b32 s57, 0x100000')
    k.lab('dl'+tag)
    S(k,f'buffer_load_dword v11, v10, {D}, 0 offen sc1; s_waitcnt vmcnt(0); v_cmp_ne_u32 vcc, {val}, v11; s_sub_u32 s57, s57, 1; s_cbranch_scc1 {k.ln("dd"+tag)}; s_cbranch_vccz {k.ln("dd"+tag)}; s_sleep 2; s_branch {k.ln("dl"+tag)}')
    k.lab('dd'+tag)
    if bar: k.e('s_barrier')
def qkv_front(k):
    R=64; PO=208; T=224; XH=64
    S(k,f'v_mul_u32_u24 v6, 768, v2; v_lshl_add_u32 v6, v3, 4, v6; s_mul_i32 s50, s3, {16*768}; s_mul_i32 s46, s20, {64*768}; s_add_u32 s50, s50, s46')
    for f in range(12): k.vmem(f'buffer_load_dwordx4 {v(X+4*f,4)}, v6, s[8:11], s50 offen offset:{64*f}','x%d'%f)
    S(k,'v_lshrrev_b32 v7, 3, v1; v_mul_u32_u24 v8, 2304, v7; v_and_b32 v9, 7, v1; v_and_b32 v7, 2, v7; v_xor_b32 v9, v9, v7; v_xor_b32 v7, 4, v9; v_lshl_add_u32 v12, v9, 4, v8; v_lshl_add_u32 v13, v7, 4, v8')
    S(k,f's_mul_i32 s51, s3, {96*2304}; s_mul_i32 s52, s21, 384; s_add_u32 s51, s51, s52; s_mul_i32 s52, s3, 12288; s_mov_b32 s55, 0x3f803f80')
    S(k,'s_mul_i32 s60, s33, 3; s_lshr_b32 s60, s60, 2; s_lshl_b32 s60, s60, 1')
    def ldu(n):
        S(k,f's_lshl_b32 s44, s60, 10; s_add_u32 s44, s44, s52; s_mul_i32 s45, s60, {8*2304}; s_add_u32 s45, s45, s51; s_add_u32 s60, s60, 1; s_cmp_eq_u32 s60, 12; s_cselect_b32 s60, 0, s60')
        for cg in range(3):
            S(k,f's_add_u32 m0, s44, {cg*49152}; s_add_u32 s59, s45, {cg*128}'); k.vmem(f'buffer_load_dwordx4 v{12+(n&1)}, s[80:83], s59 offen lds','u')
    S(k,f's_lshr_b32 s53, s20, 4; s_mul_i32 s53, s53, 3072; s_min_u32 s54, s3, 2; s_lshl_b32 s54, s54, 10; s_add_u32 s53, s53, s54; s_add_u32 s53, s53, 0x5000')
    k.vmem(f'buffer_load_dwordx4 v[232:235], v4, {W}, s53 offen sc1','snap')
    for n in range(6): ldu(n)
    for i in range(8): k.e(f'v_mov_b32 v{T+i}, 0')
    for f in range(12):
        if f%4==0: k.wvm('x%d'%(f+3))
        for p in range(4): k.e(f'v_dot2c_f32_bf16 v{T+p}, s55, v{X+4*f+p}'); k.e(f'v_dot2c_f32_bf16 v{T+4+p}, v{X+4*f+p}, v{X+4*f+p}')
    S(k,f's_nop 2; v_add_f32 v{T}, v{T}, v{T+1}; v_add_f32 v{T+2}, v{T+2}, v{T+3}; v_add_f32 v{T+4}, v{T+4}, v{T+5}; v_add_f32 v{T+6}, v{T+6}, v{T+7}; v_add_f32 v{T}, v{T}, v{T+2}; v_add_f32 v{T+1}, v{T+4}, v{T+6}')
    xred(k,[T,T+1],[T+2,T+3],'v_add_f32')
    S(k,f'v_mul_f32 v{T}, 0x3b2aaaab, v{T}; v_mul_f32 v{T+1}, 0x3b2aaaab, v{T+1}; v_fma_f32 v{T+1}, -v{T}, v{T}, v{T+1}; v_max_f32 v{T+1}, 0, v{T+1}; v_add_f32 v{T+1}, 0x3727c5ac, v{T+1}')
    S(k,f'v_rsq_f32 v{T+2}, v{T+1}; s_nop 0; v_mul_f32 v{T+4}, v{T}, v{T+2}; v_sub_f32 v{T+4}, 0, v{T+4}')
    def xhat(f):
        for p in range(4): S(k,f'v_lshlrev_b32 v{XH+8*f+2*p}, 16, v{X+4*f+p}; v_and_b32 v{XH+8*f+2*p+1}, 0xffff0000, v{X+4*f+p}')
        for p in range(8): k.e(f'v_fma_f32 v{XH+8*f+p}, v{XH+8*f+p}, v{T+2}, v{T+4}')
    k.stamp(1)
    for n in range(6): ldu(6+n); xhat(2*n); xhat(2*n+1)
    k.e(f'buffer_load_dwordx4 v[236:239], v4, {W}, s53 offen sc1')
    S(k,'v_bfe_u32 v7, v1, 2, 2; v_lshlrev_b32 v8, 7, v7; v_lshl_add_u32 v8, v3, 10, v8; v_and_b32 v9, 3, v1; v_lshl_add_u32 v8, v9, 3, v8; v_lshrrev_b32 v7, 1, v7; v_and_b32 v9, 1, v3; v_lshl_add_u32 v7, v9, 1, v7; s_mul_i32 s56, s3, 3')
    for ct in range(3): S(k,f's_add_u32 s57, s56, {ct}; s_and_b32 s58, s57, 3; s_lshr_b32 s57, s57, 2; s_mul_i32 s57, s57, 49152; v_xor_b32 v9, s58, v7; v_lshl_add_u32 v9, v9, 5, v8; v_add_u32 v{244+ct}, s57, v9')
    if True:
        if True:
            k.xs('q0'); S(k,'v_mov_b32 v10, 128; s_mov_b32 s57, 0x100000; s_waitcnt vmcnt(0)'); k.xs('q1'); k.e(f's_branch {k.ln("gc")}'); k.lab('gl')
            S(k,f's_sub_u32 s57, s57, 1; s_cbranch_scc1 {k.ln("gd")}; s_mov_b32 s56, 0; s_and_b32 s58, s57, 7; s_cbranch_scc1 {k.ln("gn")}; buffer_load_dword v11, v10, {D}, 0 offen sc1; s_waitcnt vmcnt(0); v_readfirstlane_b32 s56, v11')
            k.lab('gn')
            S(k,f'buffer_load_dwordx4 v[236:239], v4, {W}, s53 offen sc1; s_waitcnt vmcnt(0); s_cmp_eq_u32 s56, 1; s_cbranch_scc1 {k.ln("gd")}')
            k.lab('gc')
            S(k,f'v_cmp_eq_u32 vcc, v233, v237; v_cmp_eq_u32 s[58:59], v235, v239; s_or_b64 vcc, vcc, s[58:59]; s_cbranch_vccnz {k.ln("gl")}')
            k.lab('gd')
            S(k,f'v_lshlrev_b32 v240, 16, v236; v_and_b32 v241, 0xffff0000, v236; v_lshlrev_b32 v242, 16, v238; v_and_b32 v243, 0xffff0000, v238; s_add_u32 s54, s54, {MODL}; v_add_u32 v10, s54, v4; ds_write_b128 v10, v[240:243]')
    ticket(k,'q'); k.stamp(2); k.xs('q2')
    S(k,'s_waitcnt lgkmcnt(0); s_barrier')
    k.vm=[]; k.lg=[]
    S(k,f's_lshr_b32 s47, s20, 4; v_lshlrev_b32 v7, 5, v3; v_add_u32 v7, {MODL}, v7; s_mul_i32 s50, s3, 12288; v_add_u32 v8, s50, v4')
    def rdmod(f):
        for q in range(4): k.ds(f'ds_read_b128 {v(160+(f%3)*16+4*q,4)}, v7 offset:{f*128+(q&1)*16+(q>>1)*1536}',f'm{f}')
    rdmod(0); rdmod(1)
    for f in range(12):
        k.wlg(f'm{f}')
        if f<10: rdmod(f+2)
        for ct in range(3):
            for h in range(2): k.ds(f'ds_read_b64_tr_b16 {a((f*3+ct)*4+2*h,2)}, v{244+ct} offset:{f*4096+h*512}','b')
        o=160+(f%3)*16; t=XH+8*f
        for p in range(8): k.e(f'v_fma_f32 v{t+p}, v{t+p}, v{o+8+p}, v{o+p}')
        for p in range(4): k.e(f'v_cvt_pk_bf16_f32 v{X+4*f+p}, v{t+2*p}, v{t+2*p+1}')
    k.xs('q3'); S(k,'s_waitcnt lgkmcnt(0); s_barrier')
    for f in range(12): k.e(f'ds_write_b128 v8, {v(X+4*f,4)} offset:{f*1024}')
    stage_setup(k)
    S(k,'s_waitcnt lgkmcnt(0); s_barrier'); k.lg=[]
```

```python
from mega import *
from start import *
MAP2=int(os.environ.get('MAP2','1'))
WBL2=int(os.environ.get('WBL2','1'))
def attn_phase(k,ld):
    Sx=16; O=80; QF=128; T=160
    S(k,f's_lshl_b32 s25, s22, 6; s_lshl_b32 s26, s24, 2; s_add_u32 s26, s26, s25; s_add_u32 s26, s26, s3; s_mul_i32 s26, s26, 6144; s_add_u32 s26, s26, {WS_Q}')
    S(k,f's_lshl_b32 s29, s23, 4; s_add_u32 s29, s29, s25; s_lshl_b32 s27, s3, 2; s_add_u32 s29, s29, s27; s_mul_i32 s29, s29, 6144; s_add_u32 s29, s29, {WS_K}')
    S(k,f's_lshl_b32 s34, s22, 5; s_lshl_b32 s27, s23, 3; s_add_u32 s34, s34, s27; s_mul_i32 s34, s34, 12288; s_mul_i32 s27, s3, 3072; s_add_u32 s34, s34, s27; s_add_u32 s34, s34, {WS_V}')
    S(k,'s_lshr_b32 s40, s22, 1; s_lshl_b32 s40, s40, 4; s_and_b32 s41, s22, 1; s_lshl_b32 s42, s23, 2; s_add_u32 s42, s42, s40; s_add_u32 s43, s40, s24')
    S(k,'v_and_b32 v10, 3, v1; v_add_u32 v10, s42, v10; v_lshlrev_b32 v10, 7, v10; v_lshrrev_b32 v11, 2, v1; v_lshl_add_u32 v10, v11, 3, v10; s_lshl_b32 s44, s41, 2; s_add_u32 s45, s44, 8; v_add_u32 v10, s45, v10')
    S(k,'s_lshl_b32 s45, s43, 7; s_add_u32 s45, s45, s44; v_mov_b32 v11, s45; v_cmp_gt_u32 vcc, 8, v1; s_nop 1; v_cndmask_b32 v10, v11, v10, vcc')
    S(k,'s_mul_i32 s27, s3, 6144; s_mov_b32 m0, s27; s_add_u32 s28, s26, 4096')
    poll(k,0,'a'); k.stamp(5)
    for i in range(4): k.vmem(f'buffer_load_dwordx4 v4, {W}, s26 offen offset:{i*1024} sc1 lds','q')
    S(k,'s_add_u32 s27, s27, 4096; s_mov_b32 m0, s27; s_nop 0')
    for i in range(2): k.vmem(f'buffer_load_dwordx4 v4, {W}, s28 offen offset:{i*1024} sc1 lds','q')
    k.e('v_mov_b32 v9, 132'); k.vmem('buffer_load_dwordx2 v[6:7], v9, s[96:99], 0 offen sc1','hd')
    for kb in range(6):
        for kt in range(4): ld.add(a((kb*4+kt)*4,4),29,kt*6144+kb*1024,f'K{kb}',' sc1')
    for j in range(8):
        for i in range(3): ld.add(a(96+(j*3+i)*4,4),34,j*12288+i*1024,f'V{j}',' sc1')
    ld.issue(24)
    k.wvm('q'); k.e('s_barrier')
    def rdq(kb):
        for qt in range(4): k.ds(f'ds_read_b128 {v(QF+(kb&1)*16+4*qt,4)}, v4 offset:{(qt*6+kb)*1024}',f'q{kb}_{qt}')
    rdq(0)
    for kb in range(6):
        if kb<5: rdq(kb+1)
        k.wvm(f'K{kb}')
        for qt in range(4):
            k.wlg(f'q{kb}_{qt}')
            for kt in range(4):
                Dd=v(Sx+(qt*4+kt)*4,4)
                k.e(f'v_mfma_f32_16x16x32_bf16 {Dd}, {a((kb*4+kt)*4,4)}, {v(QF+(kb&1)*16+4*qt,4)}, {Dd if kb else 0}')
            ld.issue(1)
    k.stamp(6)
    k.e('s_mov_b32 s57, 0x100000'); k.lab('hl')
    S(k,f'v_readfirstlane_b32 s56, v6; v_readfirstlane_b32 s58, v7; s_add_u32 s56, s56, s58; s_cmp_eq_u32 s56, 9; s_cbranch_scc1 {k.ln("hk")}; s_sub_u32 s57, s57, 1; s_cbranch_scc1 {k.ln("hk")}; s_sleep 2; buffer_load_dwordx2 v[6:7], v9, s[96:99], 0 offen sc1; s_waitcnt vmcnt(0); s_branch {k.ln("hl")}')
    k.lab('hk')
    S(k,f's_lshr_b32 s56, s20, 4; s_mul_i32 s56, s56, 9216; s_lshl_b32 s57, s3, 10; s_add_u32 s56, s56, s57; s_add_u32 s56, s56, {1152*4}; s_lshr_b32 s58, s20, 4; s_mul_i32 s58, s58, 4608; s_add_u32 s58, s58, {0xC000+2304}; s_cmp_eq_u32 s3, 3; s_cselect_b32 s56, s58, s56; s_add_u32 m0, s57, 92160; s_nop 0')
    k.vmem(f'buffer_load_dwordx4 v4, {W}, s56 offen sc1 lds','mod')
    for kb in range(3):
        for ct in range(6): ld.add(wo_reg(kb*6+ct),35,ct*12288+kb*1024,'wo')
    S(k,'s_lshl_b32 s56, s33, 2; v_mov_b32 v5, 0'); k.vmem(f'buffer_load_dword v5, v5, s[96:99], s56 offen sc1','cnt')
    for kb in range(12):
        for ct in range(3): ld.add(a((kb*3+ct)*4,4),38,(ct*12+kb)*1024,'w1')
    k.e(f's_mov_b32 s40, {f2(192**-0.5*1.4426950408889634)}')
    S(k,'s_lshl_b32 s41, s3, 8; v_lshlrev_b32 v6, 4, v2; v_add_u32 v6, 57344, v6; v_add_u32 v7, s41, v6; s_mul_i32 s42, s3, 8192; s_add_u32 s42, s42, 24576; v_add_u32 v8, s42, v4; s_nop 4')
    for qt in range(4):
        b=Sx+qt*16
        k.e(f'v_max3_f32 v{T+qt}, v{b}, v{b+1}, v{b+2}')
        for i in range(3,15,2): k.e(f'v_max3_f32 v{T+qt}, v{T+qt}, v{b+i}, v{b+i+1}')
        k.e(f'v_max_f32 v{T+qt}, v{T+qt}, v{b+15}')
    xred(k,[T,T+1,T+2,T+3],[T+4,T+5,T+6,T+7],'v_max_f32')
    k.e(f'ds_write_b128 v7, {v(T,4)}'); ld.issue(1); k.e('s_waitcnt lgkmcnt(0)'); k.e('s_barrier')
    for w in range(4): k.e(f'ds_read_b128 {v(T+8+4*w,4)}, v6 offset:{w*256}')
    ld.issue(1)
    for i in range(4): k.e(f'v_mov_b32 v{T+4+i}, 0x3f803f80')
    S(k,'s_lshl_b32 s42, s3, 10; v_add_u32 v9, s42, v4; s_waitcnt lgkmcnt(0)')
    for qt in range(4):
        S(k,f'v_max3_f32 v{T+qt}, v{T+8+qt}, v{T+12+qt}, v{T+16+qt}; v_max_f32 v{T+qt}, v{T+qt}, v{T+20+qt}; v_mul_f32 v{T+qt}, s40, v{T+qt}; v_ceil_f32 v{T+qt}, v{T+qt}')
    for qt in range(4):
        b=Sx+qt*16
        for hh in range(2):
            for i in range(8*hh,8*hh+8): k.e(f'v_fma_f32 v{b+i}, v{b+i}, s40, -v{T+qt}')
            ld.issue(1)
            for i in range(8*hh,8*hh+8): k.e(f'v_exp_f32 v{b+i}, v{b+i}')
            ld.issue(1)
            for i in range(4*hh,4*hh+4): k.e(f'v_cvt_pk_bf16_f32 v{b+i}, v{b+2*i}, v{b+2*i+1}')
            k.e(f'ds_write_b128 v8, {v(b+4*hh,4)} offset:{(hh*4+qt)*1024}')
    k.e('s_waitcnt lgkmcnt(0)'); k.e('s_barrier'); k.lg=[]
    k.stamp(7)
    LA=T+8; PW=T+16
    def rdp(j):
        for qt in range(4): k.ds(f'ds_read_b128 {v(QF+(j&1)*16+4*qt,4)}, v4 offset:{24576+(j*4+qt)*1024}',f'p{j}_{qt}')
        k.ds(f'ds_read_b128 {v(PW+(j&1)*4,4)}, v9 offset:{24576+j*4096}',f'pw{j}')
    rdp(0)
    for j in range(8):
        if j<7: rdp(j+1)
        k.wvm(f'V{j}')
        for qt in range(4):
            k.wlg(f'p{j}_{qt}')
            for i in range(3):
                D=v(O+(qt*3+i)*4,4)
                k.e(f'v_mfma_f32_16x16x32_bf16 {D}, {a(96+(j*3+i)*4,4)}, {v(QF+(j&1)*16+4*qt,4)}, {D if j else 0}')
            assert len(ld.q)>12 or j>=5
            ld.issue(2 if j in (5,6) else 1)
        k.wlg(f'pw{j}')
        k.e(f'v_mfma_f32_16x16x32_bf16 {v(LA,4)}, {v(T+4,4)}, {v(PW+(j&1)*4,4)}, {v(LA,4) if j else 0}')
        if j==2:
            S(k,'s_lshr_b32 s26, s22, 1; s_lshl_b32 s26, s26, 6; s_lshl_b32 s27, s24, 2; s_add_u32 s26, s26, s27')
            S(k,f's_lshl_b32 s27, s20, 2; s_add_u32 s27, s27, s23; s_mul_i32 s27, s27, 49152; s_add_u32 s27, s27, {WS_OP}')
            S(k,'s_and_b32 s28, s22, 1; s_mul_i32 s29, s28, 6144; s_add_u32 s32, s29, s27')
            stage_setup(k)
        if j==3:
            k.wvm('cnt'); S(k,'v_readfirstlane_b32 s56, v5; s_cmp_ge_u32 s56, 32; s_cselect_b32 s63, s63, 0')
            k.e(f'v_mov_b32 v{T+12}, v{T}')
            for qt in range(1,4): S(k,f's_cmp_eq_u32 s3, {qt}; s_cselect_b64 vcc, -1, 0; v_cndmask_b32 v{T+12}, v{T+12}, v{T+qt}, vcc')
            S(k,f's_lshl_b32 s27, s23, 1; s_add_u32 s27, s27, s28; s_lshl_b32 s27, s27, 14; s_add_u32 s26, s26, s3; s_lshl_b32 s26, s26, 7; s_add_u32 s27, s27, s26; s_add_u32 s27, s27, {WS_ML}; v_lshlrev_b32 v10, 3, v1')
    assert not ld.q
    k.e('s_nop 4'); k.stamp(8)
    for qt in range(4):
        for i in range(3): stage_put(k,O+(qt*3+i)*4,qt,i)
    S(k,f'v_mov_b32 v{T+13}, v{LA}; s_mov_b64 exec, 0xffff')
    dual(k,lambda sc: k.e(f'buffer_store_dwordx2 {v(T+12,2)}, v10, {W}, s27 offen{sc}'),'ml',True)
    k.e('s_mov_b64 exec, -1')
    stage_out(k,32,12288,QF,'a')
    S(k,'s_lshl_b32 s44, s28, 2; s_add_u32 s44, s44, s23')
    publish(k,1,43,44,'a')
def wo_phase(k,ld):
    AC=16; OPR=64; Wt=160; T=184; E=200
    S(k,'s_lshr_b32 s40, s3, 1; s_min_u32 s41, s3, 2; s_mul_i32 s48, s37, 3; s_add_u32 s48, s48, s41')
    S(k,f's_mul_i32 s47, s36, {32*768}; s_lshl_b32 s25, s48, 10; s_add_u32 s25, s25, s47; s_add_u32 s25, s25, {WS_X1}; s_add_u32 s31, s25, 12288; s_lshl_b32 s49, s48, 6; s_add_u32 s47, s47, s49; s_add_u32 s49, s47, 12288')
    S(k,f's_lshr_b32 s26, s36, 5; s_mul_i32 s26, s26, 9216; s_lshl_b32 s27, s48, 7; s_add_u32 s26, s26, s27; s_add_u32 s26, s26, {768*4}')
    S(k,'v_mul_u32_u24 v6, 768, v2; v_lshl_add_u32 v6, v3, 4, v6; v_lshlrev_b32 v7, 5, v3')
    S(k,f's_lshl_b32 s27, s40, 14; s_lshl_b32 s28, s36, 8; s_add_u32 s27, s27, s28; s_add_u32 s27, s27, {WS_ML}; v_lshlrev_b32 v12, 3, v2')
    S(k,f's_mul_i32 s28, s3, 3072; s_mul_i32 s29, s20, 196608; s_add_u32 s29, s29, s28; s_and_b32 s28, s36, 1; s_mul_i32 s28, s28, 24576; s_add_u32 s29, s29, s28; s_add_u32 s29, s29, {WS_OP}; s_lshr_b32 s30, s36, 1')
    poll8(k,1,30,'w'); k.stamp(9)
    for s in range(4):
        for rt in range(2): k.vmem(f'buffer_load_dwordx2 {v(Wt+(rt*4+s)*2,2)}, v12, {W}, s27 offen offset:{rt*128} sc1','ml')
        k.e('s_add_u32 s27, s27, 32768')
    for kb in range(3):
        for rt in range(2):
            for s in range(4): ld.add(v(OPR+((kb*2+rt)*4+s)*4,4),29,s*49152+rt*12288+kb*1024,f'o{kb}_{rt}',' sc1')
    ld.issue(16)
    k.xs('w0'); k.wvm('ml'); k.xs('w1')
    for rt in range(2):
        b=Wt+rt*8
        S(k,f'v_max3_f32 v{T}, v{b}, v{b+2}, v{b+4}; v_max_f32 v{T}, v{T}, v{b+6}')
        for s in range(4): k.e(f'v_sub_f32 v{b+2*s}, v{b+2*s}, v{T}')
        for s in range(4): k.e(f'v_exp_f32 v{b+2*s}, v{b+2*s}')
        k.e('s_nop 0')
        S(k,f'v_mul_f32 v{T}, v{b}, v{b+1}; v_mul_f32 v{T+1}, v{b+2}, v{b+3}; v_fmac_f32 v{T}, v{b+4}, v{b+5}; v_fmac_f32 v{T+1}, v{b+6}, v{b+7}; v_add_f32 v{T}, v{T}, v{T+1}; v_rcp_f32 v{T}, v{T}; s_nop 0')
        k.e(f'v_mov_b32 v{176+rt}, v{T}')
        for s in range(4): S(k,f'v_and_b32 v{b+2*s+1}, 0xffff0000, v{b+2*s}; v_lshrrev_b32 v{b+2*s}, 16, v{b+2*s}')
    for kb in range(3):
        for rt in range(2):
            if kb==1 and rt==0:
                assert not ld.q
                k.vmem(f'buffer_load_dwordx4 {v(E,4)}, v6, s[8:11], s47 offen','epi'); k.vmem(f'buffer_load_dwordx4 {v(E+4,4)}, v6, s[8:11], s49 offen','epi')
                k.vmem(f'buffer_load_dwordx4 {v(E+8,4)}, v7, {W}, s26 offen sc1','epi'); k.vmem(f'buffer_load_dwordx4 {v(E+12,4)}, v7, {W}, s26 offen offset:16 sc1','epi')
            k.wvm(f'o{kb}_{rt}')
            if rt==0: k.xs('o%d'%kb)
            o=OPR+(kb*2+rt)*16
            for s in range(4):
                for p in range(8):
                    k.e(f'v_dot2_f32_bf16 v{T+p}, v{o+4*s+p//2}, v{Wt+rt*8+2*s+(p&1)}, '+('0' if s==0 else f'v{T+p}'))
                ld.issue(1)
            k.e('s_nop 2')
            for p in range(8): k.e(f'v_mul_f32 v{T+p}, v{T+p}, v{176+rt}')
            for p in range(4): k.e(f'v_cvt_pk_bf16_f32 v{o+p}, v{T+2*p}, v{T+2*p+1}')
            k.e('s_nop 1')
            for ct in range(6):
                D=v(AC+(rt*6+ct)*4,4)
                k.e(f'v_mfma_f32_16x16x32_bf16 {D}, {wo_reg(kb*6+ct)}, {v(o,4)}, {D if kb else 0}')
    k.stamp(10); k.wvm('epi')
    S(k,'s_mul_i32 s50, s3, 12288; v_add_u32 v8, s50, v4; s_lshl_b32 s50, s41, 11; v_lshrrev_b32 v9, 1, v3; v_lshlrev_b32 v9, 10, v9; v_and_b32 v13, 1, v3; v_lshl_add_u32 v9, v13, 9, v9; v_lshl_add_u32 v9, v2, 4, v9; v_add_u32 v9, s50, v9')
    for t in range(12): k.e(f'ds_write_b128 v8, {v(AC+4*t,4)} offset:{t*1024}')
    S(k,f's_waitcnt lgkmcnt(0); s_barrier; s_cmp_eq_u32 s3, 3; s_cbranch_scc1 {k.ln("wo3")}')
    for rt in range(2):
        for w in range(4):
            for e in range(2): k.e(f'ds_read_b128 {v(64+rt*32+w*8+e*4,4)}, v9 offset:{w*12288+rt*6144+e*256}')
    for rt in range(2):
        b=64+rt*32; t=128
        for p in range(4): S(k,f'v_lshlrev_b32 v{t+2*p}, 16, v{E+4*rt+p}; v_and_b32 v{t+2*p+1}, 0xffff0000, v{E+4*rt+p}')
        k.e(f's_waitcnt lgkmcnt({8-8*rt})')
        for h in range(8): S(k,f'v_add_f32 v{b+h}, v{b+h}, v{b+8+h}; v_add_f32 v{b+16+h}, v{b+16+h}, v{b+24+h}')
        for h in range(8): k.e(f'v_add_f32 v{b+h}, v{b+h}, v{b+16+h}')
        for h in range(8): k.e(f'v_fma_f32 v{b+h}, v{b+h}, v{E+8+h}, v{t+h}')
        for p in range(4): k.e(f'v_cvt_pk_bf16_f32 v{b+p}, v{b+2*p}, v{b+2*p+1}')
        dual(k,lambda sc: k.e(f'buffer_store_dwordx4 {v(b,4)}, v4, {W}, s{31 if rt else 25} offen{sc}'),f'x{rt}',True)
    k.lab('wo3')
    S(k,'s_and_b32 s44, s36, 1; s_lshl_b32 s44, s44, 2; s_add_u32 s44, s44, s37')
    publish(k,2,30,44,'w')
def ln2(k):
    SC=112; BI=208; RS=220; T2=64
    S(k,'v_lshlrev_b32 v7, 5, v3; v_add_u32 v7, 92160, v7; s_mul_i32 s50, s3, 12288; v_add_u32 v8, s50, v4; s_add_u32 s50, s50, s46; s_add_u32 s51, s50, 4096; s_add_u32 s52, s50, 8192')
    poll8(k,2,20,'f'); k.stamp(11)
    for f in range(12): k.vmem(f'buffer_load_dwordx4 {v(X+4*f,4)}, v4, {W}, s{50+f//4} offen offset:{1024*(f%4)} sc1','x%d'%f)
    S(k,f'v_lshlrev_b32 v9, 4, v3; v_add_u32 v9, {92160+3072}, v9')
    for f in range(12): k.e(f'ds_read_b128 {a(144+4*f,4)}, v9 offset:{f*64}')
    k.e('s_waitcnt lgkmcnt(0)')
    for f in range(12):
        for ct in range(3): k.e(f'v_mfma_f32_16x16x32_bf16 {v(BI+4*ct,4)}, {a((f*3+ct)*4,4)}, {a(144+4*f,4)}, {v(BI+4*ct,4) if f else 0}')
        for q in range(2): k.e(f'ds_read_b128 {v(SC+8*f+4*q,4)}, v7 offset:{1536+f*128+q*16}')
    stage_setup(k)
    S(k,'s_mov_b32 s55, 0x3f803f80; v_mov_b32 v5, 0x3f80; v_mov_b32 v6, 0x3f800000; s_lshl_b32 s56, s3, 6; s_add_u32 s56, s56, 53248; v_lshlrev_b32 v9, 2, v2; v_add_u32 v7, s56, v9; v_add_u32 v9, 53248, v9')
    for i in range(8): k.e(f'v_mov_b32 v{T2+i}, 0')
    k.e('s_waitcnt lgkmcnt(0)')
    for f in range(12):
        if f%2==0: k.wvm('x%d'%(f+1))
        for p in range(4): k.e(f'v_dot2c_f32_bf16 v{T2+p}, s55, v{X+4*f+p}'); k.e(f'v_dot2c_f32_bf16 v{T2+4+p}, v{X+4*f+p}, v{X+4*f+p}')
    t=T2
    S(k,f's_nop 2; v_add_f32 v{t}, v{t}, v{t+1}; v_add_f32 v{t+2}, v{t+2}, v{t+3}; v_add_f32 v{t+4}, v{t+4}, v{t+5}; v_add_f32 v{t+6}, v{t+6}, v{t+7}; v_add_f32 v{t}, v{t}, v{t+2}; v_add_f32 v{t+1}, v{t+4}, v{t+6}')
    xred(k,[t,t+1],[t+2,t+3],'v_add_f32')
    S(k,f'v_mul_f32 v{t}, 0xbb2aaaab, v{t}; v_mul_f32 v{t+1}, 0x3b2aaaab, v{t+1}; v_fma_f32 v{t+1}, -v{t}, v{t}, v{t+1}; v_max_f32 v{t+1}, 0, v{t+1}; v_add_f32 v{t+1}, 0x3727c5ac, v{t+1}; v_rsq_f32 v{t+2}, v{t+1}')
    def ctr(f):
        for p in range(8): k.e(f'v_dot2_f32_bf16 v{T2+8+(f&1)*8+p}, v{X+4*f+p//2}, v{5+(p&1)}, v{t}')
    ctr(0); k.e(f'ds_write_b32 v7, v{t+2}')
    for f in range(12):
        if f<11: ctr(f+1)
        else: k.e('s_nop 2')
        c=T2+8+(f&1)*8
        for p in range(8): k.e(f'v_mul_f32 v{c+p}, v{c+p}, v{SC+8*f+p}')
        for p in range(4): k.e(f'v_cvt_pk_bf16_f32 v{X+4*f+p}, v{c+2*p}, v{c+2*p+1}')
        k.e(f'ds_write_b128 v8, {v(X+4*f,4)} offset:{f*1024}')
    S(k,'s_waitcnt lgkmcnt(0); s_barrier'); k.lg=[]
    for rt in range(4): k.ds(f'ds_read_b32 v{RS+rt}, v9 offset:{64*rt}','rs')
    k.stamp(12)
def k_mega():
    k=K('mega_kernel',256,256,152064,256,256)
    S(k,f's_load_dwordx2 s[84:85], s[0:1], {KA["wo"]}; s_load_dwordx4 s[88:91], s[0:1], {KA["w1"]}; s_load_dwordx2 s[36:37], s[0:1], {KA["c"]}; s_load_dwordx2 s[92:93], s[0:1], {KA["wmod"]}')
    prologue(k,256,[('x',4,XS),('ws',6,WS),('out',60,OS),('dbg',58,96),('wqkv',80,80)])
    ld=Loads(k,59)
    S(k,'s_getreg_b32 s33, hwreg(HW_REG_XCC_ID, 0, 3)')
    S(k,f's_cmp_lg_u32 s3, 3; s_cbranch_scc1 {k.ln("nocode")}; s_getpc_b64 s[40:41]')
    k.lab('pc')
    S(k,f's_lshr_b32 s42, s2, 3; s_lshl_b32 s42, s42, 11; v_lshlrev_b32 v10, 7, v2; v_add_u32 v10, s42, v10; v_min_u32 v10, {k.ln("end")}-{k.ln("pc")}, v10; v_mov_b32 v11, s41; v_add_co_u32 v10, vcc, s40, v10; s_nop 1; v_addc_co_u32 v11, vcc, 0, v11, vcc; global_load_dword v243, v[10:11], off')
    k.lab('nocode')
    S(k,'s_and_b32 s25, s2, 7; s_lshr_b32 s26, s2, 3; s_and_b32 s27, s26, 3; s_lshl_b32 s20, s25, 2; s_add_u32 s20, s20, s27; s_lshr_b32 s21, s26, 2')
    if MAP2: S(k,'s_lshr_b32 s27, s25, 1; s_lshl_b32 s20, s27, 3; s_and_b32 s27, s26, 7; s_add_u32 s20, s20, s27; s_lshr_b32 s27, s26, 3; s_and_b32 s28, s25, 1; s_mul_i32 s28, s28, 3; s_add_u32 s28, s28, s27; s_cmp_ge_u32 s21, 6; s_cselect_b32 s21, s21, s28')
    S(k,f's_cmp_ge_u32 s21, 6; s_cbranch_scc1 {k.ln("idle")}')
    qkv_front(k)
    S(k,f'v_lshlrev_b32 v10, 18, v1; buffer_load_dword v11, v10, {W}, 0 offen sc1; v_mul_u32_u24 v10, 24576, v1; buffer_load_dword v9, v10, s[16:19], 0 offen sc1; buffer_load_dword v8, v10, s[8:11], 0 offen')
    S(k,f's_and_b32 s27, s21, 1; s_lshl_b32 s28, s47, 1; s_add_u32 s27, s27, s28; s_and_b32 s28, s20, 15; s_lshl_b32 s29, s27, 4; s_add_u32 s29, s29, s28; s_mul_i32 s29, s29, {24*1024}')
    S(k,f's_lshr_b32 s30, s21, 1; s_mul_i32 s31, s30, 0x180000; s_add_u32 s29, s29, s31; s_add_u32 s29, s29, {WS_Q}; s_cmp_eq_u32 s30, 2; s_cbranch_scc1 {k.ln("v")}')
    sv=(list(k.vm),list(k.lg))
    gemm(k,True,epi_list(False)); k.stamp(3); stage_out(k,29,6144,AF); k.e(f's_branch {k.ln("qdone")}')
    k.lab('v'); k.vm,k.lg=sv
    gemm(k,False); k.stamp(3); S(k,'s_nop 0')
    S(k,'s_mul_i32 s56, s3, 3072; s_add_u32 s56, s56, s29; s_add_u32 s57, s56, 12288; s_nop 4')
    for p in range(2):
        for ct in range(3):
            x=ACC+(2*p*3+ct)*4; y=ACC+((2*p+1)*3+ct)*4
            S(k,f'v_cvt_pk_bf16_f32 v{x}, v{x}, v{x+1}; v_cvt_pk_bf16_f32 v{x+1}, v{x+2}, v{x+3}; v_cvt_pk_bf16_f32 v{x+2}, v{y}, v{y+1}; v_cvt_pk_bf16_f32 v{x+3}, v{y+2}, v{y+3}')
            k.e(f'buffer_store_dwordx4 {v(x,4)}, v4, {W}, s{56+p} offen offset:{ct*1024} sc1')
    k.lab('qdone'); publish(k,0,20,21,'q'); k.e(f's_branch {k.ln("attn")}')
    k.lab('idle')
    S(k,'s_sub_u32 s30, s2, 192'); helper(k); S(k,f'v_lshlrev_b32 v10, 18, v1; buffer_load_dword v11, v10, {W}, 0 offen sc1; v_mul_u32_u24 v10, 24576, v1; buffer_load_dword v9, v10, s[16:19], 0 offen sc1; buffer_load_dword v8, v10, s[8:11], 0 offen'); k.stamp(2); k.stamp(3)
    k.e('s_waitcnt vmcnt(0)'); k.vm=[]
    k.lab('attn'); roles(k)
    S(k,'s_and_b32 s27, s26, 3; s_lshl_b32 s20, s25, 2; s_add_u32 s20, s20, s27; s_lshr_b32 s21, s26, 2')
    S(k,'s_lshr_b32 s22, s20, 4; s_lshl_b32 s22, s22, 1; s_lshr_b32 s27, s21, 2; s_add_u32 s22, s22, s27; s_and_b32 s23, s21, 3; s_and_b32 s24, s20, 15')
    S(k,'s_and_b32 s27, s21, 1; s_lshl_b32 s36, s20, 1; s_add_u32 s36, s36, s27; s_lshr_b32 s37, s21, 1')
    S(k,f's_lshl_b32 s28, s21, 2; s_add_u32 s28, s28, s3; s_mul_i32 s28, s28, {36*1024}; s_add_u32 s38, s28, {WS_W1}')
    S(k,f's_mul_i32 s39, s21, {3*48*1024}; s_mul_i32 s29, s3, 12288; s_add_u32 s39, s39, s29; s_add_u32 s39, s39, {WS_W2}')
    S(k,f's_mul_i32 s35, s37, {6*12288}; s_mul_i32 s29, s3, 3072; s_add_u32 s35, s35, s29; s_add_u32 s35, s35, {WS_WO}')
    k.stamp(4)
    attn_phase(k,ld)
    wo_phase(k,ld)
    S(k,f's_mul_i32 s46, s20, {64*768}; s_add_u32 s46, s46, {WS_X1}; s_lshr_b32 s47, s20, 4; s_mul_i32 s48, s47, 9216; s_add_u32 s48, s48, {1152*4}')
    S(k,f's_mul_i32 s29, s20, {4*48*1024}; s_mul_i32 s30, s21, 6144; s_add_u32 s30, s29, s30; s_add_u32 s30, s30, {WS_G}')
    ln2(k)
    c=-2*0.7978845608028654*1.4426950408889634
    S(k,f'v_mov_b32 v{T+12}, {f2(c)}; s_mov_b32 s61, {f2(c*0.044715)}')
    for i in range(36): ld.add(w2_reg(i),39,((i%3)*48+i//3)*1024,'w2')
    gemm(k,True,epi_list(True),ld); k.stamp(13)
    assert not ld.q
    stage_out(k,30,48*1024,AF,'g')
    publish(k,3,20,21,'f')
    S(k,f's_lshl_b32 s46, s20, 2; s_add_u32 s46, s46, s3; s_mul_i32 s46, s46, {16*768}; s_mul_i32 s25, s21, 1536; s_add_u32 s25, s25, s46; s_add_u32 s25, s25, {WS_X1}; s_mul_i32 s24, s21, 96; s_add_u32 s46, s46, s24')
    S(k,f's_mul_i32 s26, s47, 9216; s_mul_i32 s27, s21, 192; s_add_u32 s26, s26, s27; s_add_u32 s26, s26, {1920*4}')
    S(k,f's_mul_i32 s28, s3, 12288; s_add_u32 s29, s29, s28; s_add_u32 s29, s29, {WS_G}')
    poll8(k,3,20,'g'); k.stamp(14)
    for kb in range(12):
        for rt in range(4): ld.add(v(64+((kb%10)*4+rt)*4,4),29,(rt*48+kb)*1024,f'G{kb}',' sc1')
    ld.issue(24)
    for kb in range(12):
        k.wvm(f'G{kb}')
        if kb==0: k.xs('f0')
        for rt in range(4):
            for ct in range(3):
                D=v(16+(rt*3+ct)*4,4)
                k.e(f'v_mfma_f32_16x16x32_bf16 {D}, {w2_reg(kb*3+ct)}, {v(64+((kb%10)*4+rt)*4,4)}, {D if kb else 0}')
            ld.issue(1)
        if kb==6: epi_loads(k,WS,25,26,lambda o,n: a(32+o,n),' sc1')
    k.xs('f1'); k.wvm('epi')
    if WBL2: S(k,f's_or_b32 s56, s21, s3; s_cmp_lg_u32 s56, 0; s_cbranch_scc1 {k.ln("nowb")}; buffer_wbl2 sc1'); k.lab('nowb')
    for i in range(20):
        if i not in (6,7): k.e(f'v_accvgpr_read_b32 v{128+i}, a{32+i}')
    reduce_epi(k,16,OS,46,128,64,'')
    k.xs('f2'); k.end(15)
    k.lab('end'); k.e('s_endpgm')
    return k
```

```python
from mega import *
import k_prep as kp
MODL=147968
CTS=12288+16
def prep_params(k,t,B):
    S(k,f's_cmp_lt_u32 s{t}, 180; s_cselect_b32 s{B}, s86, s88; s_cselect_b32 s{B+1}, s87, s89; s_cselect_b32 s{B+5}, 3072, 768; s_cselect_b32 s{B+6}, 0, 1; s_cselect_b32 s{B+7}, {WS_W1}, {WS_W2}'.replace(f's_cselect_b32 s{B+7}, {WS_W1}, {WS_W2}',f's_mov_b32 s56, {WS_W2}; s_cselect_b32 s{B+7}, {WS_W1}, s56').replace(f's_cselect_b32 s{B+5}, 3072, 768',f's_movk_i32 s56, 768; s_cselect_b32 s{B+5}, 3072, s56'))
    S(k,f's_cselect_b32 s57, 12, 48; s_cselect_b32 s58, 19, 21; s_movk_i32 s56, 180; s_cselect_b32 s56, 36, s56; s_mov_b32 s{B+2}, 1179648')
    S(k,f's_cmp_lt_u32 s{t}, 36; s_cselect_b32 s{B}, s84, s{B}; s_cselect_b32 s{B+1}, s85, s{B+1}; s_cselect_b32 s{B+5}, 768, s{B+5}; s_cselect_b32 s{B+6}, 1, s{B+6}; s_cselect_b32 s{B+7}, {WS_WO}, s{B+7}; s_cselect_b32 s56, 0, s56; s_cselect_b32 s{B+2}, 294912, s{B+2}')
    S(k,f's_and_b32 s{B+1}, s{B+1}, 0xffff; s_mov_b32 s{B+3}, 0x20000; s_sub_u32 s56, s{t}, s56; s_mul_i32 s55, s56, 43691; s_lshr_b32 s55, s55, s58; s_mul_i32 s54, s55, s57; s_sub_u32 s56, s56, s54')
    S(k,f's_lshl_b32 s54, s54, 3; s_add_u32 s54, s54, s56; s_lshl_b32 s54, s54, 10; s_add_u32 s{B+7}, s{B+7}, s54; s_lshl_b32 s{B+8}, s57, 10')
    S(k,f's_mul_i32 s{B+4}, s56, s{B+5}; s_lshl_b32 s{B+4}, s{B+4}, 5; s_lshl_b32 s55, s55, 8; s_add_u32 s{B+4}, s{B+4}, s55')
def prep_load(k,B,R,va):
    S(k,f's_sub_u32 s56, 3, s{B+6}; s_lshl_b32 s56, s{B+5}, s56; v_mul_lo_u32 v{va}, v3, s56; v_lshl_add_u32 v{va}, v2, 4, v{va}; s_mul_i32 s57, s{B+6}, 12; s_mul_i32 s57, s57, s{B+5}; s_mov_b32 s58, s{B+4}')
    for j in range(8):
        k.e(f'buffer_load_dwordx4 {v(R+4*j,4)}, v{va}, s[{B}:{B+3}], s58 offen'); k.e(f's_add_u32 s58, s58, s{B+5}')
        if j==3: k.e('s_add_u32 s58, s58, s57')
def prep_store(k,B,R,O):
    S(k,'v_lshrrev_b32 v7, 1, v2; v_mul_u32_u24 v7, 1040, v7; v_lshl_add_u32 v7, v3, 8, v7; v_and_b32 v8, 1, v2; v_lshl_add_u32 v7, v8, 7, v7; s_mul_i32 s56, s3, 8320; s_add_u32 s56, s56, 8192; v_add_u32 v7, s56, v7; v_add_u32 v8, s56, v4; s_mov_b32 s47, 0x05040100; s_mov_b32 s48, 0x07060302')
    for f in range(8):
        for p in range(4): k.e(f'v_perm_b32 v{O+4*f+p}, v{R+4*(2*p+1)+(f>>1)}, v{R+4*(2*p)+(f>>1)}, s{48 if f&1 else 47}')
        k.e(f'ds_write_b128 v7, {v(O+4*f,4)} offset:{16*f}')
    k.e('s_waitcnt lgkmcnt(0)')
    for f in range(8): k.e(f'ds_read_b128 {v(R+4*f,4)}, v8 offset:{1040*f}')
    k.e(f's_mov_b32 s56, s{B+7}')
    for f in range(8): S(k,f's_waitcnt lgkmcnt({7-f}); buffer_store_dwordx4 {v(R+4*f,4)}, v4, {W}, s56 offen sc1; s_add_u32 s56, s56, s{B+8}')
def helper(k):
    S(k,'s_mov_b32 s86, s88; s_mov_b32 s87, s89; s_mov_b32 s88, s90; s_mov_b32 s89, s91')
    k.srd(36,36,'c'); k.srd(92,92,'wmod')
    S(k,f's_cmp_lg_u32 s30, 0; s_cbranch_scc1 {k.ln("nz")}; v_lshlrev_b32 v6, 4, v0; v_mov_b32 v8, 0; v_mov_b32 v9, 0; v_mov_b32 v10, 0; v_mov_b32 v11, 0')
    for p in range(4): S(k,f's_mov_b32 s40, {WS_FL+p*4096}; buffer_store_dwordx4 v[8:11], v6, {W}, s40 offen sc1')
    k.lab('nz')
    S(k,'s_lshl_b32 s31, s30, 2; s_add_u32 s31, s31, s3; s_add_u32 s32, s31, 128; s_min_u32 s32, s32, 323; s_mov_b32 s34, s30')
    S(k,'v_lshrrev_b32 v15, 5, v1; v_mul_u32_u24 v15, 3072, v15; v_and_b32 v12, 30, v1; v_lshl_add_u32 v15, v12, 2, v15; s_min_u32 s35, s30, 23; s_lshl_b32 s35, s35, 7; s_add_u32 s35, s35, 0x5000')
    k.e(f'buffer_load_dwordx2 v[224:225], v15, {W}, s35 offen sc1')
    k.lab('modl')
    k2=K(k.name,0,0,0,0,0); kp.mod_body(k2,0,36,92,12,' sc1')
    L=[x.replace('s_sub_u32 s40, s2, 0','s_mov_b32 s40, s34') for x in k2.L]
    i=[n for n,x in enumerate(L) if 's_waitcnt vmcnt(5)' in x][0]
    i0=[n for n,x in enumerate(L) if 'v_mov_b32 v64, 0' in x][0]
    k.L+=L[:i0]; prep_params(k,31,68); prep_params(k,32,20); k.L+=L[i0:i]
    S(k,f's_cmp_ge_u32 s34, 56; s_cbranch_scc1 {k.ln("nopl")}; s_cmp_lt_u32 s34, 24; s_cselect_b32 s56, s3, 1; s_cmp_eq_u32 s56, 0; s_cbranch_scc1 {k.ln("nopl")}'); prep_load(k,68,96,13); prep_load(k,20,128,14); k.e('s_waitcnt vmcnt(16)'); k.e(f's_branch {k.ln("npl2")}')
    k.lab('nopl'); k.e('s_waitcnt vmcnt(0)'); k.lab('npl2')
    j=[n for n,x in enumerate(L) if 'moddone:' in x][0]
    k.L+=[x for x in L[i:j] if 's_waitcnt vmcnt' not in x]
    S(k,f's_cmp_ge_u32 s34, 24; s_cbranch_scc1 {k.ln("moddone")}; s_nop 1; v_mov_b32_dpp v17, v16 quad_perm:[1,1,3,3] row_mask:0xf bank_mask:0xf; v_lshrrev_b32 v224, 16, v16; v_or_b32 v224, v224, v17; v_add_u32 v225, 1, v225; s_mov_b32 exec_lo, 0x55555555; s_mov_b32 exec_hi, 0x55555555; buffer_store_dwordx2 v[224:225], v15, {W}, s35 offen sc1; s_waitcnt vmcnt(0); v_mov_b32 v10, 0; v_mov_b32 v11, 1; s_mov_b64 exec, 1; buffer_atomic_add v11, v10, {D}, 0 offen offset:64 sc0 sc1; s_waitcnt vmcnt(0); v_readfirstlane_b32 s56, v11; v_mov_b32 v11, 1; s_cmp_lg_u32 s56, 23; s_cbranch_scc1 {k.ln("moddone")}; buffer_store_dword v11, v10, {D}, 0 offen offset:128 sc1')
    k.lab('moddone'); k.e('s_mov_b64 exec, -1'); k.stamp(1)
    S(k,f's_cmp_ge_u32 s34, 64; s_cbranch_scc1 {k.ln("m2")}; s_cmp_lt_u32 s34, 24; s_cselect_b32 s56, s3, 1; s_cmp_lg_u32 s56, 0; s_cbranch_scc1 {k.ln("late")}'); prep_load(k,68,96,13); k.lab('late')
    ticket(k,'i')
    S(k,f's_cmp_ge_u32 s34, 56; s_cbranch_scc1 {k.ln("np2")}; s_waitcnt vmcnt(0)')
    prep_store(k,68,96,160)
    S(k,f's_sub_u32 s56, s31, 96; s_cmp_ge_u32 s56, 100; s_cbranch_scc1 {k.ln("np2")}'); prep_store(k,20,128,192); k.lab('np2')
    S(k,f's_waitcnt vmcnt(0); s_barrier; s_cmp_lg_u32 s3, 0; s_cbranch_scc1 {k.ln("hd")}; v_mov_b32 v10, 0; v_mov_b32 v11, 1; s_mov_b64 exec, 1; buffer_atomic_add v11, v10, {D}, 0 offen offset:68 sc0 sc1; s_waitcnt vmcnt(0); v_readfirstlane_b32 s56, v11; v_mov_b32 v11, 1; s_cmp_lg_u32 s56, 63; s_cbranch_scc1 {k.ln("hd")}; buffer_store_dword v11, v10, {D}, 0 offen offset:132 sc1')
    k.lab('hd'); k.e('s_mov_b64 exec, -1')
    S(k,f's_add_u32 s34, s34, 8; s_cmp_ge_u32 s34, 64; s_cbranch_scc1 {k.ln("modl")}; s_branch {k.ln("m3")}')
    k.lab('m2')
    S(k,f's_cmp_lg_u32 s3, 0; s_cbranch_scc1 {k.ln("m3")}; s_waitcnt vmcnt(0); v_mov_b32 v10, 0; v_mov_b32 v11, 1; s_mov_b64 exec, 1; buffer_atomic_add v11, v10, {D}, 0 offen offset:136 sc1')
    k.lab('m3'); k.e('s_mov_b64 exec, -1')
    dpoll(k,'v_mov_b32 v10, 128',1,'w',False)
def dpoll(k,voff,val,tag,bar=True):
    S(k,f's_cmp_lg_u32 s3, 0; s_cbranch_scc1 {k.ln("dd"+tag)}; {voff}; s_mov_b32 s57, 0x100000')
    k.lab('dl'+tag)
    S(k,f'buffer_load_dword v11, v10, {D}, 0 offen sc1; s_waitcnt vmcnt(0); v_cmp_ne_u32 vcc, {val}, v11; s_sub_u32 s57, s57, 1; s_cbranch_scc1 {k.ln("dd"+tag)}; s_cbranch_vccz {k.ln("dd"+tag)}; s_sleep 2; s_branch {k.ln("dl"+tag)}')
    k.lab('dd'+tag)
    if bar: k.e('s_barrier')
def qkv_front(k):
    R=64; PO=208; T=224; XH=64
    S(k,f'v_mul_u32_u24 v6, 768, v2; v_lshl_add_u32 v6, v3, 4, v6; s_mul_i32 s50, s3, {16*768}; s_mul_i32 s46, s20, {64*768}; s_add_u32 s50, s50, s46')
    for f in range(12): k.vmem(f'buffer_load_dwordx4 {v(X+4*f,4)}, v6, s[8:11], s50 offen offset:{64*f}','x%d'%f)
    S(k,'v_lshrrev_b32 v7, 3, v1; v_mul_u32_u24 v8, 2304, v7; v_and_b32 v9, 7, v1; v_and_b32 v7, 2, v7; v_xor_b32 v9, v9, v7; v_xor_b32 v7, 4, v9; v_lshl_add_u32 v12, v9, 4, v8; v_lshl_add_u32 v13, v7, 4, v8')
    S(k,f's_mul_i32 s51, s3, {96*2304}; s_mul_i32 s52, s21, 384; s_add_u32 s51, s51, s52; s_mul_i32 s52, s3, 12288; s_mov_b32 s55, 0x3f803f80')
    S(k,'s_mul_i32 s60, s33, 3; s_lshr_b32 s60, s60, 2; s_lshl_b32 s60, s60, 1')
    def ldu(n):
        S(k,f's_lshl_b32 s44, s60, 10; s_add_u32 s44, s44, s52; s_mul_i32 s45, s60, {8*2304}; s_add_u32 s45, s45, s51; s_add_u32 s60, s60, 1; s_cmp_eq_u32 s60, 12; s_cselect_b32 s60, 0, s60')
        for cg in range(3):
            S(k,f's_add_u32 m0, s44, {cg*49152}; s_add_u32 s59, s45, {cg*128}'); k.vmem(f'buffer_load_dwordx4 v{12+(n&1)}, s[80:83], s59 offen lds','u')
    S(k,f's_lshr_b32 s53, s20, 4; s_mul_i32 s53, s53, 3072; s_min_u32 s54, s3, 2; s_lshl_b32 s54, s54, 10; s_add_u32 s53, s53, s54; s_add_u32 s53, s53, 0x5000')
    k.vmem(f'buffer_load_dwordx4 v[232:235], v4, {W}, s53 offen sc1','snap')
    for n in range(6): ldu(n)
    for i in range(8): k.e(f'v_mov_b32 v{T+i}, 0')
    for f in range(12):
        if f%4==0: k.wvm('x%d'%(f+3))
        for p in range(4): k.e(f'v_dot2c_f32_bf16 v{T+p}, s55, v{X+4*f+p}'); k.e(f'v_dot2c_f32_bf16 v{T+4+p}, v{X+4*f+p}, v{X+4*f+p}')
    S(k,f's_nop 2; v_add_f32 v{T}, v{T}, v{T+1}; v_add_f32 v{T+2}, v{T+2}, v{T+3}; v_add_f32 v{T+4}, v{T+4}, v{T+5}; v_add_f32 v{T+6}, v{T+6}, v{T+7}; v_add_f32 v{T}, v{T}, v{T+2}; v_add_f32 v{T+1}, v{T+4}, v{T+6}')
    xred(k,[T,T+1],[T+2,T+3],'v_add_f32')
    S(k,f'v_mul_f32 v{T}, 0x3b2aaaab, v{T}; v_mul_f32 v{T+1}, 0x3b2aaaab, v{T+1}; v_fma_f32 v{T+1}, -v{T}, v{T}, v{T+1}; v_max_f32 v{T+1}, 0, v{T+1}; v_add_f32 v{T+1}, 0x3727c5ac, v{T+1}')
    S(k,f'v_rsq_f32 v{T+2}, v{T+1}; s_nop 0; v_mul_f32 v{T+4}, v{T}, v{T+2}; v_sub_f32 v{T+4}, 0, v{T+4}')
    def xhat(f):
        for p in range(4): S(k,f'v_lshlrev_b32 v{XH+8*f+2*p}, 16, v{X+4*f+p}; v_and_b32 v{XH+8*f+2*p+1}, 0xffff0000, v{X+4*f+p}')
        for p in range(8): k.e(f'v_fma_f32 v{XH+8*f+p}, v{XH+8*f+p}, v{T+2}, v{T+4}')
    k.stamp(1)
    for n in range(6): ldu(6+n); xhat(2*n); xhat(2*n+1)
    k.e(f'buffer_load_dwordx4 v[236:239], v4, {W}, s53 offen sc1')
    S(k,'v_bfe_u32 v7, v1, 2, 2; v_lshlrev_b32 v8, 7, v7; v_lshl_add_u32 v8, v3, 10, v8; v_and_b32 v9, 3, v1; v_lshl_add_u32 v8, v9, 3, v8; v_lshrrev_b32 v7, 1, v7; v_and_b32 v9, 1, v3; v_lshl_add_u32 v7, v9, 1, v7; s_mul_i32 s56, s3, 3')
    for ct in range(3): S(k,f's_add_u32 s57, s56, {ct}; s_and_b32 s58, s57, 3; s_lshr_b32 s57, s57, 2; s_mul_i32 s57, s57, 49152; v_xor_b32 v9, s58, v7; v_lshl_add_u32 v9, v9, 5, v8; v_add_u32 v{244+ct}, s57, v9')
    if True:
        if True:
            k.xs('q0'); S(k,'v_mov_b32 v10, 128; s_mov_b32 s57, 0x100000; s_waitcnt vmcnt(0)'); k.xs('q1'); k.e(f's_branch {k.ln("gc")}'); k.lab('gl')
            S(k,f's_sub_u32 s57, s57, 1; s_cbranch_scc1 {k.ln("gd")}; s_mov_b32 s56, 0; s_and_b32 s58, s57, 7; s_cbranch_scc1 {k.ln("gn")}; buffer_load_dword v11, v10, {D}, 0 offen sc1; s_waitcnt vmcnt(0); v_readfirstlane_b32 s56, v11')
            k.lab('gn')
            S(k,f'buffer_load_dwordx4 v[236:239], v4, {W}, s53 offen sc1; s_waitcnt vmcnt(0); s_cmp_eq_u32 s56, 1; s_cbranch_scc1 {k.ln("gd")}')
            k.lab('gc')
            S(k,f'v_cmp_eq_u32 vcc, v233, v237; v_cmp_eq_u32 s[58:59], v235, v239; s_or_b64 vcc, vcc, s[58:59]; s_cbranch_vccnz {k.ln("gl")}')
            k.lab('gd')
            S(k,f'v_lshlrev_b32 v240, 16, v236; v_and_b32 v241, 0xffff0000, v236; v_lshlrev_b32 v242, 16, v238; v_and_b32 v243, 0xffff0000, v238; s_add_u32 s54, s54, {MODL}; v_add_u32 v10, s54, v4; ds_write_b128 v10, v[240:243]')
    ticket(k,'q'); k.stamp(2); k.xs('q2')
    S(k,'s_waitcnt lgkmcnt(0); s_barrier')
    k.vm=[]; k.lg=[]
    S(k,f's_lshr_b32 s47, s20, 4; v_lshlrev_b32 v7, 5, v3; v_add_u32 v7, {MODL}, v7; s_mul_i32 s50, s3, 12288; v_add_u32 v8, s50, v4')
    def rdmod(f):
        for q in range(4): k.ds(f'ds_read_b128 {v(160+(f%3)*16+4*q,4)}, v7 offset:{f*128+(q&1)*16+(q>>1)*1536}',f'm{f}')
    rdmod(0); rdmod(1)
    for f in range(12):
        k.wlg(f'm{f}')
        if f<10: rdmod(f+2)
        for ct in range(3):
            for h in range(2): k.ds(f'ds_read_b64_tr_b16 {a((f*3+ct)*4+2*h,2)}, v{244+ct} offset:{f*4096+h*512}','b')
        o=160+(f%3)*16; t=XH+8*f
        for p in range(8): k.e(f'v_fma_f32 v{t+p}, v{t+p}, v{o+8+p}, v{o+p}')
        for p in range(4): k.e(f'v_cvt_pk_bf16_f32 v{X+4*f+p}, v{t+2*p}, v{t+2*p+1}')
    k.xs('q3'); S(k,'s_waitcnt lgkmcnt(0); s_barrier')
    for f in range(12): k.e(f'ds_write_b128 v8, {v(X+4*f,4)} offset:{f*1024}')
    stage_setup(k)
    S(k,'s_waitcnt lgkmcnt(0); s_barrier'); k.lg=[]
```

```python
import sys, base
if len(sys.argv)>2: base.DIAG.update({'mega_kernel':1})
from base import *
from mega2 import *
k=k_mega()
if len(sys.argv)>2:
    import re
    k.L=[re.sub(r'(v_lsh[lr]rev_b32 v\d+, \d+|v_and_b32 v\d+, \d+), v0$',r'\1, v247',x) if n>50 else x for n,x in enumerate(k.L)]
L=[k]
if os.environ.get('JUNK'):
    j=K('junk_kernel',512,256,0,32,0); j.e('.rept 24000'); j.e('v_add3_u32 v1, v1, v2, v3'); j.e('.endr'); j.e('s_endpgm'); L=[j,k]
build(L,sys.argv[1])
```

```python
from base import *
import struct
f2=lambda x: hex(struct.unpack('<I',struct.pack('<f',x))[0])
WS_FL=0x8000
XS,WS,OS=8,12,16
W='s[12:15]'
def S(k,expr_list):
    for t in expr_list.split(';'):
        t=t.strip()
        if t: k.e(t)
def dual(k,fn,tag,local):
    if not local: fn(' sc1'); return
    S(k,f's_cmp_eq_u32 s63, 1; s_cbranch_scc1 {k.ln("df"+tag)}'); fn(' sc1'); k.e(f's_branch {k.ln("de"+tag)}')
    k.lab('df'+tag); fn(''); k.lab('de'+tag)
def publish(k,phase,s_grp,s_j,tag):
    k.e('s_waitcnt vmcnt(0)'); k.vm=[]; k.xs('p%d'%phase); k.e('s_barrier')
    S(k,f's_cmp_lg_u32 s3, 0; s_cbranch_scc1 {k.ln("pub"+tag)}; s_lshl_b32 s56, s{s_grp}, 7; s_lshl_b32 s57, s{s_j}, 2; s_add_u32 s56, s56, s57; s_add_u32 s56, s56, {WS_FL+phase*4096}')
    S(k,'v_mov_b32 v10, 0; v_mov_b32 v11, 1; s_mov_b64 exec, 1')
    dual(k,lambda sc: k.e(f'buffer_store_dword v11, v10, {W}, s56 offen{sc}'),'p'+tag,phase>0)
    k.e('s_mov_b64 exec, -1')
    k.lab('pub'+tag)
def poll(k,phase,tag):
    S(k,f's_cmp_lg_u32 s3, 0; s_cbranch_scc1 {k.ln("pd"+tag)}; s_mov_b32 s56, {WS_FL+phase*4096}; s_mov_b32 s57, 0x100000')
    k.lab('pl'+tag)
    S(k,f'buffer_load_dword v11, v10, {W}, s56 offen sc1; s_waitcnt vmcnt(0); v_cmp_ne_u32 vcc, 1, v11; s_sub_u32 s57, s57, 1; s_cbranch_scc1 {k.ln("pd"+tag)}; s_cbranch_vccz {k.ln("pd"+tag)}; s_sleep {2 if phase==0 else 1}; s_branch {k.ln("pl"+tag)}')
    k.lab('pd'+tag); k.e('s_barrier')
def poll8(k,phase,s_grp,tag):
    S(k,f'v_and_b32 v10, 7, v1; v_lshlrev_b32 v10, 2, v10; s_lshl_b32 s58, s{s_grp}, 7; v_add_u32 v10, s58, v10')
    poll(k,phase,tag)
class Loads:
    def __init__(s,k,sreg): s.k=k; s.q=[]; s.sreg=sreg; s.pool={}
    def add(s,dst,sb,off,tag,fl=' sc1'): s.q.append((dst,sb,off,tag,fl))
    def issue(s,n=999):
        while n and s.q:
            dst,sb,off,tag,fl=s.q.pop(0); n-=1
            key=(sb,off>>12)
            if key not in s.pool:
                if len(s.pool)<16: r=64+len(s.pool)
                else: r=s.pool.pop(next(iter(s.pool)))
                s.pool[key]=r; s.k.e(f's_add_u32 s{r}, s{sb}, {off&~4095}')
            s.k.vmem(f'buffer_load_dwordx4 {dst}, v4, {W}, s{s.pool[key]} offen offset:{off&4095}{fl}',tag)
    def reset(s): s.pool={('x',i):64+i for i in range(16)}
X=16; ACC=64; AF=112; MT=144; T=160
def ln_phase(k,xsrd,xsoff,modoff,fl,ld,pre,per):
    S(k,f's_lshl_b32 s50, s3, 10; s_add_u32 s51, s50, 49152; s_mov_b32 m0, s51; s_add_u32 s50, s50, s{modoff}')
    k.vmem(f'buffer_load_dwordx4 v4, {W}, s50 offen sc1 lds','mod')
    S(k,f'v_mul_u32_u24 v6, 768, v2; v_lshl_add_u32 v6, v3, 4, v6; s_mul_i32 s50, s3, {16*768}; s_add_u32 s50, s50, s{xsoff}; s_add_u32 s51, s50, 4096; s_add_u32 s52, s50, 8192')
    for f in range(12):
        if fl: k.vmem(f'buffer_load_dwordx4 {v(X+4*f,4)}, v4, {W}, s{50+f//4} offen offset:{1024*(f%4)}{fl}','x%d'%f)
        else: k.vmem(f'buffer_load_dwordx4 {v(X+4*f,4)}, v6, s[{xsrd}:{xsrd+3}], s50 offen offset:{64*f}','x%d'%f)
    ld.issue(pre)
    k.e('s_mov_b32 s55, 0x3f803f80')
    for i in range(8): k.e(f'v_mov_b32 v{T+i}, 0')
    S(k,'v_lshlrev_b32 v7, 5, v3; v_add_u32 v7, 49152, v7; s_mul_i32 s50, s3, 12288; v_add_u32 v8, s50, v4')
    for f in range(12):
        if f%4==0: k.wvm('x%d'%(f+3))
        if f==0: k.xs('l1')
        for p in range(4):
            k.e(f'v_dot2c_f32_bf16 v{T+p}, s55, v{X+4*f+p}'); k.e(f'v_dot2c_f32_bf16 v{T+4+p}, v{X+4*f+p}, v{X+4*f+p}')
    k.xs('l2'); k.e('s_barrier')
    def rdmod(f):
        o=MT+(f&1)*16+32
        for q in range(4): k.ds(f'ds_read_b128 {v(o+4*q,4)}, v7 offset:{f*128+(q&1)*16+(q>>1)*1536}',f'm{f}')
    rdmod(0); ld.issue(per); stage_setup(k)
    S(k,f'v_add_f32 v{T}, v{T}, v{T+1}; v_add_f32 v{T+2}, v{T+2}, v{T+3}; v_add_f32 v{T+4}, v{T+4}, v{T+5}; v_add_f32 v{T+6}, v{T+6}, v{T+7}; v_add_f32 v{T}, v{T}, v{T+2}; v_add_f32 v{T+1}, v{T+4}, v{T+6}')
    xred(k,[T,T+1],[T+2,T+3],'v_add_f32')
    S(k,f'v_mul_f32 v{T}, 0x3b2aaaab, v{T}; v_mul_f32 v{T+1}, 0x3b2aaaab, v{T+1}; v_fma_f32 v{T+1}, -v{T}, v{T}, v{T+1}; v_max_f32 v{T+1}, 0, v{T+1}; v_add_f32 v{T+1}, 0x3727c5ac, v{T+1}')
    S(k,f'v_rsq_f32 v{T+2}, v{T+1}; s_nop 0; v_mul_f32 v{T+4}, v{T}, v{T+2}; v_sub_f32 v{T+4}, 0, v{T+4}')
    k.xs('l3')
    for f in range(12):
        if f<11: rdmod(f+1)
        ld.issue(per)
        o=MT+(f&1)*16+32; t=MT+(f&1)*8
        for p in range(4):
            k.e(f'v_lshlrev_b32 v{t+2*p}, 16, v{X+4*f+p}'); k.e(f'v_and_b32 v{t+2*p+1}, 0xffff0000, v{X+4*f+p}')
        for p in range(4): k.e(f'v_pk_fma_f32 {v(t+2*p,2)}, {v(t+2*p,2)}, {v(T+2,2)}, {v(T+4,2)} op_sel_hi:[1,0,0]')
        k.wlg(f'm{f}')
        for p in range(4): k.e(f'v_pk_fma_f32 {v(t+2*p,2)}, {v(t+2*p,2)}, {v(o+8+2*p,2)}, {v(o+2*p,2)}')
        for p in range(4): k.e(f'v_cvt_pk_bf16_f32 v{X+4*f+p}, v{t+2*p}, v{t+2*p+1}')
        k.ds(f'ds_write_b128 v8, {v(X+4*f,4)} offset:{f*1024}','w')
    ld.issue()
    k.e('s_waitcnt lgkmcnt(0)'); k.e('s_barrier'); k.lg=[]
def gemm(k,trans,epi=None,ld=None):
    seq=[(rt,kb) for rt in range(4) for kb in range(12)]
    def rd(n):
        rt,kb=seq[n]; k.ds(f'ds_read_b128 {v(AF+(n%8)*4,4)}, v4 offset:{(rt*12+kb)*1024}',f'a{n}')
    for n in range(6): rd(n)
    pend=[]
    for n,(rt,kb) in enumerate(seq):
        if n+6<48: rd(n+6)
        if kb==3 and rt>0 and epi: pend=epi(rt-1); per=-(-len(pend)//27)
        k.wlg(f'a{n}')
        for ct in range(3):
            A=v(AF+(n%8)*4,4); B=a((kb*3+ct)*4,4); D=v(ACC+(rt*3+ct)*4,4); C=D if kb else '0'
            k.e(f'v_mfma_f32_16x16x32_bf16 {D}, {B}, {A}, {C}' if trans else f'v_mfma_f32_16x16x32_bf16 {D}, {A}, {B}, {C}')
            for _ in range(per if pend else 0):
                if pend:
                    t=pend.pop(0)
                    k.ds(t,'e') if t.startswith('ds_') else k.e(t)
        if ld and n%4!=3: ld.issue(1)
    assert not pend
    k.e('s_nop 7')
    if epi:
        for t in epi(3): k.e(t)
def epi_list(act):
    def f(rt):
        kk=K('tmp',0,0,0,0,0)
        if act:
            x=ACC+rt*12
            for i in range(12): kk.e(f'v_fma_f32 v{x+i}, v{x+i}, v{220+rt}, v{208+i}')
            for op in ('v_mul_f32 v{t}, v{x}, v{x}','v_fma_f32 v{t}, v{t}, s61, v%d'%(T+12),'v_mul_f32 v{t}, v{t}, v{x}','v_exp_f32 v{t}, v{t}','v_add_f32 v{t}, 1.0, v{t}','v_rcp_f32 v{t}, v{t}','v_mul_f32 v{x}, v{x}, v{t}'):
                for i in range(12): kk.e(op.format(t=T+i,x=x+i))
        for ct in range(3): stage_put(kk,ACC+(rt*3+ct)*4,rt,ct)
        return [t.strip() for t in kk.L]
    return f
def gelu4(k,x,t):
    for op in ('v_mul_f32 v{t}, v{x}, v{x}','v_fma_f32 v{t}, v{t}, s61, v%d'%(T+12),'v_mul_f32 v{t}, v{t}, v{x}','v_exp_f32 v{t}, v{t}','v_add_f32 v{t}, 1.0, v{t}','v_rcp_f32 v{t}, v{t}','v_mul_f32 v{x}, v{x}, v{t}'):
        for i in range(4): k.e(op.format(t=t+i,x=x+i))
STG=65536
def stage_setup(k):
    k.e('s_mul_i32 s56, s3, 3')
    for ct in range(3):
        S(k,f's_add_u32 s57, s56, {ct}; s_lshr_b32 s58, s57, 1; s_lshl_b32 s58, s58, 10; s_and_b32 s57, s57, 1; s_lshl_b32 s57, s57, 3; s_add_u32 s58, s58, s57; s_add_u32 s58, s58, {STG}; v_add_u32 v{12+ct}, s58, v4')
    S(k,f's_mul_i32 s58, s3, 6144; s_add_u32 s58, s58, {STG}; v_add_u32 v15, s58, v4')
def stage_put(k,x,rt,ct):
    k.e(f'v_cvt_pk_bf16_f32 v{x}, v{x}, v{x+1}'); k.e(f'v_cvt_pk_bf16_f32 v{x+1}, v{x+2}, v{x+3}')
    k.e(f'ds_write_b64 v{12+ct}, {v(x,2)} offset:{rt*6144}')
def stage_out(k,sbase,rtstride,R,tag=None):
    S(k,f's_mul_i32 s52, s3, {rtstride}; s_add_u32 s52, s52, s{sbase}; s_add_u32 s53, s52, 4096; s_waitcnt lgkmcnt(0); s_barrier')
    for f in range(6): k.e(f'ds_read_b128 {v(R+4*f,4)}, v15 offset:{f*1024}')
    def st(sc):
        for f in range(6):
            k.e(f's_waitcnt lgkmcnt({5-f})')
            k.e(f'buffer_store_dwordx4 {v(R+4*f,4)}, v4, {W}, s{52+f//4} offen offset:{(f%4)*1024}{sc}')
    dual(k,st,'s%s'%tag,tag is not None)
def epi_half(k,sbase,rtstride,act,tag=None):
    for rt in range(4):
        for ct in range(3):
            x=ACC+(rt*3+ct)*4
            if act: gelu4(k,x,T+(ct&1)*4)
            stage_put(k,x,rt,ct)
    if act: k.xs('g1')
    stage_out(k,sbase,rtstride,AF,tag)
    if act: k.xs('g2')
def epi_loads(k,rsrd,s_res,s_gate,dst,fl):
    S(k,'v_mul_u32_u24 v6, 768, v2; v_lshl_add_u32 v6, v3, 3, v6; v_lshlrev_b32 v7, 4, v3')
    S(k,'v_lshrrev_b32 v12, 1, v3; v_lshlrev_b32 v12, 8, v12; v_lshl_add_u32 v12, v2, 4, v12; v_and_b32 v13, 1, v3; v_lshl_add_u32 v12, v13, 3, v12')
    for i in range(3): k.vmem(f'buffer_load_dwordx2 {dst(2*i,2)}, v12, s[{rsrd}:{rsrd+3}], s{s_res} offen offset:{512*i}{fl}','epi')
    for i in range(3): k.vmem(f'buffer_load_dwordx4 {dst(8+4*i,4)}, v7, {W}, s{s_gate} offen offset:{64*i} sc1','epi')
def reduce_epi(k,AC,osrd,s_out,E,T,sc):
    S(k,'s_mul_i32 s50, s3, 12288; v_add_u32 v8, s50, v4; s_mul_i32 s50, s3, 3072; v_add_u32 v9, s50, v4; s_nop 4')
    for t in range(12): k.e(f'ds_write_b128 v8, {v(AC+4*t,4)} offset:{t*1024}')
    k.e('s_waitcnt lgkmcnt(0)'); k.e('s_barrier')
    for i in range(3):
        for w in range(4): k.e(f'ds_read_b128 {v(T+(i*4+w)*4,4)}, v9 offset:{w*12288+i*1024}')
    for i in range(3):
        b=T+i*16; x=E+2*i; g=E+8+4*i; t=T+48
        S(k,f'v_lshlrev_b32 v{t}, 16, v{x}; v_and_b32 v{t+1}, 0xffff0000, v{x}; v_lshlrev_b32 v{t+2}, 16, v{x+1}; v_and_b32 v{t+3}, 0xffff0000, v{x+1}; s_waitcnt lgkmcnt({8-4*i})')
        for h in range(4): k.e(f'v_add_f32 v{b+h}, v{b+h}, v{b+4+h}'); k.e(f'v_add_f32 v{b+8+h}, v{b+8+h}, v{b+12+h}')
        for h in range(4): k.e(f'v_add_f32 v{b+h}, v{b+h}, v{b+8+h}')
        for h in range(4): k.e(f'v_fma_f32 v{b+h}, v{b+h}, v{g+h}, v{t+h}')
        k.e(f'v_cvt_pk_bf16_f32 v{b}, v{b}, v{b+1}'); k.e(f'v_cvt_pk_bf16_f32 v{b+1}, v{b+2}, v{b+3}')
        k.vmem(f'buffer_store_dwordx2 {v(b,2)}, v6, s[{osrd}:{osrd+3}], s{s_out} offen offset:{32*i}{sc}')
def wo_reg(i): return a(192+4*i,4) if i<16 else v(248+4*(i-16),4)
def w2_reg(i): return a(144+4*i,4) if i<28 else v(224+4*(i-28),4)

D='s[96:99]'
def ticket(k,tag):
    S(k,f's_cmp_lg_u32 s3, 0; s_cbranch_scc1 {k.ln("tk"+tag)}; s_lshl_b32 s56, s33, 2; v_mov_b32 v5, 1; v_mov_b32 v10, 0; s_mov_b64 exec, 1; buffer_atomic_add v5, v10, {D}, s56 offen sc0 sc1; s_mov_b64 exec, -1')
    k.lab('tk'+tag)
def roles(k):
    S(k,f's_cmp_lg_u32 s3, 0; s_cbranch_scc1 {k.ln("r1")}; v_readfirstlane_b32 s26, v5; s_mov_b32 s25, s33; s_mov_b32 s27, 1; s_cmp_lt_u32 s26, 32; s_cbranch_scc1 {k.ln("r0")}')
    S(k,'v_and_b32 v10, 7, v1; v_lshlrev_b32 v10, 2, v10; s_mov_b32 s57, 0x100000')
    k.lab('rl')
    S(k,f'buffer_load_dword v11, v10, {D}, 0 offen sc1; s_waitcnt vmcnt(0); s_mov_b32 s28, 0')
    for x in range(8): S(k,f'v_readlane_b32 s{40+x}, v11, {x}; s_nop 0; s_add_u32 s28, s28, s{40+x}')
    S(k,f's_sub_u32 s57, s57, 1; s_cbranch_scc1 {k.ln("rg")}; s_cmp_lt_u32 s28, 256; s_cbranch_scc1 {k.ln("rl")}')
    k.lab('rg')
    k.e('s_sub_u32 s26, s26, 32')
    for x in range(8): S(k,f's_max_u32 s28, s{40+x}, 32; s_sub_u32 s28, s28, 32; s_cmp_lt_u32 {x}, s33; s_cselect_b32 s28, s28, 0; s_add_u32 s26, s26, s28')
    k.e('s_mov_b32 s27, 0')
    for x in range(8):
        S(k,f's_min_u32 s28, s{40+x}, 32; s_sub_u32 s29, 32, s28; s_mov_b32 s25, {x}; s_cmp_lt_u32 s26, s29; s_cselect_b32 s28, s28, 0; s_cbranch_scc1 {k.ln("rf")}; s_sub_u32 s26, s26, s29')
    k.lab('rf'); S(k,'s_add_u32 s26, s26, s28; s_and_b32 s26, s26, 31')
    k.lab('r0')
    S(k,f'v_mov_b32 v10, s25; v_mov_b32 v11, s26; v_mov_b32 v12, s27; v_mov_b32 v13, {STG+24576}; ds_write_b96 v13, v[10:12]; s_waitcnt lgkmcnt(0)')
    k.lab('r1')
    S(k,f's_barrier; v_mov_b32 v13, {STG+24576}; ds_read_b96 v[10:12], v13; s_waitcnt lgkmcnt(0); v_readfirstlane_b32 s25, v10; v_readfirstlane_b32 s26, v11; v_readfirstlane_b32 s63, v12')
```

```python
from mega import *
from start import *
MAP2=int(os.environ.get('MAP2','1'))
WBL2=int(os.environ.get('WBL2','1'))
def attn_phase(k,ld):
    Sx=16; O=80; QF=128; T=160
    S(k,f's_lshl_b32 s25, s22, 6; s_lshl_b32 s26, s24, 2; s_add_u32 s26, s26, s25; s_add_u32 s26, s26, s3; s_mul_i32 s26, s26, 6144; s_add_u32 s26, s26, {WS_Q}')
    S(k,f's_lshl_b32 s29, s23, 4; s_add_u32 s29, s29, s25; s_lshl_b32 s27, s3, 2; s_add_u32 s29, s29, s27; s_mul_i32 s29, s29, 6144; s_add_u32 s29, s29, {WS_K}')
    S(k,f's_lshl_b32 s34, s22, 5; s_lshl_b32 s27, s23, 3; s_add_u32 s34, s34, s27; s_mul_i32 s34, s34, 12288; s_mul_i32 s27, s3, 3072; s_add_u32 s34, s34, s27; s_add_u32 s34, s34, {WS_V}')
    S(k,'s_lshr_b32 s40, s22, 1; s_lshl_b32 s40, s40, 4; s_and_b32 s41, s22, 1; s_lshl_b32 s42, s23, 2; s_add_u32 s42, s42, s40; s_add_u32 s43, s40, s24')
    S(k,'v_and_b32 v10, 3, v1; v_add_u32 v10, s42, v10; v_lshlrev_b32 v10, 7, v10; v_lshrrev_b32 v11, 2, v1; v_lshl_add_u32 v10, v11, 3, v10; s_lshl_b32 s44, s41, 2; s_add_u32 s45, s44, 8; v_add_u32 v10, s45, v10')
    S(k,'s_lshl_b32 s45, s43, 7; s_add_u32 s45, s45, s44; v_mov_b32 v11, s45; v_cmp_gt_u32 vcc, 8, v1; s_nop 1; v_cndmask_b32 v10, v11, v10, vcc')
    S(k,'s_mul_i32 s27, s3, 6144; s_mov_b32 m0, s27; s_add_u32 s28, s26, 4096')
    poll(k,0,'a'); k.stamp(5)
    for i in range(4): k.vmem(f'buffer_load_dwordx4 v4, {W}, s26 offen offset:{i*1024} sc1 lds','q')
    S(k,'s_add_u32 s27, s27, 4096; s_mov_b32 m0, s27; s_nop 0')
    for i in range(2): k.vmem(f'buffer_load_dwordx4 v4, {W}, s28 offen offset:{i*1024} sc1 lds','q')
    k.e('v_mov_b32 v9, 132'); k.vmem('buffer_load_dwordx2 v[6:7], v9, s[96:99], 0 offen sc1','hd')
    for kb in range(6):
        for kt in range(4): ld.add(a((kb*4+kt)*4,4),29,kt*6144+kb*1024,f'K{kb}',' sc1')
    for j in range(8):
        for i in range(3): ld.add(a(96+(j*3+i)*4,4),34,j*12288+i*1024,f'V{j}',' sc1')
    ld.issue(24)
    k.wvm('q'); k.e('s_barrier')
    def rdq(kb):
        for qt in range(4): k.ds(f'ds_read_b128 {v(QF+(kb&1)*16+4*qt,4)}, v4 offset:{(qt*6+kb)*1024}',f'q{kb}_{qt}')
    rdq(0)
    for kb in range(6):
        if kb<5: rdq(kb+1)
        k.wvm(f'K{kb}')
        for qt in range(4):
            k.wlg(f'q{kb}_{qt}')
            for kt in range(4):
                Dd=v(Sx+(qt*4+kt)*4,4)
                k.e(f'v_mfma_f32_16x16x32_bf16 {Dd}, {a((kb*4+kt)*4,4)}, {v(QF+(kb&1)*16+4*qt,4)}, {Dd if kb else 0}')
            ld.issue(1)
    k.stamp(6)
    k.e('s_mov_b32 s57, 0x100000'); k.lab('hl')
    S(k,f'v_readfirstlane_b32 s56, v6; v_readfirstlane_b32 s58, v7; s_add_u32 s56, s56, s58; s_cmp_eq_u32 s56, 9; s_cbranch_scc1 {k.ln("hk")}; s_sub_u32 s57, s57, 1; s_cbranch_scc1 {k.ln("hk")}; s_sleep 2; buffer_load_dwordx2 v[6:7], v9, s[96:99], 0 offen sc1; s_waitcnt vmcnt(0); s_branch {k.ln("hl")}')
    k.lab('hk')
    S(k,f's_lshr_b32 s56, s20, 4; s_mul_i32 s56, s56, 9216; s_lshl_b32 s57, s3, 10; s_add_u32 s56, s56, s57; s_add_u32 s56, s56, {1152*4}; s_lshr_b32 s58, s20, 4; s_mul_i32 s58, s58, 4608; s_add_u32 s58, s58, {0xC000+2304}; s_cmp_eq_u32 s3, 3; s_cselect_b32 s56, s58, s56; s_add_u32 m0, s57, 92160; s_nop 0')
    k.vmem(f'buffer_load_dwordx4 v4, {W}, s56 offen sc1 lds','mod')
    for ct in range(6):
        for kb in range(3): ld.add(wo_reg(kb*6+ct),35,ct*12288+kb*1024,'wo')
    S(k,'s_lshl_b32 s56, s33, 2; v_mov_b32 v5, 0'); k.vmem(f'buffer_load_dword v5, v5, s[96:99], s56 offen sc1','cnt')
    for ct in range(3):
        for kb in range(8): ld.add(a((kb*3+ct)*4,4),38,(ct*12+kb)*1024,'w1')
    k.e(f's_mov_b32 s40, {f2(192**-0.5*1.4426950408889634)}')
    S(k,'s_lshl_b32 s41, s3, 8; v_lshlrev_b32 v6, 4, v2; v_add_u32 v6, 57344, v6; v_add_u32 v7, s41, v6; s_mul_i32 s42, s3, 8192; s_add_u32 s42, s42, 24576; v_add_u32 v8, s42, v4; s_nop 4')
    for qt in range(4):
        b=Sx+qt*16
        k.e(f'v_max3_f32 v{T+qt}, v{b}, v{b+1}, v{b+2}')
        for i in range(3,15,2): k.e(f'v_max3_f32 v{T+qt}, v{T+qt}, v{b+i}, v{b+i+1}')
        k.e(f'v_max_f32 v{T+qt}, v{T+qt}, v{b+15}')
    xred(k,[T,T+1,T+2,T+3],[T+4,T+5,T+6,T+7],'v_max_f32')
    k.e(f'ds_write_b128 v7, {v(T,4)}'); ld.issue(1); k.e('s_waitcnt lgkmcnt(0)'); k.e('s_barrier')
    for w in range(4): k.e(f'ds_read_b128 {v(T+8+4*w,4)}, v6 offset:{w*256}')
    ld.issue(1)
    for i in range(4): k.e(f'v_mov_b32 v{T+4+i}, 0x3f803f80')
    S(k,'s_lshl_b32 s42, s3, 10; v_add_u32 v9, s42, v4; s_waitcnt lgkmcnt(0)')
    for qt in range(4):
        S(k,f'v_max3_f32 v{T+qt}, v{T+8+qt}, v{T+12+qt}, v{T+16+qt}; v_max_f32 v{T+qt}, v{T+qt}, v{T+20+qt}; v_mul_f32 v{T+qt}, s40, v{T+qt}; v_ceil_f32 v{T+qt}, v{T+qt}')
    for qt in range(4):
        b=Sx+qt*16
        for hh in range(2):
            for i in range(8*hh,8*hh+8): k.e(f'v_fma_f32 v{b+i}, v{b+i}, s40, -v{T+qt}')
            ld.issue(1)
            for i in range(8*hh,8*hh+8): k.e(f'v_exp_f32 v{b+i}, v{b+i}')
            ld.issue(1)
            for i in range(4*hh,4*hh+4): k.e(f'v_cvt_pk_bf16_f32 v{b+i}, v{b+2*i}, v{b+2*i+1}')
            k.e(f'ds_write_b128 v8, {v(b+4*hh,4)} offset:{(hh*4+qt)*1024}')
    k.e('s_waitcnt lgkmcnt(0)'); k.e('s_barrier'); k.lg=[]
    k.stamp(7)
    LA=T+8; PW=T+16
    def rdp(j):
        for qt in range(4): k.ds(f'ds_read_b128 {v(QF+(j&1)*16+4*qt,4)}, v4 offset:{24576+(j*4+qt)*1024}',f'p{j}_{qt}')
        k.ds(f'ds_read_b128 {v(PW+(j&1)*4,4)}, v9 offset:{24576+j*4096}',f'pw{j}')
    rdp(0)
    for j in range(8):
        if j<7: rdp(j+1)
        k.wvm(f'V{j}')
        for qt in range(4):
            k.wlg(f'p{j}_{qt}')
            for i in range(3):
                D=v(O+(qt*3+i)*4,4)
                k.e(f'v_mfma_f32_16x16x32_bf16 {D}, {a(96+(j*3+i)*4,4)}, {v(QF+(j&1)*16+4*qt,4)}, {D if j else 0}')
            ld.issue(1)
        k.wlg(f'pw{j}')
        k.e(f'v_mfma_f32_16x16x32_bf16 {v(LA,4)}, {v(T+4,4)}, {v(PW+(j&1)*4,4)}, {v(LA,4) if j else 0}')
        if j==2:
            S(k,'s_lshr_b32 s26, s22, 1; s_lshl_b32 s26, s26, 6; s_lshl_b32 s27, s24, 2; s_add_u32 s26, s26, s27')
            S(k,f's_lshl_b32 s27, s20, 2; s_add_u32 s27, s27, s23; s_mul_i32 s27, s27, 49152; s_add_u32 s27, s27, {WS_OP}')
            S(k,'s_and_b32 s28, s22, 1; s_mul_i32 s29, s28, 6144; s_add_u32 s32, s29, s27')
            stage_setup(k)
        if j==3:
            k.wvm('cnt'); S(k,'v_readfirstlane_b32 s56, v5; s_cmp_ge_u32 s56, 32; s_cselect_b32 s63, s63, 0')
            k.e(f'v_mov_b32 v{T+12}, v{T}')
            for qt in range(1,4): S(k,f's_cmp_eq_u32 s3, {qt}; s_cselect_b64 vcc, -1, 0; v_cndmask_b32 v{T+12}, v{T+12}, v{T+qt}, vcc')
            S(k,f's_lshl_b32 s27, s23, 1; s_add_u32 s27, s27, s28; s_lshl_b32 s27, s27, 14; s_add_u32 s26, s26, s3; s_lshl_b32 s26, s26, 7; s_add_u32 s27, s27, s26; s_add_u32 s27, s27, {WS_ML}; v_lshlrev_b32 v10, 3, v1')
    assert not ld.q
    k.e('s_nop 4'); k.stamp(8)
    for qt in range(4):
        for i in range(3): stage_put(k,O+(qt*3+i)*4,qt,i)
    S(k,f'v_mov_b32 v{T+13}, v{LA}; s_mov_b64 exec, 0xffff')
    dual(k,lambda sc: k.e(f'buffer_store_dwordx2 {v(T+12,2)}, v10, {W}, s27 offen{sc}'),'ml',True)
    k.e('s_mov_b64 exec, -1')
    stage_out(k,32,12288,QF,'a')
    S(k,'s_lshl_b32 s44, s28, 2; s_add_u32 s44, s44, s23')
    publish(k,1,43,44,'a')
def wo_phase(k,ld):
    AC=16; OPR=64; Wt=160; T=184; E=200
    S(k,'s_lshr_b32 s40, s3, 1; s_min_u32 s41, s3, 2; s_mul_i32 s48, s37, 3; s_add_u32 s48, s48, s41')
    S(k,f's_mul_i32 s47, s36, {32*768}; s_lshl_b32 s25, s48, 10; s_add_u32 s25, s25, s47; s_add_u32 s25, s25, {WS_X1}; s_add_u32 s31, s25, 12288; s_lshl_b32 s49, s48, 6; s_add_u32 s47, s47, s49; s_add_u32 s49, s47, 12288')
    S(k,f's_lshr_b32 s26, s36, 5; s_mul_i32 s26, s26, 9216; s_lshl_b32 s27, s48, 7; s_add_u32 s26, s26, s27; s_add_u32 s26, s26, {768*4}')
    S(k,'v_mul_u32_u24 v6, 768, v2; v_lshl_add_u32 v6, v3, 4, v6; v_lshlrev_b32 v7, 5, v3')
    S(k,f's_lshl_b32 s27, s40, 14; s_lshl_b32 s28, s36, 8; s_add_u32 s27, s27, s28; s_add_u32 s27, s27, {WS_ML}; v_lshlrev_b32 v12, 3, v2')
    S(k,f's_mul_i32 s28, s3, 3072; s_mul_i32 s29, s20, 196608; s_add_u32 s29, s29, s28; s_and_b32 s28, s36, 1; s_mul_i32 s28, s28, 24576; s_add_u32 s29, s29, s28; s_add_u32 s29, s29, {WS_OP}; s_lshr_b32 s30, s36, 1')
    ld.reset(); poll8(k,1,30,'w'); k.stamp(9)
    for s in range(4):
        for rt in range(2): k.vmem(f'buffer_load_dwordx2 {v(Wt+(rt*4+s)*2,2)}, v12, {W}, s27 offen offset:{rt*128} sc1','ml')
        k.e('s_add_u32 s27, s27, 32768')
    for kb in range(3):
        for rt in range(2):
            for s in range(4): ld.add(v(OPR+((kb*2+rt)*4+s)*4,4),29,s*49152+rt*12288+kb*1024,f'o{kb}_{rt}',' sc1')
    ld.issue(16)
    k.xs('w0'); k.wvm('ml'); k.xs('w1')
    for rt in range(2):
        b=Wt+rt*8
        S(k,f'v_max3_f32 v{T}, v{b}, v{b+2}, v{b+4}; v_max_f32 v{T}, v{T}, v{b+6}')
        for s in range(4): k.e(f'v_sub_f32 v{b+2*s}, v{b+2*s}, v{T}')
        for s in range(4): k.e(f'v_exp_f32 v{b+2*s}, v{b+2*s}')
        k.e('s_nop 0')
        S(k,f'v_mul_f32 v{T}, v{b}, v{b+1}; v_mul_f32 v{T+1}, v{b+2}, v{b+3}; v_fmac_f32 v{T}, v{b+4}, v{b+5}; v_fmac_f32 v{T+1}, v{b+6}, v{b+7}; v_add_f32 v{T}, v{T}, v{T+1}; v_rcp_f32 v{T}, v{T}; s_nop 0')
        k.e(f'v_mov_b32 v{176+rt}, v{T}')
        for s in range(4): S(k,f'v_and_b32 v{b+2*s+1}, 0xffff0000, v{b+2*s}; v_lshrrev_b32 v{b+2*s}, 16, v{b+2*s}')
    for kb in range(3):
        for rt in range(2):
            if kb==1 and rt==0:
                assert not ld.q
                k.vmem(f'buffer_load_dwordx4 {v(E,4)}, v6, s[8:11], s47 offen','epi'); k.vmem(f'buffer_load_dwordx4 {v(E+4,4)}, v6, s[8:11], s49 offen','epi')
                k.vmem(f'buffer_load_dwordx4 {v(E+8,4)}, v7, {W}, s26 offen sc1','epi'); k.vmem(f'buffer_load_dwordx4 {v(E+12,4)}, v7, {W}, s26 offen offset:16 sc1','epi')
            if kb==1 and rt==0:
                for ct in range(3):
                    for k2 in range(8,12): ld.add(a((k2*3+ct)*4,4),38,(ct*12+k2)*1024,'w1')
            k.wvm(f'o{kb}_{rt}')
            if rt==0: k.xs('o%d'%kb)
            o=OPR+(kb*2+rt)*16
            for s in range(4):
                for p in range(8):
                    k.e(f'v_dot2_f32_bf16 v{T+p}, v{o+4*s+p//2}, v{Wt+rt*8+2*s+(p&1)}, '+('0' if s==0 else f'v{T+p}'))
                ld.issue(1)
            k.e('s_nop 2')
            for p in range(8): k.e(f'v_mul_f32 v{T+p}, v{T+p}, v{176+rt}')
            for p in range(4): k.e(f'v_cvt_pk_bf16_f32 v{o+p}, v{T+2*p}, v{T+2*p+1}')
            k.e('s_nop 1')
            for ct in range(6):
                D=v(AC+(rt*6+ct)*4,4)
                k.e(f'v_mfma_f32_16x16x32_bf16 {D}, {wo_reg(kb*6+ct)}, {v(o,4)}, {D if kb else 0}')
    k.stamp(10); k.wvm('epi')
    S(k,'s_mul_i32 s50, s3, 12288; v_add_u32 v8, s50, v4; s_lshl_b32 s50, s41, 11; v_lshrrev_b32 v9, 1, v3; v_lshlrev_b32 v9, 10, v9; v_and_b32 v13, 1, v3; v_lshl_add_u32 v9, v13, 9, v9; v_lshl_add_u32 v9, v2, 4, v9; v_add_u32 v9, s50, v9')
    for t in range(12): k.e(f'ds_write_b128 v8, {v(AC+4*t,4)} offset:{t*1024}')
    S(k,f's_waitcnt lgkmcnt(0); s_barrier; s_cmp_eq_u32 s3, 3; s_cbranch_scc1 {k.ln("wo3")}')
    for rt in range(2):
        for w in range(4):
            for e in range(2): k.e(f'ds_read_b128 {v(64+rt*32+w*8+e*4,4)}, v9 offset:{w*12288+rt*6144+e*256}')
    for rt in range(2):
        b=64+rt*32; t=128
        for p in range(4): S(k,f'v_lshlrev_b32 v{t+2*p}, 16, v{E+4*rt+p}; v_and_b32 v{t+2*p+1}, 0xffff0000, v{E+4*rt+p}')
        k.e(f's_waitcnt lgkmcnt({8-8*rt})')
        for h in range(8): S(k,f'v_add_f32 v{b+h}, v{b+h}, v{b+8+h}; v_add_f32 v{b+16+h}, v{b+16+h}, v{b+24+h}')
        for h in range(8): k.e(f'v_add_f32 v{b+h}, v{b+h}, v{b+16+h}')
        for h in range(8): k.e(f'v_fma_f32 v{b+h}, v{b+h}, v{E+8+h}, v{t+h}')
        for p in range(4): k.e(f'v_cvt_pk_bf16_f32 v{b+p}, v{b+2*p}, v{b+2*p+1}')
        dual(k,lambda sc: k.e(f'buffer_store_dwordx4 {v(b,4)}, v4, {W}, s{31 if rt else 25} offen{sc}'),f'x{rt}',True)
    k.lab('wo3')
    S(k,'s_and_b32 s44, s36, 1; s_lshl_b32 s44, s44, 2; s_add_u32 s44, s44, s37')
    publish(k,2,30,44,'w')
def ln2(k):
    SC=112; BI=208; RS=220; T2=64
    S(k,'v_lshlrev_b32 v7, 5, v3; v_add_u32 v7, 92160, v7; s_mul_i32 s50, s3, 12288; v_add_u32 v8, s50, v4; s_add_u32 s50, s50, s46; s_add_u32 s51, s50, 4096; s_add_u32 s52, s50, 8192')
    poll8(k,2,20,'f'); k.stamp(11)
    for f in range(12): k.vmem(f'buffer_load_dwordx4 {v(X+4*f,4)}, v4, {W}, s{50+f//4} offen offset:{1024*(f%4)} sc1','x%d'%f)
    S(k,f'v_lshlrev_b32 v9, 4, v3; v_add_u32 v9, {92160+3072}, v9')
    for f in range(12): k.e(f'ds_read_b128 {a(144+4*f,4)}, v9 offset:{f*64}')
    for f in range(12):
        for q in range(2): k.e(f'ds_read_b128 {v(SC+8*f+4*q,4)}, v7 offset:{1536+f*128+q*16}')
    stage_setup(k)
    S(k,'s_mov_b32 s55, 0x3f803f80; v_mov_b32 v5, 0x3f80; v_mov_b32 v6, 0x3f800000; s_lshl_b32 s56, s3, 6; s_add_u32 s56, s56, 53248; v_lshlrev_b32 v9, 2, v2; v_add_u32 v7, s56, v9; v_add_u32 v9, 53248, v9')
    for i in range(8): k.e(f'v_mov_b32 v{T2+i}, 0')
    k.e('s_waitcnt lgkmcnt(0)')
    for f in range(12):
        if f%2==0: k.wvm('x%d'%(f+1))
        for p in range(4): k.e(f'v_dot2c_f32_bf16 v{T2+p}, s55, v{X+4*f+p}'); k.e(f'v_dot2c_f32_bf16 v{T2+4+p}, v{X+4*f+p}, v{X+4*f+p}')
    t=T2
    S(k,f's_nop 2; v_add_f32 v{t}, v{t}, v{t+1}; v_add_f32 v{t+2}, v{t+2}, v{t+3}; v_add_f32 v{t+4}, v{t+4}, v{t+5}; v_add_f32 v{t+6}, v{t+6}, v{t+7}; v_add_f32 v{t}, v{t}, v{t+2}; v_add_f32 v{t+1}, v{t+4}, v{t+6}')
    xred(k,[t,t+1],[t+2,t+3],'v_add_f32')
    S(k,f'v_mul_f32 v{t}, 0xbb2aaaab, v{t}; v_mul_f32 v{t+1}, 0x3b2aaaab, v{t+1}; v_fma_f32 v{t+1}, -v{t}, v{t}, v{t+1}; v_max_f32 v{t+1}, 0, v{t+1}; v_add_f32 v{t+1}, 0x3727c5ac, v{t+1}; v_rsq_f32 v{t+2}, v{t+1}')
    def ctr(f):
        for p in range(8): k.e(f'v_dot2_f32_bf16 v{T2+8+(f&1)*8+p}, v{X+4*f+p//2}, v{5+(p&1)}, v{t}')
    ctr(0); k.e(f'ds_write_b32 v7, v{t+2}')
    for f in range(12):
        if f<11: ctr(f+1)
        else: k.e('s_nop 2')
        c=T2+8+(f&1)*8
        k.e(f'v_mfma_f32_16x16x32_bf16 {v(BI+4*0,4)}, {a((f*3+0)*4,4)}, {a(144+4*f,4)}, {v(BI+4*0,4) if f else 0}')
        for p in range(8): k.e(f'v_mul_f32 v{c+p}, v{c+p}, v{SC+8*f+p}')
        k.e(f'v_mfma_f32_16x16x32_bf16 {v(BI+4*1,4)}, {a((f*3+1)*4,4)}, {a(144+4*f,4)}, {v(BI+4*1,4) if f else 0}')
        for p in range(4): k.e(f'v_cvt_pk_bf16_f32 v{X+4*f+p}, v{c+2*p}, v{c+2*p+1}')
        k.e(f'v_mfma_f32_16x16x32_bf16 {v(BI+4*2,4)}, {a((f*3+2)*4,4)}, {a(144+4*f,4)}, {v(BI+4*2,4) if f else 0}')
        k.e(f'ds_write_b128 v8, {v(X+4*f,4)} offset:{f*1024}')
    S(k,'s_waitcnt lgkmcnt(0); s_barrier'); k.lg=[]
    for rt in range(4): k.ds(f'ds_read_b32 v{RS+rt}, v9 offset:{64*rt}','rs')
    k.stamp(12)
def touch(k):
    S(k,f'v_lshlrev_b32 v10, 18, v1; buffer_load_dword v11, v10, {W}, 0 offen sc1; v_mul_u32_u24 v10, 24576, v1; buffer_load_dword v8, v10, s[8:11], 0 offen')
    S(k,f's_lshr_b32 s56, s2, 3; s_lshl_b32 s56, s56, 2; s_add_u32 s56, s56, s3; s_lshl_b32 s57, s33, 7; s_add_u32 s57, s57, s56; s_mul_i32 s58, s57, 6144; s_add_u32 s58, s58, {WS_OP}; v_lshlrev_b32 v6, 7, v1; v_add_u32 v10, s58, v6')
    S(k,f's_mul_i32 s57, s57, 1536; s_add_u32 s58, s57, {WS_X1-48*128}; v_add_u32 v7, s58, v6; v_cmp_gt_u32 vcc, 48, v1; s_lshr_b32 s58, s56, 4; s_lshl_b32 s58, s58, 14; v_cndmask_b32 v10, v7, v10, vcc')
    S(k,f's_and_b32 s56, s56, 15; s_lshl_b32 s56, s56, 7; s_add_u32 s58, s58, s56; s_lshl_b32 s56, s33, 11; s_add_u32 s58, s58, s56; s_add_u32 s58, s58, {WS_ML}; v_mov_b32 v7, s58; v_cmp_gt_u32 vcc, 60, v1; v_min_u32 v6, {11*128}, v6; s_nop 0; v_cndmask_b32 v10, v7, v10, vcc')
    S(k,f'buffer_load_dword v9, v10, {W}, 0 offen sc1; buffer_load_dword v7, v6, s[16:19], s57 offen sc1')
def k_mega():
    k=K('mega_kernel',256,256,152064,256,256)
    S(k,f's_load_dwordx2 s[84:85], s[0:1], {KA["wo"]}; s_load_dwordx4 s[88:91], s[0:1], {KA["w1"]}; s_load_dwordx2 s[36:37], s[0:1], {KA["c"]}; s_load_dwordx2 s[92:93], s[0:1], {KA["wmod"]}')
    prologue(k,256,[('x',4,XS),('ws',6,WS),('out',60,OS),('dbg',58,96),('wqkv',80,80)])
    ld=Loads(k,59)
    S(k,'s_getreg_b32 s33, hwreg(HW_REG_XCC_ID, 0, 3)')
    S(k,f's_cmp_lg_u32 s3, 3; s_cbranch_scc1 {k.ln("nocode")}; s_getpc_b64 s[40:41]')
    k.lab('pc')
    S(k,f's_lshr_b32 s42, s2, 3; s_lshl_b32 s42, s42, 11; v_lshlrev_b32 v10, 7, v2; v_add_u32 v10, s42, v10; v_min_u32 v10, {k.ln("end")}-{k.ln("pc")}, v10; v_mov_b32 v11, s41; v_add_co_u32 v10, vcc, s40, v10; s_nop 1; v_addc_co_u32 v11, vcc, 0, v11, vcc; global_load_dword v243, v[10:11], off')
    k.lab('nocode')
    S(k,'s_and_b32 s25, s2, 7; s_lshr_b32 s26, s2, 3; s_and_b32 s27, s26, 3; s_lshl_b32 s20, s25, 2; s_add_u32 s20, s20, s27; s_lshr_b32 s21, s26, 2')
    if MAP2: S(k,'s_lshr_b32 s27, s25, 1; s_lshl_b32 s20, s27, 3; s_and_b32 s27, s26, 7; s_add_u32 s20, s20, s27; s_lshr_b32 s27, s26, 3; s_and_b32 s28, s25, 1; s_mul_i32 s28, s28, 3; s_add_u32 s28, s28, s27; s_cmp_ge_u32 s21, 6; s_cselect_b32 s21, s21, s28')
    S(k,f's_cmp_ge_u32 s21, 6; s_cbranch_scc1 {k.ln("idle")}')
    qkv_front(k)
    touch(k)
    S(k,f's_and_b32 s27, s21, 1; s_lshl_b32 s28, s47, 1; s_add_u32 s27, s27, s28; s_and_b32 s28, s20, 15; s_lshl_b32 s29, s27, 4; s_add_u32 s29, s29, s28; s_mul_i32 s29, s29, {24*1024}')
    S(k,f's_lshr_b32 s30, s21, 1; s_mul_i32 s31, s30, 0x180000; s_add_u32 s29, s29, s31; s_add_u32 s29, s29, {WS_Q}; s_cmp_eq_u32 s30, 2; s_cbranch_scc1 {k.ln("v")}')
    sv=(list(k.vm),list(k.lg))
    gemm(k,True,epi_list(False)); k.stamp(3); stage_out(k,29,6144,AF); k.e(f's_branch {k.ln("qdone")}')
    k.lab('v'); k.vm,k.lg=sv
    gemm(k,False); k.stamp(3); S(k,'s_nop 0')
    S(k,'s_mul_i32 s56, s3, 3072; s_add_u32 s56, s56, s29; s_add_u32 s57, s56, 12288; s_nop 4')
    for p in range(2):
        for ct in range(3):
            x=ACC+(2*p*3+ct)*4; y=ACC+((2*p+1)*3+ct)*4
            S(k,f'v_cvt_pk_bf16_f32 v{x}, v{x}, v{x+1}; v_cvt_pk_bf16_f32 v{x+1}, v{x+2}, v{x+3}; v_cvt_pk_bf16_f32 v{x+2}, v{y}, v{y+1}; v_cvt_pk_bf16_f32 v{x+3}, v{y+2}, v{y+3}')
            k.e(f'buffer_store_dwordx4 {v(x,4)}, v4, {W}, s{56+p} offen offset:{ct*1024} sc1')
    k.lab('qdone'); publish(k,0,20,21,'q'); k.e(f's_branch {k.ln("attn")}')
    k.lab('idle')
    S(k,'s_sub_u32 s30, s2, 192'); helper(k); touch(k); k.stamp(2); k.stamp(3)
    k.e('s_waitcnt vmcnt(0)'); k.vm=[]
    k.lab('attn'); roles(k)
    S(k,'s_and_b32 s27, s26, 3; s_lshl_b32 s20, s25, 2; s_add_u32 s20, s20, s27; s_lshr_b32 s21, s26, 2')
    S(k,'s_lshr_b32 s22, s20, 4; s_lshl_b32 s22, s22, 1; s_lshr_b32 s27, s21, 2; s_add_u32 s22, s22, s27; s_and_b32 s23, s21, 3; s_and_b32 s24, s20, 15')
    S(k,'s_and_b32 s27, s21, 1; s_lshl_b32 s36, s20, 1; s_add_u32 s36, s36, s27; s_lshr_b32 s37, s21, 1')
    S(k,f's_lshl_b32 s28, s21, 2; s_add_u32 s28, s28, s3; s_mul_i32 s28, s28, {36*1024}; s_add_u32 s38, s28, {WS_W1}')
    S(k,f's_mul_i32 s39, s21, {3*48*1024}; s_mul_i32 s29, s3, 12288; s_add_u32 s39, s39, s29; s_add_u32 s39, s39, {WS_W2}')
    S(k,f's_mul_i32 s35, s37, {6*12288}; s_mul_i32 s29, s3, 3072; s_add_u32 s35, s35, s29; s_add_u32 s35, s35, {WS_WO}')
    k.stamp(4)
    attn_phase(k,ld)
    wo_phase(k,ld)
    S(k,f's_mul_i32 s46, s20, {64*768}; s_add_u32 s46, s46, {WS_X1}; s_lshr_b32 s47, s20, 4; s_mul_i32 s48, s47, 9216; s_add_u32 s48, s48, {1152*4}')
    S(k,f's_mul_i32 s29, s20, {4*48*1024}; s_mul_i32 s30, s21, 6144; s_add_u32 s30, s29, s30; s_add_u32 s30, s30, {WS_G}')
    ln2(k)
    c=-2*0.7978845608028654*1.4426950408889634
    S(k,f'v_mov_b32 v{T+12}, {f2(c)}; s_mov_b32 s61, {f2(c*0.044715)}')
    for i in sorted(range(36),key=lambda i:(i%3,i)): ld.add(w2_reg(i),39,((i%3)*48+i//3)*1024,'w2')
    gemm(k,True,epi_list(True),ld); k.stamp(13)
    assert not ld.q
    stage_out(k,30,48*1024,AF,'g')
    publish(k,3,20,21,'f')
    S(k,f's_lshl_b32 s46, s20, 2; s_add_u32 s46, s46, s3; s_mul_i32 s46, s46, {16*768}; s_mul_i32 s25, s21, 1536; s_add_u32 s25, s25, s46; s_add_u32 s25, s25, {WS_X1}; s_mul_i32 s24, s21, 96; s_add_u32 s46, s46, s24')
    S(k,f's_mul_i32 s26, s47, 9216; s_mul_i32 s27, s21, 192; s_add_u32 s26, s26, s27; s_add_u32 s26, s26, {1920*4}')
    S(k,f's_mul_i32 s28, s3, 12288; s_add_u32 s29, s29, s28; s_add_u32 s29, s29, {WS_G}')
    ld.reset(); poll8(k,3,20,'g'); k.stamp(14)
    for kb in range(12):
        for rt in range(4): ld.add(v(64+((kb%10)*4+rt)*4,4),29,(rt*48+kb)*1024,f'G{kb}',' sc1')
    ld.issue(24)
    for kb in range(12):
        k.wvm(f'G{kb}')
        if kb==0: k.xs('f0')
        for rt in range(4):
            for ct in range(3):
                D=v(16+(rt*3+ct)*4,4)
                k.e(f'v_mfma_f32_16x16x32_bf16 {D}, {w2_reg(kb*3+ct)}, {v(64+((kb%10)*4+rt)*4,4)}, {D if kb else 0}')
            ld.issue(1)
        if kb==6: epi_loads(k,WS,25,26,lambda o,n: a(32+o,n),' sc1')
    k.xs('f1'); k.wvm('epi')
    if WBL2: S(k,f's_or_b32 s56, s21, s3; s_cmp_lg_u32 s56, 0; s_cbranch_scc1 {k.ln("nowb")}; buffer_wbl2 sc1'); k.lab('nowb')
    for i in range(20):
        if i not in (6,7): k.e(f'v_accvgpr_read_b32 v{128+i}, a{32+i}')
    reduce_epi(k,16,OS,46,128,64,'')
    k.xs('f2'); k.end(15)
    k.lab('end'); k.e('s_endpgm')
    return k
```

```python
from mega import *
from start import *
MAP2=int(os.environ.get('MAP2','1'))
WBL2=int(os.environ.get('WBL2','1'))
def attn_phase(k,ld):
    Sx=16; O=80; QF=128; T=160
    S(k,f's_lshl_b32 s25, s22, 6; s_lshl_b32 s26, s24, 2; s_add_u32 s26, s26, s25; s_add_u32 s26, s26, s3; s_mul_i32 s26, s26, 6144; s_add_u32 s26, s26, {WS_Q}')
    S(k,f's_lshl_b32 s29, s23, 4; s_add_u32 s29, s29, s25; s_lshl_b32 s27, s3, 2; s_add_u32 s29, s29, s27; s_mul_i32 s29, s29, 6144; s_add_u32 s29, s29, {WS_K}')
    S(k,f's_lshl_b32 s34, s22, 5; s_lshl_b32 s27, s23, 3; s_add_u32 s34, s34, s27; s_mul_i32 s34, s34, 12288; s_mul_i32 s27, s3, 3072; s_add_u32 s34, s34, s27; s_add_u32 s34, s34, {WS_V}')
    S(k,'s_lshr_b32 s40, s22, 1; s_lshl_b32 s40, s40, 4; s_and_b32 s41, s22, 1; s_lshl_b32 s42, s23, 2; s_add_u32 s42, s42, s40; s_add_u32 s43, s40, s24')
    S(k,'v_and_b32 v10, 3, v1; v_add_u32 v10, s42, v10; v_lshlrev_b32 v10, 7, v10; v_lshrrev_b32 v11, 2, v1; v_lshl_add_u32 v10, v11, 3, v10; s_lshl_b32 s44, s41, 2; s_add_u32 s45, s44, 8; v_add_u32 v10, s45, v10')
    S(k,'s_lshl_b32 s45, s43, 7; s_add_u32 s45, s45, s44; v_mov_b32 v11, s45; v_cmp_gt_u32 vcc, 8, v1; s_nop 1; v_cndmask_b32 v10, v11, v10, vcc')
    S(k,'s_mul_i32 s27, s3, 6144; s_mov_b32 m0, s27; s_add_u32 s28, s26, 4096')
    poll(k,0,'a'); k.stamp(5)
    for i in range(4): k.vmem(f'buffer_load_dwordx4 v4, {W}, s26 offen offset:{i*1024} sc1 lds','q')
    S(k,'s_add_u32 s27, s27, 4096; s_mov_b32 m0, s27; s_nop 0')
    for i in range(2): k.vmem(f'buffer_load_dwordx4 v4, {W}, s28 offen offset:{i*1024} sc1 lds','q')
    k.e('v_mov_b32 v9, 132'); k.vmem('buffer_load_dwordx2 v[6:7], v9, s[96:99], 0 offen sc1','hd')
    for kb in range(6):
        for kt in range(4): ld.add(a((kb*4+kt)*4,4),29,kt*6144+kb*1024,f'K{kb}',' sc1')
    for j in range(8):
        for i in range(3): ld.add(a(96+(j*3+i)*4,4),34,j*12288+i*1024,f'V{j}',' sc1')
    ld.issue(24)
    k.wvm('q'); k.e('s_barrier')
    def rdq(kb):
        for qt in range(4): k.ds(f'ds_read_b128 {v(QF+(kb&1)*16+4*qt,4)}, v4 offset:{(qt*6+kb)*1024}',f'q{kb}_{qt}')
    rdq(0)
    for kb in range(6):
        if kb<5: rdq(kb+1)
        k.wvm(f'K{kb}')
        for qt in range(4):
            k.wlg(f'q{kb}_{qt}')
            for kt in range(4):
                Dd=v(Sx+(qt*4+kt)*4,4)
                k.e(f'v_mfma_f32_16x16x32_bf16 {Dd}, {a((kb*4+kt)*4,4)}, {v(QF+(kb&1)*16+4*qt,4)}, {Dd if kb else 0}')
            ld.issue(1)
    k.stamp(6)
    k.e('s_mov_b32 s57, 0x100000'); k.lab('hl')
    S(k,f'v_readfirstlane_b32 s56, v6; v_readfirstlane_b32 s58, v7; s_add_u32 s56, s56, s58; s_cmp_eq_u32 s56, 9; s_cbranch_scc1 {k.ln("hk")}; s_sub_u32 s57, s57, 1; s_cbranch_scc1 {k.ln("hk")}; s_sleep 2; buffer_load_dwordx2 v[6:7], v9, s[96:99], 0 offen sc1; s_waitcnt vmcnt(0); s_branch {k.ln("hl")}')
    k.lab('hk')
    S(k,f's_lshr_b32 s56, s20, 4; s_mul_i32 s56, s56, 9216; s_lshl_b32 s57, s3, 10; s_add_u32 s56, s56, s57; s_add_u32 s56, s56, {1152*4}; s_lshr_b32 s58, s20, 4; s_mul_i32 s58, s58, 4608; s_add_u32 s58, s58, {0xC000+2304}; s_cmp_eq_u32 s3, 3; s_cselect_b32 s56, s58, s56; s_add_u32 m0, s57, 92160; s_nop 0')
    k.vmem(f'buffer_load_dwordx4 v4, {W}, s56 offen sc1 lds','mod')
    for ct in range(6):
        for kb in range(3): ld.add(wo_reg(kb*6+ct),35,ct*12288+kb*1024,'wo')
    S(k,'s_lshl_b32 s56, s33, 2; v_mov_b32 v5, 0'); k.vmem(f'buffer_load_dword v5, v5, s[96:99], s56 offen sc1','cnt')
    for ct in range(3):
        for kb in range(8): ld.add(a((kb*3+ct)*4,4),38,(ct*12+kb)*1024,'w1')
    k.e(f's_mov_b32 s40, {f2(192**-0.5*1.4426950408889634)}')
    S(k,'s_lshl_b32 s41, s3, 8; v_lshlrev_b32 v6, 4, v2; v_add_u32 v6, 57344, v6; v_add_u32 v7, s41, v6; s_mul_i32 s42, s3, 8192; s_add_u32 s42, s42, 24576; v_add_u32 v8, s42, v4; s_nop 4')
    for qt in range(4):
        b=Sx+qt*16
        k.e(f'v_max3_f32 v{T+qt}, v{b}, v{b+1}, v{b+2}')
        for i in range(3,15,2): k.e(f'v_max3_f32 v{T+qt}, v{T+qt}, v{b+i}, v{b+i+1}')
        k.e(f'v_max_f32 v{T+qt}, v{T+qt}, v{b+15}')
    xred(k,[T,T+1,T+2,T+3],[T+4,T+5,T+6,T+7],'v_max_f32')
    k.e(f'ds_write_b128 v7, {v(T,4)}'); ld.issue(1); k.e('s_waitcnt lgkmcnt(0)'); k.e('s_barrier')
    for w in range(4): k.e(f'ds_read_b128 {v(T+8+4*w,4)}, v6 offset:{w*256}')
    ld.issue(1)
    for i in range(4): k.e(f'v_mov_b32 v{T+4+i}, 0x3f803f80')
    S(k,'s_lshl_b32 s42, s3, 10; v_add_u32 v9, s42, v4; s_waitcnt lgkmcnt(0)')
    for qt in range(4):
        S(k,f'v_max3_f32 v{T+qt}, v{T+8+qt}, v{T+12+qt}, v{T+16+qt}; v_max_f32 v{T+qt}, v{T+qt}, v{T+20+qt}; v_mul_f32 v{T+qt}, s40, v{T+qt}; v_ceil_f32 v{T+qt}, v{T+qt}')
    for qt in range(4):
        b=Sx+qt*16
        for hh in range(2):
            for i in range(8*hh,8*hh+8): k.e(f'v_fma_f32 v{b+i}, v{b+i}, s40, -v{T+qt}')
            ld.issue(1)
            for i in range(8*hh,8*hh+8): k.e(f'v_exp_f32 v{b+i}, v{b+i}')
            ld.issue(1)
            for i in range(4*hh,4*hh+4): k.e(f'v_cvt_pk_bf16_f32 v{b+i}, v{b+2*i}, v{b+2*i+1}')
            k.e(f'ds_write_b128 v8, {v(b+4*hh,4)} offset:{(hh*4+qt)*1024}')
    k.e('s_waitcnt lgkmcnt(0)'); k.e('s_barrier'); k.lg=[]
    k.stamp(7)
    LA=T+8; PW=T+16
    def rdp(j):
        for qt in range(4): k.ds(f'ds_read_b128 {v(QF+(j&1)*16+4*qt,4)}, v4 offset:{24576+(j*4+qt)*1024}',f'p{j}_{qt}')
        k.ds(f'ds_read_b128 {v(PW+(j&1)*4,4)}, v9 offset:{24576+j*4096}',f'pw{j}')
    rdp(0)
    for j in range(8):
        if j<7: rdp(j+1)
        k.wvm(f'V{j}')
        for qt in range(4):
            k.wlg(f'p{j}_{qt}')
            for i in range(3):
                D=v(O+(qt*3+i)*4,4)
                k.e(f'v_mfma_f32_16x16x32_bf16 {D}, {a(96+(j*3+i)*4,4)}, {v(QF+(j&1)*16+4*qt,4)}, {D if j else 0}')
            ld.issue(1)
        k.wlg(f'pw{j}')
        k.e(f'v_mfma_f32_16x16x32_bf16 {v(LA,4)}, {v(T+4,4)}, {v(PW+(j&1)*4,4)}, {v(LA,4) if j else 0}')
        if j==2:
            S(k,'s_lshr_b32 s26, s22, 1; s_lshl_b32 s26, s26, 6; s_lshl_b32 s27, s24, 2; s_add_u32 s26, s26, s27')
            S(k,f's_lshl_b32 s27, s20, 2; s_add_u32 s27, s27, s23; s_mul_i32 s27, s27, 49152; s_add_u32 s27, s27, {WS_OP}')
            S(k,'s_and_b32 s28, s22, 1; s_mul_i32 s29, s28, 6144; s_add_u32 s32, s29, s27')
            stage_setup(k)
        if j==3:
            k.wvm('cnt'); S(k,'v_readfirstlane_b32 s56, v5; s_cmp_ge_u32 s56, 32; s_cselect_b32 s63, s63, 0')
            k.e(f'v_mov_b32 v{T+12}, v{T}')
            for qt in range(1,4): S(k,f's_cmp_eq_u32 s3, {qt}; s_cselect_b64 vcc, -1, 0; v_cndmask_b32 v{T+12}, v{T+12}, v{T+qt}, vcc')
            S(k,f's_lshl_b32 s27, s23, 1; s_add_u32 s27, s27, s28; s_lshl_b32 s27, s27, 14; s_add_u32 s26, s26, s3; s_lshl_b32 s26, s26, 7; s_add_u32 s27, s27, s26; s_add_u32 s27, s27, {WS_ML}; v_lshlrev_b32 v10, 3, v1')
    assert not ld.q
    k.e('s_nop 4'); k.stamp(8)
    for qt in range(4):
        for i in range(3): stage_put(k,O+(qt*3+i)*4,qt,i)
    S(k,f'v_mov_b32 v{T+13}, v{LA}; s_mov_b64 exec, 0xffff')
    dual(k,lambda sc: k.e(f'buffer_store_dwordx2 {v(T+12,2)}, v10, {W}, s27 offen{sc}'),'ml',bool(OPL))
    k.e('s_mov_b64 exec, -1')
    stage_out(k,32,12288,QF,'a' if OPL else None)
    S(k,'s_lshl_b32 s44, s28, 2; s_add_u32 s44, s44, s23')
    publish(k,1,43,44,'a')
def wo_phase(k,ld):
    X1A=f's_add_u32 s25, s25, s47; s_add_u32 s25, s25, {WS_X1}'
    if VAR=='B':
        S(k,f's_lshr_b32 s34, s20, 4; s_lshl_b32 s34, s34, 5; s_and_b32 s56, s20, 15; s_add_u32 s34, s34, s56; s_mul_i32 s34, s34, 24576; s_add_u32 s34, s34, {WS_Q}')
        X1A=f's_and_b32 s56, s36, 1; s_mul_i32 s56, s56, {16*24576}; s_add_u32 s25, s25, s56; s_add_u32 s25, s25, s34'
    AC=16; OPR=64; Wt=160; T=184; E=200
    S(k,'s_lshr_b32 s40, s3, 1; s_min_u32 s41, s3, 2; s_mul_i32 s48, s37, 3; s_add_u32 s48, s48, s41')
    S(k,f's_mul_i32 s47, s36, {32*768}; s_lshl_b32 s25, s48, 10; {X1A}; s_add_u32 s31, s25, 12288; s_lshl_b32 s49, s48, 6; s_add_u32 s47, s47, s49; s_add_u32 s49, s47, 12288')
    S(k,f's_lshr_b32 s26, s36, 5; s_mul_i32 s26, s26, 9216; s_lshl_b32 s27, s48, 7; s_add_u32 s26, s26, s27; s_add_u32 s26, s26, {768*4}')
    S(k,'v_mul_u32_u24 v6, 768, v2; v_lshl_add_u32 v6, v3, 4, v6; v_lshlrev_b32 v7, 5, v3')
    S(k,f's_lshl_b32 s27, s40, 14; s_lshl_b32 s28, s36, 8; s_add_u32 s27, s27, s28; s_add_u32 s27, s27, {WS_ML}; v_lshlrev_b32 v12, 3, v2')
    S(k,f's_mul_i32 s28, s3, 3072; s_mul_i32 s29, s20, 196608; s_add_u32 s29, s29, s28; s_and_b32 s28, s36, 1; s_mul_i32 s28, s28, 24576; s_add_u32 s29, s29, s28; s_add_u32 s29, s29, {WS_OP}; s_lshr_b32 s30, s36, 1')
    ld.reset(); poll8(k,1,30,'w'); k.stamp(9)
    for s in range(4):
        for rt in range(2): k.vmem(f'buffer_load_dwordx2 {v(Wt+(rt*4+s)*2,2)}, v12, {W}, s27 offen offset:{rt*128} sc1','ml')
        k.e('s_add_u32 s27, s27, 32768')
    for kb in range(3):
        for rt in range(2):
            for s in range(4): ld.add(v(OPR+((kb*2+rt)*4+s)*4,4),29,s*49152+rt*12288+kb*1024,f'o{kb}_{rt}',' sc1')
    ld.issue(16)
    k.xs('w0'); k.wvm('ml'); k.xs('w1')
    for rt in range(2):
        b=Wt+rt*8
        S(k,f'v_max3_f32 v{T}, v{b}, v{b+2}, v{b+4}; v_max_f32 v{T}, v{T}, v{b+6}')
        for s in range(4): k.e(f'v_sub_f32 v{b+2*s}, v{b+2*s}, v{T}')
        for s in range(4): k.e(f'v_exp_f32 v{b+2*s}, v{b+2*s}')
        k.e('s_nop 0')
        S(k,f'v_mul_f32 v{T}, v{b}, v{b+1}; v_mul_f32 v{T+1}, v{b+2}, v{b+3}; v_fmac_f32 v{T}, v{b+4}, v{b+5}; v_fmac_f32 v{T+1}, v{b+6}, v{b+7}; v_add_f32 v{T}, v{T}, v{T+1}; v_rcp_f32 v{T}, v{T}; s_nop 0')
        k.e(f'v_mov_b32 v{176+rt}, v{T}')
        for s in range(4): S(k,f'v_and_b32 v{b+2*s+1}, 0xffff0000, v{b+2*s}; v_lshrrev_b32 v{b+2*s}, 16, v{b+2*s}')
    for kb in range(3):
        for rt in range(2):
            if kb==1 and rt==0:
                assert not ld.q
                k.vmem(f'buffer_load_dwordx4 {v(E,4)}, v6, s[8:11], s47 offen','epi'); k.vmem(f'buffer_load_dwordx4 {v(E+4,4)}, v6, s[8:11], s49 offen','epi')
                k.vmem(f'buffer_load_dwordx4 {v(E+8,4)}, v7, {W}, s26 offen sc1','epi'); k.vmem(f'buffer_load_dwordx4 {v(E+12,4)}, v7, {W}, s26 offen offset:16 sc1','epi')
            if kb==1 and rt==0:
                for ct in range(3):
                    for k2 in range(8,12): ld.add(a((k2*3+ct)*4,4),38,(ct*12+k2)*1024,'w1')
            k.wvm(f'o{kb}_{rt}')
            if rt==0: k.xs('o%d'%kb)
            o=OPR+(kb*2+rt)*16
            for s in range(4):
                for p in range(8):
                    k.e(f'v_dot2_f32_bf16 v{T+p}, v{o+4*s+p//2}, v{Wt+rt*8+2*s+(p&1)}, '+('0' if s==0 else f'v{T+p}'))
                ld.issue(1)
            k.e('s_nop 2')
            for p in range(8): k.e(f'v_mul_f32 v{T+p}, v{T+p}, v{176+rt}')
            for p in range(4): k.e(f'v_cvt_pk_bf16_f32 v{o+p}, v{T+2*p}, v{T+2*p+1}')
            k.e('s_nop 1')
            for ct in range(6):
                D=v(AC+(rt*6+ct)*4,4)
                k.e(f'v_mfma_f32_16x16x32_bf16 {D}, {wo_reg(kb*6+ct)}, {v(o,4)}, {D if kb else 0}')
    k.stamp(10); k.wvm('epi')
    S(k,'s_mul_i32 s50, s3, 12288; v_add_u32 v8, s50, v4; s_lshl_b32 s50, s41, 11; v_lshrrev_b32 v9, 1, v3; v_lshlrev_b32 v9, 10, v9; v_and_b32 v13, 1, v3; v_lshl_add_u32 v9, v13, 9, v9; v_lshl_add_u32 v9, v2, 4, v9; v_add_u32 v9, s50, v9')
    for t in range(12): k.e(f'ds_write_b128 v8, {v(AC+4*t,4)} offset:{t*1024}')
    S(k,f's_waitcnt lgkmcnt(0); s_barrier; s_cmp_eq_u32 s3, 3; s_cbranch_scc1 {k.ln("wo3")}')
    for rt in range(2):
        for w in range(4):
            for e in range(2): k.e(f'ds_read_b128 {v(64+rt*32+w*8+e*4,4)}, v9 offset:{w*12288+rt*6144+e*256}')
    for rt in range(2):
        b=64+rt*32; t=128
        for p in range(4): S(k,f'v_lshlrev_b32 v{t+2*p}, 16, v{E+4*rt+p}; v_and_b32 v{t+2*p+1}, 0xffff0000, v{E+4*rt+p}')
        k.e(f's_waitcnt lgkmcnt({8-8*rt})')
        for h in range(8): S(k,f'v_add_f32 v{b+h}, v{b+h}, v{b+8+h}; v_add_f32 v{b+16+h}, v{b+16+h}, v{b+24+h}')
        for h in range(8): k.e(f'v_add_f32 v{b+h}, v{b+h}, v{b+16+h}')
        for h in range(8): k.e(f'v_fma_f32 v{b+h}, v{b+h}, v{E+8+h}, v{t+h}')
        for p in range(4): k.e(f'v_cvt_pk_bf16_f32 v{b+p}, v{b+2*p}, v{b+2*p+1}')
        dual(k,lambda sc: k.e(f'buffer_store_dwordx4 {v(b,4)}, v4, {W}, s{31 if rt else 25} offen{sc}'),f'x{rt}',True)
    k.lab('wo3')
    S(k,'s_and_b32 s44, s36, 1; s_lshl_b32 s44, s44, 2; s_add_u32 s44, s44, s37')
    publish(k,2,30,44,'w')
def ln2(k):
    SC=112; BI=208; RS=220; T2=64
    S(k,'v_lshlrev_b32 v7, 5, v3; v_add_u32 v7, 92160, v7; s_mul_i32 s50, s3, 12288; v_add_u32 v8, s50, v4; s_add_u32 s50, s50, s46')
    if VAR=='B': S(k,f's_lshr_b32 s56, s3, 1; s_mul_i32 s56, s56, {16*24576}; s_and_b32 s57, s3, 1; s_mul_i32 s57, s57, 12288; s_add_u32 s56, s56, s57; s_add_u32 s34, s34, s56; s_mov_b32 s50, s34')
    S(k,'s_add_u32 s51, s50, 4096; s_add_u32 s52, s50, 8192')
    poll8(k,2,20,'f'); k.stamp(11)
    for f in range(12): k.vmem(f'buffer_load_dwordx4 {v(X+4*f,4)}, v4, {W}, s{50+f//4} offen offset:{1024*(f%4)} sc1','x%d'%f)
    S(k,f'v_lshlrev_b32 v9, 4, v3; v_add_u32 v9, {92160+3072}, v9')
    for f in range(12): k.e(f'ds_read_b128 {a(144+4*f,4)}, v9 offset:{f*64}')
    for f in range(12):
        for q in range(2): k.e(f'ds_read_b128 {v(SC+8*f+4*q,4)}, v7 offset:{1536+f*128+q*16}')
    stage_setup(k)
    S(k,'s_mov_b32 s55, 0x3f803f80; v_mov_b32 v5, 0x3f80; v_mov_b32 v6, 0x3f800000; s_lshl_b32 s56, s3, 6; s_add_u32 s56, s56, 53248; v_lshlrev_b32 v9, 2, v2; v_add_u32 v7, s56, v9; v_add_u32 v9, 53248, v9')
    for i in range(8): k.e(f'v_mov_b32 v{T2+i}, 0')
    k.e('s_waitcnt lgkmcnt(0)')
    for f in range(12):
        if f%2==0: k.wvm('x%d'%(f+1))
        for p in range(4): k.e(f'v_dot2c_f32_bf16 v{T2+p}, s55, v{X+4*f+p}'); k.e(f'v_dot2c_f32_bf16 v{T2+4+p}, v{X+4*f+p}, v{X+4*f+p}')
    t=T2
    S(k,f's_nop 2; v_add_f32 v{t}, v{t}, v{t+1}; v_add_f32 v{t+2}, v{t+2}, v{t+3}; v_add_f32 v{t+4}, v{t+4}, v{t+5}; v_add_f32 v{t+6}, v{t+6}, v{t+7}; v_add_f32 v{t}, v{t}, v{t+2}; v_add_f32 v{t+1}, v{t+4}, v{t+6}')
    xred(k,[t,t+1],[t+2,t+3],'v_add_f32')
    S(k,f'v_mul_f32 v{t}, 0xbb2aaaab, v{t}; v_mul_f32 v{t+1}, 0x3b2aaaab, v{t+1}; v_fma_f32 v{t+1}, -v{t}, v{t}, v{t+1}; v_max_f32 v{t+1}, 0, v{t+1}; v_add_f32 v{t+1}, 0x3727c5ac, v{t+1}; v_rsq_f32 v{t+2}, v{t+1}')
    def ctr(f):
        for p in range(8): k.e(f'v_dot2_f32_bf16 v{T2+8+(f&1)*8+p}, v{X+4*f+p//2}, v{5+(p&1)}, v{t}')
    ctr(0); k.e(f'ds_write_b32 v7, v{t+2}')
    for f in range(12):
        if f<11: ctr(f+1)
        else: k.e('s_nop 2')
        c=T2+8+(f&1)*8
        k.e(f'v_mfma_f32_16x16x32_bf16 {v(BI+4*0,4)}, {a((f*3+0)*4,4)}, {a(144+4*f,4)}, {v(BI+4*0,4) if f else 0}')
        for p in range(8): k.e(f'v_mul_f32 v{c+p}, v{c+p}, v{SC+8*f+p}')
        k.e(f'v_mfma_f32_16x16x32_bf16 {v(BI+4*1,4)}, {a((f*3+1)*4,4)}, {a(144+4*f,4)}, {v(BI+4*1,4) if f else 0}')
        for p in range(4): k.e(f'v_cvt_pk_bf16_f32 v{X+4*f+p}, v{c+2*p}, v{c+2*p+1}')
        k.e(f'v_mfma_f32_16x16x32_bf16 {v(BI+4*2,4)}, {a((f*3+2)*4,4)}, {a(144+4*f,4)}, {v(BI+4*2,4) if f else 0}')
        k.e(f'ds_write_b128 v8, {v(X+4*f,4)} offset:{f*1024}')
    S(k,'s_waitcnt lgkmcnt(0); s_barrier'); k.lg=[]
    for rt in range(4): k.ds(f'ds_read_b32 v{RS+rt}, v9 offset:{64*rt}','rs')
    k.stamp(12)
def k_mega():
    k=K('mega_kernel',256,256,152064,256,256)
    S(k,f's_load_dwordx2 s[84:85], s[0:1], {KA["wo"]}; s_load_dwordx4 s[88:91], s[0:1], {KA["w1"]}; s_load_dwordx2 s[36:37], s[0:1], {KA["c"]}; s_load_dwordx2 s[92:93], s[0:1], {KA["wmod"]}')
    prologue(k,256,[('x',4,XS),('ws',6,WS),('out',60,OS),('dbg',58,96),('wqkv',80,80)])
    ld=Loads(k,59)
    S(k,'s_getreg_b32 s33, hwreg(HW_REG_XCC_ID, 0, 3)')
    S(k,f's_cmp_lg_u32 s3, 3; s_cbranch_scc1 {k.ln("nocode")}; s_getpc_b64 s[40:41]')
    k.lab('pc')
    S(k,f's_lshr_b32 s42, s2, 3; s_lshl_b32 s42, s42, 11; v_lshlrev_b32 v10, 7, v2; v_add_u32 v10, s42, v10; v_min_u32 v10, {k.ln("end")}-{k.ln("pc")}, v10; v_mov_b32 v11, s41; v_add_co_u32 v10, vcc, s40, v10; s_nop 1; v_addc_co_u32 v11, vcc, 0, v11, vcc; global_load_dword v243, v[10:11], off')
    k.lab('nocode')
    S(k,'s_and_b32 s25, s2, 7; s_lshr_b32 s26, s2, 3; s_and_b32 s27, s26, 3; s_lshl_b32 s20, s25, 2; s_add_u32 s20, s20, s27; s_lshr_b32 s21, s26, 2')
    if MAP2: S(k,'s_lshr_b32 s27, s25, 1; s_lshl_b32 s20, s27, 3; s_and_b32 s27, s26, 7; s_add_u32 s20, s20, s27; s_lshr_b32 s27, s26, 3; s_and_b32 s28, s25, 1; s_mul_i32 s28, s28, 3; s_add_u32 s28, s28, s27; s_cmp_ge_u32 s21, 6; s_cselect_b32 s21, s21, s28')
    S(k,f's_cmp_ge_u32 s21, 6; s_cbranch_scc1 {k.ln("idle")}')
    qkv_front(k)
    S(k,f's_and_b32 s27, s21, 1; s_lshl_b32 s28, s47, 1; s_add_u32 s27, s27, s28; s_and_b32 s28, s20, 15; s_lshl_b32 s29, s27, 4; s_add_u32 s29, s29, s28; s_mul_i32 s29, s29, {24*1024}')
    S(k,f's_lshr_b32 s30, s21, 1; s_mul_i32 s31, s30, 0x180000; s_add_u32 s29, s29, s31; s_add_u32 s29, s29, {WS_Q}; s_cmp_eq_u32 s30, 2; s_cbranch_scc1 {k.ln("v")}')
    sv=(list(k.vm),list(k.lg))
    gemm(k,True,epi_list(False)); k.stamp(3); stage_out(k,29,6144,AF); k.e(f's_branch {k.ln("qdone")}')
    k.lab('v'); k.vm,k.lg=sv
    gemm(k,False); k.stamp(3); S(k,'s_nop 0')
    S(k,'s_mul_i32 s56, s3, 3072; s_add_u32 s56, s56, s29; s_add_u32 s57, s56, 12288; s_nop 4')
    for p in range(2):
        for ct in range(3):
            x=ACC+(2*p*3+ct)*4; y=ACC+((2*p+1)*3+ct)*4
            S(k,f'v_cvt_pk_bf16_f32 v{x}, v{x}, v{x+1}; v_cvt_pk_bf16_f32 v{x+1}, v{x+2}, v{x+3}; v_cvt_pk_bf16_f32 v{x+2}, v{y}, v{y+1}; v_cvt_pk_bf16_f32 v{x+3}, v{y+2}, v{y+3}')
            k.e(f'buffer_store_dwordx4 {v(x,4)}, v4, {W}, s{56+p} offen offset:{ct*1024} sc1')
    k.lab('qdone'); publish(k,0,20,21,'q'); k.e(f's_branch {k.ln("attn")}')
    k.lab('idle')
    S(k,'s_sub_u32 s30, s2, 192'); helper(k); k.stamp(2); k.stamp(3)
    k.e('s_waitcnt vmcnt(0)'); k.vm=[]
    k.lab('attn'); roles(k)
    S(k,'s_and_b32 s27, s26, 3; s_lshl_b32 s20, s25, 2; s_add_u32 s20, s20, s27; s_lshr_b32 s21, s26, 2')
    S(k,'s_lshr_b32 s22, s20, 4; s_lshl_b32 s22, s22, 1; s_lshr_b32 s27, s21, 2; s_add_u32 s22, s22, s27; s_and_b32 s23, s21, 3; s_and_b32 s24, s20, 15')
    S(k,'s_and_b32 s27, s21, 1; s_lshl_b32 s36, s20, 1; s_add_u32 s36, s36, s27; s_lshr_b32 s37, s21, 1')
    S(k,f's_lshl_b32 s28, s21, 2; s_add_u32 s28, s28, s3; s_mul_i32 s28, s28, {36*1024}; s_add_u32 s38, s28, {WS_W1}')
    S(k,f's_mul_i32 s39, s21, {3*48*1024}; s_mul_i32 s29, s3, 12288; s_add_u32 s39, s39, s29; s_add_u32 s39, s39, {WS_W2}')
    S(k,f's_mul_i32 s35, s37, {6*12288}; s_mul_i32 s29, s3, 3072; s_add_u32 s35, s35, s29; s_add_u32 s35, s35, {WS_WO}')
    k.stamp(4)
    attn_phase(k,ld)
    wo_phase(k,ld)
    S(k,f's_mul_i32 s46, s20, {64*768}; s_add_u32 s46, s46, {WS_X1}; s_lshr_b32 s47, s20, 4; s_mul_i32 s48, s47, 9216; s_add_u32 s48, s48, {1152*4}')
    S(k,f's_mul_i32 s29, s20, {4*48*1024}; s_mul_i32 s30, s21, 6144; s_add_u32 s30, s29, s30; s_add_u32 s30, s30, {WS_G}')
    ln2(k)
    c=-2*0.7978845608028654*1.4426950408889634
    S(k,f'v_mov_b32 v{T+12}, {f2(c)}; s_mov_b32 s61, {f2(c*0.044715)}')
    for i in sorted(range(36),key=lambda i:(i%3,i)): ld.add(w2_reg(i),39,((i%3)*48+i//3)*1024,'w2')
    gemm(k,True,epi_list(True),ld); k.stamp(13)
    assert not ld.q
    stage_out(k,30,48*1024,AF,'g')
    publish(k,3,20,21,'f')
    S(k,f's_lshl_b32 s46, s20, 2; s_add_u32 s46, s46, s3; s_mul_i32 s46, s46, {16*768}; s_mul_i32 s25, s21, 1536; s_add_u32 s25, s25, s46; s_add_u32 s25, s25, {WS_X1}; s_mul_i32 s24, s21, 96; s_add_u32 s46, s46, s24')
    if VAR=='B': S(k,'s_mul_i32 s25, s21, 1536; s_add_u32 s25, s25, s34')
    S(k,f's_mul_i32 s26, s47, 9216; s_mul_i32 s27, s21, 192; s_add_u32 s26, s26, s27; s_add_u32 s26, s26, {1920*4}')
    S(k,f's_mul_i32 s28, s3, 12288; s_add_u32 s29, s29, s28; s_add_u32 s29, s29, {WS_G}')
    ld.reset(); poll8(k,3,20,'g'); k.stamp(14)
    for kb in range(12):
        for rt in range(4): ld.add(v(64+((kb%10)*4+rt)*4,4),29,(rt*48+kb)*1024,f'G{kb}',' sc1')
    ld.issue(24)
    for kb in range(12):
        k.wvm(f'G{kb}')
        if kb==0: k.xs('f0')
        for rt in range(4):
            for ct in range(3):
                D=v(16+(rt*3+ct)*4,4)
                k.e(f'v_mfma_f32_16x16x32_bf16 {D}, {w2_reg(kb*3+ct)}, {v(64+((kb%10)*4+rt)*4,4)}, {D if kb else 0}')
            ld.issue(1)
        if kb==6: epi_loads(k,WS,25,26,lambda o,n: a(32+o,n),' sc1')
    k.xs('f1'); k.wvm('epi')
    if WBL2: S(k,f's_or_b32 s56, s21, s3; s_cmp_lg_u32 s56, 0; s_cbranch_scc1 {k.ln("nowb")}; buffer_wbl2 sc1'); k.lab('nowb')
    for i in range(20):
        if i not in (6,7): k.e(f'v_accvgpr_read_b32 v{128+i}, a{32+i}')
    reduce_epi(k,16,OS,46,128,64,'')
    k.xs('f2'); k.end(15)
    k.lab('end'); k.e('s_endpgm')
    return k
```

```python
from mega import *
import k_prep as kp
MODL=147968
CTS=12288+16
VAR=os.environ.get('VAR','A')
def touch(k):
    S(k,f'v_lshlrev_b32 v10, 18, v1; buffer_load_dword v248, v10, {W}, 0 offen sc1; v_mul_u32_u24 v10, 24576, v1; buffer_load_dword v249, v10, s[8:11], 0 offen')
    if VAR=='B':
        k.e('buffer_load_dword v251, v10, s[16:19], 0 offen sc1'); return
    S(k,f's_lshr_b32 s56, s2, 3; s_lshl_b32 s56, s56, 2; s_add_u32 s56, s56, s3; s_lshl_b32 s57, s33, 7; s_add_u32 s57, s57, s56; s_mul_i32 s58, s57, 6144; s_add_u32 s58, s58, {WS_OP}; v_lshlrev_b32 v6, 7, v1; v_add_u32 v10, s58, v6')
    S(k,f's_mul_i32 s57, s57, 1536; s_add_u32 s58, s57, {WS_X1-48*128}; v_add_u32 v7, s58, v6; v_cmp_gt_u32 vcc, 48, v1; s_lshr_b32 s58, s56, 4; s_lshl_b32 s58, s58, 14; v_cndmask_b32 v10, v7, v10, vcc')
    S(k,f's_and_b32 s56, s56, 15; s_lshl_b32 s56, s56, 7; s_add_u32 s58, s58, s56; s_lshl_b32 s56, s33, 11; s_add_u32 s58, s58, s56; s_add_u32 s58, s58, {WS_ML}; v_mov_b32 v7, s58; v_cmp_gt_u32 vcc, 60, v1; v_min_u32 v6, {11*128}, v6; s_nop 0; v_cndmask_b32 v10, v7, v10, vcc')
    S(k,f'buffer_load_dword v250, v10, {W}, 0 offen sc1; buffer_load_dword v251, v6, s[16:19], s57 offen sc1')
def prep_params(k,t,B):
    S(k,f's_cmp_lt_u32 s{t}, 180; s_cselect_b32 s{B}, s86, s88; s_cselect_b32 s{B+1}, s87, s89; s_cselect_b32 s{B+5}, 3072, 768; s_cselect_b32 s{B+6}, 0, 1; s_cselect_b32 s{B+7}, {WS_W1}, {WS_W2}'.replace(f's_cselect_b32 s{B+7}, {WS_W1}, {WS_W2}',f's_mov_b32 s56, {WS_W2}; s_cselect_b32 s{B+7}, {WS_W1}, s56').replace(f's_cselect_b32 s{B+5}, 3072, 768',f's_movk_i32 s56, 768; s_cselect_b32 s{B+5}, 3072, s56'))
    S(k,f's_cselect_b32 s57, 12, 48; s_cselect_b32 s58, 19, 21; s_movk_i32 s56, 180; s_cselect_b32 s56, 36, s56; s_mov_b32 s{B+2}, 1179648')
    S(k,f's_cmp_lt_u32 s{t}, 36; s_cselect_b32 s{B}, s84, s{B}; s_cselect_b32 s{B+1}, s85, s{B+1}; s_cselect_b32 s{B+5}, 768, s{B+5}; s_cselect_b32 s{B+6}, 1, s{B+6}; s_cselect_b32 s{B+7}, {WS_WO}, s{B+7}; s_cselect_b32 s56, 0, s56; s_cselect_b32 s{B+2}, 294912, s{B+2}')
    S(k,f's_and_b32 s{B+1}, s{B+1}, 0xffff; s_mov_b32 s{B+3}, 0x20000; s_sub_u32 s56, s{t}, s56; s_mul_i32 s55, s56, 43691; s_lshr_b32 s55, s55, s58; s_mul_i32 s54, s55, s57; s_sub_u32 s56, s56, s54')
    S(k,f's_lshl_b32 s54, s54, 3; s_add_u32 s54, s54, s56; s_lshl_b32 s54, s54, 10; s_add_u32 s{B+7}, s{B+7}, s54; s_lshl_b32 s{B+8}, s57, 10')
    S(k,f's_mul_i32 s{B+4}, s56, s{B+5}; s_lshl_b32 s{B+4}, s{B+4}, 5; s_lshl_b32 s55, s55, 8; s_add_u32 s{B+4}, s{B+4}, s55')
def prep_load(k,B,R,va):
    S(k,f's_sub_u32 s56, 3, s{B+6}; s_lshl_b32 s56, s{B+5}, s56; v_mul_lo_u32 v{va}, v3, s56; v_lshl_add_u32 v{va}, v2, 4, v{va}; s_mul_i32 s57, s{B+6}, 12; s_mul_i32 s57, s57, s{B+5}; s_mov_b32 s58, s{B+4}')
    for j in range(8):
        k.e(f'buffer_load_dwordx4 {v(R+4*j,4)}, v{va}, s[{B}:{B+3}], s58 offen'); k.e(f's_add_u32 s58, s58, s{B+5}')
        if j==3: k.e('s_add_u32 s58, s58, s57')
def prep_store(k,B,R,O):
    S(k,'v_lshrrev_b32 v7, 1, v2; v_mul_u32_u24 v7, 1040, v7; v_lshl_add_u32 v7, v3, 8, v7; v_and_b32 v8, 1, v2; v_lshl_add_u32 v7, v8, 7, v7; s_mul_i32 s56, s3, 8320; s_add_u32 s56, s56, 8192; v_add_u32 v7, s56, v7; v_add_u32 v8, s56, v4; s_mov_b32 s47, 0x05040100; s_mov_b32 s48, 0x07060302')
    for f in range(8):
        for p in range(4): k.e(f'v_perm_b32 v{O+4*f+p}, v{R+4*(2*p+1)+(f>>1)}, v{R+4*(2*p)+(f>>1)}, s{48 if f&1 else 47}')
        k.e(f'ds_write_b128 v7, {v(O+4*f,4)} offset:{16*f}')
    k.e('s_waitcnt lgkmcnt(0)')
    for f in range(8): k.e(f'ds_read_b128 {v(R+4*f,4)}, v8 offset:{1040*f}')
    k.e(f's_mov_b32 s56, s{B+7}')
    for f in range(8): S(k,f's_waitcnt lgkmcnt({7-f}); buffer_store_dwordx4 {v(R+4*f,4)}, v4, {W}, s56 offen sc1; s_add_u32 s56, s56, s{B+8}')
def helper(k):
    S(k,'s_mov_b32 s86, s88; s_mov_b32 s87, s89; s_mov_b32 s88, s90; s_mov_b32 s89, s91')
    k.srd(36,36,'c'); k.srd(92,92,'wmod')
    S(k,f's_cmp_lg_u32 s30, 0; s_cbranch_scc1 {k.ln("nz")}; v_lshlrev_b32 v6, 4, v0; v_mov_b32 v8, 0; v_mov_b32 v9, 0; v_mov_b32 v10, 0; v_mov_b32 v11, 0')
    for p in range(4): S(k,f's_mov_b32 s40, {WS_FL+p*4096}; buffer_store_dwordx4 v[8:11], v6, {W}, s40 offen sc1')
    k.lab('nz')
    S(k,'s_lshl_b32 s31, s30, 2; s_add_u32 s31, s31, s3; s_add_u32 s32, s31, 128; s_min_u32 s32, s32, 323; s_mov_b32 s34, s30')
    S(k,'v_lshrrev_b32 v15, 5, v1; v_mul_u32_u24 v15, 3072, v15; v_and_b32 v12, 30, v1; v_lshl_add_u32 v15, v12, 2, v15; s_min_u32 s35, s30, 23; s_lshl_b32 s35, s35, 7; s_add_u32 s35, s35, 0x5000')
    k.e(f'buffer_load_dwordx2 v[224:225], v15, {W}, s35 offen sc1')
    k.lab('modl')
    k2=K(k.name,0,0,0,0,0); kp.mod_body(k2,0,36,92,12,' sc1')
    L=[x.replace('s_sub_u32 s40, s2, 0','s_mov_b32 s40, s34') for x in k2.L]
    i=[n for n,x in enumerate(L) if 's_waitcnt vmcnt(5)' in x][0]
    i0=[n for n,x in enumerate(L) if 'v_mov_b32 v64, 0' in x][0]
    k.L+=L[:i0]; prep_params(k,31,68); prep_params(k,32,20); k.L+=L[i0:i]
    S(k,f's_cmp_ge_u32 s34, 56; s_cbranch_scc1 {k.ln("nopl")}; s_cmp_lt_u32 s34, 24; s_cselect_b32 s56, s3, 1; s_cmp_eq_u32 s56, 0; s_cbranch_scc1 {k.ln("nopl")}'); prep_load(k,68,96,13); prep_load(k,20,128,14); k.e('s_waitcnt vmcnt(16)'); k.e(f's_branch {k.ln("npl2")}')
    k.lab('nopl'); k.e('s_waitcnt vmcnt(0)'); k.lab('npl2')
    j=[n for n,x in enumerate(L) if 'moddone:' in x][0]
    k.L+=[x for x in L[i:j] if 's_waitcnt vmcnt' not in x]
    S(k,f's_cmp_ge_u32 s34, 24; s_cbranch_scc1 {k.ln("moddone")}; s_nop 1; v_mov_b32_dpp v17, v16 quad_perm:[1,1,3,3] row_mask:0xf bank_mask:0xf; v_lshrrev_b32 v224, 16, v16; v_or_b32 v224, v224, v17; v_add_u32 v225, 1, v225; s_mov_b32 exec_lo, 0x55555555; s_mov_b32 exec_hi, 0x55555555; buffer_store_dwordx2 v[224:225], v15, {W}, s35 offen sc1; s_waitcnt vmcnt(0); v_mov_b32 v10, 0; v_mov_b32 v11, 1; s_mov_b64 exec, 1; buffer_atomic_add v11, v10, {D}, 0 offen offset:64 sc0 sc1; s_waitcnt vmcnt(0); v_readfirstlane_b32 s56, v11; v_mov_b32 v11, 1; s_cmp_lg_u32 s56, 23; s_cbranch_scc1 {k.ln("moddone")}; buffer_store_dword v11, v10, {D}, 0 offen offset:128 sc1')
    k.lab('moddone'); k.e('s_mov_b64 exec, -1'); k.stamp(1)
    S(k,f's_cmp_ge_u32 s34, 64; s_cbranch_scc1 {k.ln("m2")}; s_cmp_lt_u32 s34, 24; s_cselect_b32 s56, s3, 1; s_cmp_lg_u32 s56, 0; s_cbranch_scc1 {k.ln("late")}'); prep_load(k,68,96,13); k.lab('late')
    ticket(k,'i'); touch(k)
    S(k,f's_cmp_ge_u32 s34, 56; s_cbranch_scc1 {k.ln("np2")}; s_waitcnt vmcnt(0)')
    prep_store(k,68,96,160)
    S(k,f's_sub_u32 s56, s31, 96; s_cmp_ge_u32 s56, 100; s_cbranch_scc1 {k.ln("np2")}'); prep_store(k,20,128,192); k.lab('np2')
    S(k,f's_waitcnt vmcnt(0); s_barrier; s_cmp_lg_u32 s3, 0; s_cbranch_scc1 {k.ln("hd")}; v_mov_b32 v10, 0; v_mov_b32 v11, 1; s_mov_b64 exec, 1; buffer_atomic_add v11, v10, {D}, 0 offen offset:68 sc0 sc1; s_waitcnt vmcnt(0); v_readfirstlane_b32 s56, v11; v_mov_b32 v11, 1; s_cmp_lg_u32 s56, 63; s_cbranch_scc1 {k.ln("hd")}; buffer_store_dword v11, v10, {D}, 0 offen offset:132 sc1')
    k.lab('hd'); k.e('s_mov_b64 exec, -1')
    S(k,f's_add_u32 s34, s34, 8; s_cmp_ge_u32 s34, 64; s_cbranch_scc1 {k.ln("modl")}; s_branch {k.ln("m3")}')
    k.lab('m2')
    S(k,f's_cmp_lg_u32 s3, 0; s_cbranch_scc1 {k.ln("m3")}; s_waitcnt vmcnt(0); v_mov_b32 v10, 0; v_mov_b32 v11, 1; s_mov_b64 exec, 1; buffer_atomic_add v11, v10, {D}, 0 offen offset:136 sc1')
    k.lab('m3'); k.e('s_mov_b64 exec, -1')
    dpoll(k,'v_mov_b32 v10, 128',1,'w',False)
def dpoll(k,voff,val,tag,bar=True):
    S(k,f's_cmp_lg_u32 s3, 0; s_cbranch_scc1 {k.ln("dd"+tag)}; {voff}; s_mov_b32 s57, 0x100000')
    k.lab('dl'+tag)
    S(k,f'buffer_load_dword v11, v10, {D}, 0 offen sc1; s_waitcnt vmcnt(0); v_cmp_ne_u32 vcc, {val}, v11; s_sub_u32 s57, s57, 1; s_cbranch_scc1 {k.ln("dd"+tag)}; s_cbranch_vccz {k.ln("dd"+tag)}; s_sleep 2; s_branch {k.ln("dl"+tag)}')
    k.lab('dd'+tag)
    if bar: k.e('s_barrier')
def qkv_front(k):
    R=64; PO=208; T=224; XH=64
    S(k,f'v_mul_u32_u24 v6, 768, v2; v_lshl_add_u32 v6, v3, 4, v6; s_mul_i32 s50, s3, {16*768}; s_mul_i32 s46, s20, {64*768}; s_add_u32 s50, s50, s46')
    for f in range(12): k.vmem(f'buffer_load_dwordx4 {v(X+4*f,4)}, v6, s[8:11], s50 offen offset:{64*f}','x%d'%f)
    S(k,'v_lshrrev_b32 v7, 3, v1; v_mul_u32_u24 v8, 2304, v7; v_and_b32 v9, 7, v1; v_and_b32 v7, 2, v7; v_xor_b32 v9, v9, v7; v_xor_b32 v7, 4, v9; v_lshl_add_u32 v12, v9, 4, v8; v_lshl_add_u32 v13, v7, 4, v8')
    S(k,f's_mul_i32 s51, s3, {96*2304}; s_mul_i32 s52, s21, 384; s_add_u32 s51, s51, s52; s_mul_i32 s52, s3, 12288; s_mov_b32 s55, 0x3f803f80')
    S(k,'s_mul_i32 s60, s33, 3; s_lshr_b32 s60, s60, 2; s_lshl_b32 s60, s60, 1')
    def ldu(n):
        S(k,f's_lshl_b32 s44, s60, 10; s_add_u32 s44, s44, s52; s_mul_i32 s45, s60, {8*2304}; s_add_u32 s45, s45, s51; s_add_u32 s60, s60, 1; s_cmp_eq_u32 s60, 12; s_cselect_b32 s60, 0, s60')
        for cg in range(3):
            S(k,f's_add_u32 m0, s44, {cg*49152}; s_add_u32 s59, s45, {cg*128}'); k.vmem(f'buffer_load_dwordx4 v{12+(n&1)}, s[80:83], s59 offen lds','u')
    S(k,f's_lshr_b32 s53, s20, 4; s_mul_i32 s53, s53, 3072; s_min_u32 s54, s3, 2; s_lshl_b32 s54, s54, 10; s_add_u32 s53, s53, s54; s_add_u32 s53, s53, 0x5000')
    k.vmem(f'buffer_load_dwordx4 v[232:235], v4, {W}, s53 offen sc1','snap')
    for n in range(6): ldu(n)
    touch(k)
    k.vm+=['t']*(3 if VAR=='B' else 4)
    for i in range(8): k.e(f'v_mov_b32 v{T+i}, 0')
    for f in range(12):
        if f%4==0: k.wvm('x%d'%(f+3))
        for p in range(4): k.e(f'v_dot2c_f32_bf16 v{T+p}, s55, v{X+4*f+p}'); k.e(f'v_dot2c_f32_bf16 v{T+4+p}, v{X+4*f+p}, v{X+4*f+p}')
    S(k,f's_nop 2; v_add_f32 v{T}, v{T}, v{T+1}; v_add_f32 v{T+2}, v{T+2}, v{T+3}; v_add_f32 v{T+4}, v{T+4}, v{T+5}; v_add_f32 v{T+6}, v{T+6}, v{T+7}; v_add_f32 v{T}, v{T}, v{T+2}; v_add_f32 v{T+1}, v{T+4}, v{T+6}')
    xred(k,[T,T+1],[T+2,T+3],'v_add_f32')
    S(k,f'v_mul_f32 v{T}, 0x3b2aaaab, v{T}; v_mul_f32 v{T+1}, 0x3b2aaaab, v{T+1}; v_fma_f32 v{T+1}, -v{T}, v{T}, v{T+1}; v_max_f32 v{T+1}, 0, v{T+1}; v_add_f32 v{T+1}, 0x3727c5ac, v{T+1}')
    S(k,f'v_rsq_f32 v{T+2}, v{T+1}; s_nop 0; v_mul_f32 v{T+4}, v{T}, v{T+2}; v_sub_f32 v{T+4}, 0, v{T+4}')
    def xhat(f):
        for p in range(4): S(k,f'v_lshlrev_b32 v{XH+8*f+2*p}, 16, v{X+4*f+p}; v_and_b32 v{XH+8*f+2*p+1}, 0xffff0000, v{X+4*f+p}')
        for p in range(8): k.e(f'v_fma_f32 v{XH+8*f+p}, v{XH+8*f+p}, v{T+2}, v{T+4}')
    k.stamp(1)
    for n in range(6): ldu(6+n); xhat(2*n); xhat(2*n+1)
    k.e(f'buffer_load_dwordx4 v[236:239], v4, {W}, s53 offen sc1')
    S(k,'v_bfe_u32 v7, v1, 2, 2; v_lshlrev_b32 v8, 7, v7; v_lshl_add_u32 v8, v3, 10, v8; v_and_b32 v9, 3, v1; v_lshl_add_u32 v8, v9, 3, v8; v_lshrrev_b32 v7, 1, v7; v_and_b32 v9, 1, v3; v_lshl_add_u32 v7, v9, 1, v7; s_mul_i32 s56, s3, 3')
    for ct in range(3): S(k,f's_add_u32 s57, s56, {ct}; s_and_b32 s58, s57, 3; s_lshr_b32 s57, s57, 2; s_mul_i32 s57, s57, 49152; v_xor_b32 v9, s58, v7; v_lshl_add_u32 v9, v9, 5, v8; v_add_u32 v{244+ct}, s57, v9')
    if True:
        if True:
            k.xs('q0'); S(k,'v_mov_b32 v10, 128; s_mov_b32 s57, 0x100000; s_waitcnt vmcnt(0)'); k.xs('q1'); k.e(f's_branch {k.ln("gc")}'); k.lab('gl')
            S(k,f's_sub_u32 s57, s57, 1; s_cbranch_scc1 {k.ln("gd")}; s_mov_b32 s56, 0; s_and_b32 s58, s57, 7; s_cbranch_scc1 {k.ln("gn")}; buffer_load_dword v11, v10, {D}, 0 offen sc1; s_waitcnt vmcnt(0); v_readfirstlane_b32 s56, v11')
            k.lab('gn')
            S(k,f'buffer_load_dwordx4 v[236:239], v4, {W}, s53 offen sc1; s_waitcnt vmcnt(0); s_cmp_eq_u32 s56, 1; s_cbranch_scc1 {k.ln("gd")}')
            k.lab('gc')
            S(k,f'v_cmp_eq_u32 vcc, v233, v237; v_cmp_eq_u32 s[58:59], v235, v239; s_or_b64 vcc, vcc, s[58:59]; s_cbranch_vccnz {k.ln("gl")}')
            k.lab('gd')
            S(k,f'v_lshlrev_b32 v240, 16, v236; v_and_b32 v241, 0xffff0000, v236; v_lshlrev_b32 v242, 16, v238; v_and_b32 v243, 0xffff0000, v238; s_add_u32 s54, s54, {MODL}; v_add_u32 v10, s54, v4; ds_write_b128 v10, v[240:243]')
    ticket(k,'q'); k.stamp(2); k.xs('q2')
    S(k,'s_waitcnt lgkmcnt(0); s_barrier')
    k.vm=[]; k.lg=[]
    S(k,f's_lshr_b32 s47, s20, 4; v_lshlrev_b32 v7, 5, v3; v_add_u32 v7, {MODL}, v7; s_mul_i32 s50, s3, 12288; v_add_u32 v8, s50, v4')
    def rdmod(f):
        for q in range(4): k.ds(f'ds_read_b128 {v(160+(f%3)*16+4*q,4)}, v7 offset:{f*128+(q&1)*16+(q>>1)*1536}',f'm{f}')
    rdmod(0); rdmod(1)
    for f in range(12):
        k.wlg(f'm{f}')
        if f<10: rdmod(f+2)
        for ct in range(3):
            for h in range(2): k.ds(f'ds_read_b64_tr_b16 {a((f*3+ct)*4+2*h,2)}, v{244+ct} offset:{f*4096+h*512}','b')
        o=160+(f%3)*16; t=XH+8*f
        for p in range(8): k.e(f'v_fma_f32 v{t+p}, v{t+p}, v{o+8+p}, v{o+p}')
        for p in range(4): k.e(f'v_cvt_pk_bf16_f32 v{X+4*f+p}, v{t+2*p}, v{t+2*p+1}')
    k.xs('q3'); S(k,'s_waitcnt lgkmcnt(0); s_barrier')
    for f in range(12): k.e(f'ds_write_b128 v8, {v(X+4*f,4)} offset:{f*1024}')
    stage_setup(k)
    S(k,'s_waitcnt lgkmcnt(0); s_barrier'); k.lg=[]
```

```python
from mega import *
import k_prep as kp
MODL=147968
CTS=12288+16
VAR=os.environ.get('VAR','B'); TCH=int(os.environ.get('TCH','0')); OPL=int(os.environ.get('OPL','0'))
def touch(k):
    if not TCH: return
    S(k,f'v_lshlrev_b32 v10, 18, v1; buffer_load_dword v248, v10, {W}, 0 offen sc1; v_mul_u32_u24 v10, 24576, v1; buffer_load_dword v249, v10, s[8:11], 0 offen')
    if VAR=='B':
        k.e('buffer_load_dword v251, v10, s[16:19], 0 offen sc1'); return
    S(k,f's_lshr_b32 s56, s2, 3; s_lshl_b32 s56, s56, 2; s_add_u32 s56, s56, s3; s_lshl_b32 s57, s33, 7; s_add_u32 s57, s57, s56; s_mul_i32 s58, s57, 6144; s_add_u32 s58, s58, {WS_OP}; v_lshlrev_b32 v6, 7, v1; v_add_u32 v10, s58, v6')
    S(k,f's_mul_i32 s57, s57, 1536; s_add_u32 s58, s57, {WS_X1-48*128}; v_add_u32 v7, s58, v6; v_cmp_gt_u32 vcc, 48, v1; s_lshr_b32 s58, s56, 4; s_lshl_b32 s58, s58, 14; v_cndmask_b32 v10, v7, v10, vcc')
    S(k,f's_and_b32 s56, s56, 15; s_lshl_b32 s56, s56, 7; s_add_u32 s58, s58, s56; s_lshl_b32 s56, s33, 11; s_add_u32 s58, s58, s56; s_add_u32 s58, s58, {WS_ML}; v_mov_b32 v7, s58; v_cmp_gt_u32 vcc, 60, v1; v_min_u32 v6, {11*128}, v6; s_nop 0; v_cndmask_b32 v10, v7, v10, vcc')
    S(k,f'buffer_load_dword v250, v10, {W}, 0 offen sc1; buffer_load_dword v251, v6, s[16:19], s57 offen sc1')
def prep_params(k,t,B):
    S(k,f's_cmp_lt_u32 s{t}, 180; s_cselect_b32 s{B}, s86, s88; s_cselect_b32 s{B+1}, s87, s89; s_cselect_b32 s{B+5}, 3072, 768; s_cselect_b32 s{B+6}, 0, 1; s_cselect_b32 s{B+7}, {WS_W1}, {WS_W2}'.replace(f's_cselect_b32 s{B+7}, {WS_W1}, {WS_W2}',f's_mov_b32 s56, {WS_W2}; s_cselect_b32 s{B+7}, {WS_W1}, s56').replace(f's_cselect_b32 s{B+5}, 3072, 768',f's_movk_i32 s56, 768; s_cselect_b32 s{B+5}, 3072, s56'))
    S(k,f's_cselect_b32 s57, 12, 48; s_cselect_b32 s58, 19, 21; s_movk_i32 s56, 180; s_cselect_b32 s56, 36, s56; s_mov_b32 s{B+2}, 1179648')
    S(k,f's_cmp_lt_u32 s{t}, 36; s_cselect_b32 s{B}, s84, s{B}; s_cselect_b32 s{B+1}, s85, s{B+1}; s_cselect_b32 s{B+5}, 768, s{B+5}; s_cselect_b32 s{B+6}, 1, s{B+6}; s_cselect_b32 s{B+7}, {WS_WO}, s{B+7}; s_cselect_b32 s56, 0, s56; s_cselect_b32 s{B+2}, 294912, s{B+2}')
    S(k,f's_and_b32 s{B+1}, s{B+1}, 0xffff; s_mov_b32 s{B+3}, 0x20000; s_sub_u32 s56, s{t}, s56; s_mul_i32 s55, s56, 43691; s_lshr_b32 s55, s55, s58; s_mul_i32 s54, s55, s57; s_sub_u32 s56, s56, s54')
    S(k,f's_lshl_b32 s54, s54, 3; s_add_u32 s54, s54, s56; s_lshl_b32 s54, s54, 10; s_add_u32 s{B+7}, s{B+7}, s54; s_lshl_b32 s{B+8}, s57, 10')
    S(k,f's_mul_i32 s{B+4}, s56, s{B+5}; s_lshl_b32 s{B+4}, s{B+4}, 5; s_lshl_b32 s55, s55, 8; s_add_u32 s{B+4}, s{B+4}, s55')
def prep_load(k,B,R,va):
    S(k,f's_sub_u32 s56, 3, s{B+6}; s_lshl_b32 s56, s{B+5}, s56; v_mul_lo_u32 v{va}, v3, s56; v_lshl_add_u32 v{va}, v2, 4, v{va}; s_mul_i32 s57, s{B+6}, 12; s_mul_i32 s57, s57, s{B+5}; s_mov_b32 s58, s{B+4}')
    for j in range(8):
        k.e(f'buffer_load_dwordx4 {v(R+4*j,4)}, v{va}, s[{B}:{B+3}], s58 offen'); k.e(f's_add_u32 s58, s58, s{B+5}')
        if j==3: k.e('s_add_u32 s58, s58, s57')
def prep_store(k,B,R,O):
    S(k,'v_lshrrev_b32 v7, 1, v2; v_mul_u32_u24 v7, 1040, v7; v_lshl_add_u32 v7, v3, 8, v7; v_and_b32 v8, 1, v2; v_lshl_add_u32 v7, v8, 7, v7; s_mul_i32 s56, s3, 8320; s_add_u32 s56, s56, 8192; v_add_u32 v7, s56, v7; v_add_u32 v8, s56, v4; s_mov_b32 s47, 0x05040100; s_mov_b32 s48, 0x07060302')
    for f in range(8):
        for p in range(4): k.e(f'v_perm_b32 v{O+4*f+p}, v{R+4*(2*p+1)+(f>>1)}, v{R+4*(2*p)+(f>>1)}, s{48 if f&1 else 47}')
        k.e(f'ds_write_b128 v7, {v(O+4*f,4)} offset:{16*f}')
    k.e('s_waitcnt lgkmcnt(0)')
    for f in range(8): k.e(f'ds_read_b128 {v(R+4*f,4)}, v8 offset:{1040*f}')
    k.e(f's_mov_b32 s56, s{B+7}')
    for f in range(8): S(k,f's_waitcnt lgkmcnt({7-f}); buffer_store_dwordx4 {v(R+4*f,4)}, v4, {W}, s56 offen sc1; s_add_u32 s56, s56, s{B+8}')
def helper(k):
    S(k,'s_mov_b32 s86, s88; s_mov_b32 s87, s89; s_mov_b32 s88, s90; s_mov_b32 s89, s91')
    k.srd(36,36,'c'); k.srd(92,92,'wmod')
    S(k,f's_cmp_lg_u32 s30, 0; s_cbranch_scc1 {k.ln("nz")}; v_lshlrev_b32 v6, 4, v0; v_mov_b32 v8, 0; v_mov_b32 v9, 0; v_mov_b32 v10, 0; v_mov_b32 v11, 0')
    for p in range(4): S(k,f's_mov_b32 s40, {WS_FL+p*4096}; buffer_store_dwordx4 v[8:11], v6, {W}, s40 offen sc1')
    k.lab('nz')
    S(k,'s_lshl_b32 s31, s30, 2; s_add_u32 s31, s31, s3; s_add_u32 s32, s31, 128; s_min_u32 s32, s32, 323; s_mov_b32 s34, s30')
    S(k,'v_lshrrev_b32 v15, 5, v1; v_mul_u32_u24 v15, 3072, v15; v_and_b32 v12, 30, v1; v_lshl_add_u32 v15, v12, 2, v15; s_min_u32 s35, s30, 23; s_lshl_b32 s35, s35, 7; s_add_u32 s35, s35, 0x5000')
    k.e(f'buffer_load_dwordx2 v[224:225], v15, {W}, s35 offen sc1')
    k.lab('modl')
    k2=K(k.name,0,0,0,0,0); kp.mod_body(k2,0,36,92,12,' sc1')
    L=[x.replace('s_sub_u32 s40, s2, 0','s_mov_b32 s40, s34') for x in k2.L]
    i=[n for n,x in enumerate(L) if 's_waitcnt vmcnt(5)' in x][0]
    i0=[n for n,x in enumerate(L) if 'v_mov_b32 v64, 0' in x][0]
    k.L+=L[:i0]; prep_params(k,31,68); prep_params(k,32,20); k.L+=L[i0:i]
    S(k,f's_cmp_ge_u32 s34, 56; s_cbranch_scc1 {k.ln("nopl")}; s_cmp_lt_u32 s34, 24; s_cselect_b32 s56, s3, 1; s_cmp_eq_u32 s56, 0; s_cbranch_scc1 {k.ln("nopl")}'); prep_load(k,68,96,13); prep_load(k,20,128,14); k.e('s_waitcnt vmcnt(16)'); k.e(f's_branch {k.ln("npl2")}')
    k.lab('nopl'); k.e('s_waitcnt vmcnt(0)'); k.lab('npl2')
    j=[n for n,x in enumerate(L) if 'moddone:' in x][0]
    k.L+=[x for x in L[i:j] if 's_waitcnt vmcnt' not in x]
    S(k,f's_cmp_ge_u32 s34, 24; s_cbranch_scc1 {k.ln("moddone")}; s_nop 1; v_mov_b32_dpp v17, v16 quad_perm:[1,1,3,3] row_mask:0xf bank_mask:0xf; v_lshrrev_b32 v224, 16, v16; v_or_b32 v224, v224, v17; v_add_u32 v225, 1, v225; s_mov_b32 exec_lo, 0x55555555; s_mov_b32 exec_hi, 0x55555555; buffer_store_dwordx2 v[224:225], v15, {W}, s35 offen sc1; s_waitcnt vmcnt(0); v_mov_b32 v10, 0; v_mov_b32 v11, 1; s_mov_b64 exec, 1; buffer_atomic_add v11, v10, {D}, 0 offen offset:64 sc0 sc1; s_waitcnt vmcnt(0); v_readfirstlane_b32 s56, v11; v_mov_b32 v11, 1; s_cmp_lg_u32 s56, 23; s_cbranch_scc1 {k.ln("moddone")}; buffer_store_dword v11, v10, {D}, 0 offen offset:128 sc1')
    k.lab('moddone'); k.e('s_mov_b64 exec, -1'); k.stamp(1)
    S(k,f's_cmp_ge_u32 s34, 64; s_cbranch_scc1 {k.ln("m2")}; s_cmp_lt_u32 s34, 24; s_cselect_b32 s56, s3, 1; s_cmp_lg_u32 s56, 0; s_cbranch_scc1 {k.ln("late")}'); prep_load(k,68,96,13); k.lab('late')
    ticket(k,'i'); touch(k)
    S(k,f's_cmp_ge_u32 s34, 56; s_cbranch_scc1 {k.ln("np2")}; s_waitcnt vmcnt(0)')
    prep_store(k,68,96,160)
    S(k,f's_sub_u32 s56, s31, 96; s_cmp_ge_u32 s56, 100; s_cbranch_scc1 {k.ln("np2")}'); prep_store(k,20,128,192); k.lab('np2')
    S(k,f's_waitcnt vmcnt(0); s_barrier; s_cmp_lg_u32 s3, 0; s_cbranch_scc1 {k.ln("hd")}; v_mov_b32 v10, 0; v_mov_b32 v11, 1; s_mov_b64 exec, 1; buffer_atomic_add v11, v10, {D}, 0 offen offset:68 sc0 sc1; s_waitcnt vmcnt(0); v_readfirstlane_b32 s56, v11; v_mov_b32 v11, 1; s_cmp_lg_u32 s56, 63; s_cbranch_scc1 {k.ln("hd")}; buffer_store_dword v11, v10, {D}, 0 offen offset:132 sc1')
    k.lab('hd'); k.e('s_mov_b64 exec, -1')
    S(k,f's_add_u32 s34, s34, 8; s_cmp_ge_u32 s34, 64; s_cbranch_scc1 {k.ln("modl")}; s_branch {k.ln("m3")}')
    k.lab('m2')
    S(k,f's_cmp_lg_u32 s3, 0; s_cbranch_scc1 {k.ln("m3")}; s_waitcnt vmcnt(0); v_mov_b32 v10, 0; v_mov_b32 v11, 1; s_mov_b64 exec, 1; buffer_atomic_add v11, v10, {D}, 0 offen offset:136 sc1')
    k.lab('m3'); k.e('s_mov_b64 exec, -1')
    dpoll(k,'v_mov_b32 v10, 128',1,'w',False)
def dpoll(k,voff,val,tag,bar=True):
    S(k,f's_cmp_lg_u32 s3, 0; s_cbranch_scc1 {k.ln("dd"+tag)}; {voff}; s_mov_b32 s57, 0x100000')
    k.lab('dl'+tag)
    S(k,f'buffer_load_dword v11, v10, {D}, 0 offen sc1; s_waitcnt vmcnt(0); v_cmp_ne_u32 vcc, {val}, v11; s_sub_u32 s57, s57, 1; s_cbranch_scc1 {k.ln("dd"+tag)}; s_cbranch_vccz {k.ln("dd"+tag)}; s_sleep 2; s_branch {k.ln("dl"+tag)}')
    k.lab('dd'+tag)
    if bar: k.e('s_barrier')
def qkv_front(k):
    R=64; PO=208; T=224; XH=64
    S(k,f'v_mul_u32_u24 v6, 768, v2; v_lshl_add_u32 v6, v3, 4, v6; s_mul_i32 s50, s3, {16*768}; s_mul_i32 s46, s20, {64*768}; s_add_u32 s50, s50, s46')
    for f in range(12): k.vmem(f'buffer_load_dwordx4 {v(X+4*f,4)}, v6, s[8:11], s50 offen offset:{64*f}','x%d'%f)
    S(k,'v_lshrrev_b32 v7, 3, v1; v_mul_u32_u24 v8, 2304, v7; v_and_b32 v9, 7, v1; v_and_b32 v7, 2, v7; v_xor_b32 v9, v9, v7; v_xor_b32 v7, 4, v9; v_lshl_add_u32 v12, v9, 4, v8; v_lshl_add_u32 v13, v7, 4, v8')
    S(k,f's_mul_i32 s51, s3, {96*2304}; s_mul_i32 s52, s21, 384; s_add_u32 s51, s51, s52; s_mul_i32 s52, s3, 12288; s_mov_b32 s55, 0x3f803f80')
    S(k,'s_mul_i32 s60, s33, 3; s_lshr_b32 s60, s60, 2; s_lshl_b32 s60, s60, 1')
    def ldu(n):
        S(k,f's_lshl_b32 s44, s60, 10; s_add_u32 s44, s44, s52; s_mul_i32 s45, s60, {8*2304}; s_add_u32 s45, s45, s51; s_add_u32 s60, s60, 1; s_cmp_eq_u32 s60, 12; s_cselect_b32 s60, 0, s60')
        for cg in range(3):
            S(k,f's_add_u32 m0, s44, {cg*49152}; s_add_u32 s59, s45, {cg*128}'); k.vmem(f'buffer_load_dwordx4 v{12+(n&1)}, s[80:83], s59 offen lds','u')
    S(k,f's_lshr_b32 s53, s20, 4; s_mul_i32 s53, s53, 3072; s_min_u32 s54, s3, 2; s_lshl_b32 s54, s54, 10; s_add_u32 s53, s53, s54; s_add_u32 s53, s53, 0x5000')
    k.vmem(f'buffer_load_dwordx4 v[232:235], v4, {W}, s53 offen sc1','snap')
    for n in range(6): ldu(n)
    touch(k)
    k.vm+=['t']*((3 if VAR=='B' else 4) if TCH else 0)
    for i in range(8): k.e(f'v_mov_b32 v{T+i}, 0')
    for f in range(12):
        if f%4==0: k.wvm('x%d'%(f+3))
        for p in range(4): k.e(f'v_dot2c_f32_bf16 v{T+p}, s55, v{X+4*f+p}'); k.e(f'v_dot2c_f32_bf16 v{T+4+p}, v{X+4*f+p}, v{X+4*f+p}')
    S(k,f's_nop 2; v_add_f32 v{T}, v{T}, v{T+1}; v_add_f32 v{T+2}, v{T+2}, v{T+3}; v_add_f32 v{T+4}, v{T+4}, v{T+5}; v_add_f32 v{T+6}, v{T+6}, v{T+7}; v_add_f32 v{T}, v{T}, v{T+2}; v_add_f32 v{T+1}, v{T+4}, v{T+6}')
    xred(k,[T,T+1],[T+2,T+3],'v_add_f32')
    S(k,f'v_mul_f32 v{T}, 0x3b2aaaab, v{T}; v_mul_f32 v{T+1}, 0x3b2aaaab, v{T+1}; v_fma_f32 v{T+1}, -v{T}, v{T}, v{T+1}; v_max_f32 v{T+1}, 0, v{T+1}; v_add_f32 v{T+1}, 0x3727c5ac, v{T+1}')
    S(k,f'v_rsq_f32 v{T+2}, v{T+1}; s_nop 0; v_mul_f32 v{T+4}, v{T}, v{T+2}; v_sub_f32 v{T+4}, 0, v{T+4}')
    def xhat(f):
        for p in range(4): S(k,f'v_lshlrev_b32 v{XH+8*f+2*p}, 16, v{X+4*f+p}; v_and_b32 v{XH+8*f+2*p+1}, 0xffff0000, v{X+4*f+p}')
        for p in range(8): k.e(f'v_fma_f32 v{XH+8*f+p}, v{XH+8*f+p}, v{T+2}, v{T+4}')
    k.stamp(1)
    for n in range(6): ldu(6+n); xhat(2*n); xhat(2*n+1)
    k.e(f'buffer_load_dwordx4 v[236:239], v4, {W}, s53 offen sc1')
    S(k,'v_bfe_u32 v7, v1, 2, 2; v_lshlrev_b32 v8, 7, v7; v_lshl_add_u32 v8, v3, 10, v8; v_and_b32 v9, 3, v1; v_lshl_add_u32 v8, v9, 3, v8; v_lshrrev_b32 v7, 1, v7; v_and_b32 v9, 1, v3; v_lshl_add_u32 v7, v9, 1, v7; s_mul_i32 s56, s3, 3')
    for ct in range(3): S(k,f's_add_u32 s57, s56, {ct}; s_and_b32 s58, s57, 3; s_lshr_b32 s57, s57, 2; s_mul_i32 s57, s57, 49152; v_xor_b32 v9, s58, v7; v_lshl_add_u32 v9, v9, 5, v8; v_add_u32 v{244+ct}, s57, v9')
    if True:
        if True:
            k.xs('q0'); S(k,'v_mov_b32 v10, 128; s_mov_b32 s57, 0x100000; s_waitcnt vmcnt(0)'); k.xs('q1'); k.e(f's_branch {k.ln("gc")}'); k.lab('gl')
            S(k,f's_sub_u32 s57, s57, 1; s_cbranch_scc1 {k.ln("gd")}; s_mov_b32 s56, 0; s_and_b32 s58, s57, 7; s_cbranch_scc1 {k.ln("gn")}; buffer_load_dword v11, v10, {D}, 0 offen sc1; s_waitcnt vmcnt(0); v_readfirstlane_b32 s56, v11')
            k.lab('gn')
            S(k,f'buffer_load_dwordx4 v[236:239], v4, {W}, s53 offen sc1; s_waitcnt vmcnt(0); s_cmp_eq_u32 s56, 1; s_cbranch_scc1 {k.ln("gd")}')
            k.lab('gc')
            S(k,f'v_cmp_eq_u32 vcc, v233, v237; v_cmp_eq_u32 s[58:59], v235, v239; s_or_b64 vcc, vcc, s[58:59]; s_cbranch_vccnz {k.ln("gl")}')
            k.lab('gd')
            S(k,f'v_lshlrev_b32 v240, 16, v236; v_and_b32 v241, 0xffff0000, v236; v_lshlrev_b32 v242, 16, v238; v_and_b32 v243, 0xffff0000, v238; s_add_u32 s54, s54, {MODL}; v_add_u32 v10, s54, v4; ds_write_b128 v10, v[240:243]')
    ticket(k,'q'); k.stamp(2); k.xs('q2')
    S(k,'s_waitcnt lgkmcnt(0); s_barrier')
    k.vm=[]; k.lg=[]
    S(k,f's_lshr_b32 s47, s20, 4; v_lshlrev_b32 v7, 5, v3; v_add_u32 v7, {MODL}, v7; s_mul_i32 s50, s3, 12288; v_add_u32 v8, s50, v4')
    def rdmod(f):
        for q in range(4): k.ds(f'ds_read_b128 {v(160+(f%3)*16+4*q,4)}, v7 offset:{f*128+(q&1)*16+(q>>1)*1536}',f'm{f}')
    rdmod(0); rdmod(1)
    for f in range(12):
        k.wlg(f'm{f}')
        if f<10: rdmod(f+2)
        for ct in range(3):
            for h in range(2): k.ds(f'ds_read_b64_tr_b16 {a((f*3+ct)*4+2*h,2)}, v{244+ct} offset:{f*4096+h*512}','b')
        o=160+(f%3)*16; t=XH+8*f
        for p in range(8): k.e(f'v_fma_f32 v{t+p}, v{t+p}, v{o+8+p}, v{o+p}')
        for p in range(4): k.e(f'v_cvt_pk_bf16_f32 v{X+4*f+p}, v{t+2*p}, v{t+2*p+1}')
    k.xs('q3'); S(k,'s_waitcnt lgkmcnt(0); s_barrier')
    for f in range(12): k.e(f'ds_write_b128 v8, {v(X+4*f,4)} offset:{f*1024}')
    stage_setup(k)
    S(k,'s_waitcnt lgkmcnt(0); s_barrier'); k.lg=[]
```

```python
from mega import *
from start import *
MAP2=int(os.environ.get('MAP2','1'))
STCH=int(os.environ.get('STCH','0'))<<10
WBL2=int(os.environ.get('WBL2','1'))
def attn_phase(k,ld):
    Sx=16; O=80; QF=128; T=160
    S(k,f's_lshl_b32 s25, s22, 6; s_lshl_b32 s26, s24, 2; s_add_u32 s26, s26, s25; s_add_u32 s26, s26, s3; s_mul_i32 s26, s26, 6144; s_add_u32 s26, s26, {WS_Q}')
    S(k,f's_lshl_b32 s29, s23, 4; s_add_u32 s29, s29, s25; s_lshl_b32 s27, s3, 2; s_add_u32 s29, s29, s27; s_mul_i32 s29, s29, 6144; s_add_u32 s29, s29, {WS_K}')
    S(k,f's_lshl_b32 s34, s22, 5; s_lshl_b32 s27, s23, 3; s_add_u32 s34, s34, s27; s_mul_i32 s34, s34, 12288; s_mul_i32 s27, s3, 3072; s_add_u32 s34, s34, s27; s_add_u32 s34, s34, {WS_V}')
    S(k,'s_lshr_b32 s40, s22, 1; s_lshl_b32 s40, s40, 4; s_and_b32 s41, s22, 1; s_lshl_b32 s42, s23, 2; s_add_u32 s42, s42, s40; s_add_u32 s43, s40, s24')
    S(k,'v_and_b32 v10, 3, v1; v_add_u32 v10, s42, v10; v_lshlrev_b32 v10, 7, v10; v_lshrrev_b32 v11, 2, v1; v_lshl_add_u32 v10, v11, 3, v10; s_lshl_b32 s44, s41, 2; s_add_u32 s45, s44, 8; v_add_u32 v10, s45, v10')
    S(k,'s_lshl_b32 s45, s43, 7; s_add_u32 s45, s45, s44; v_mov_b32 v11, s45; v_cmp_gt_u32 vcc, 8, v1; s_nop 1; v_cndmask_b32 v10, v11, v10, vcc')
    S(k,'s_mul_i32 s27, s3, 6144; s_mov_b32 m0, s27; s_add_u32 s28, s26, 4096')
    poll(k,0,'a'); k.stamp(5)
    for i in range(4): k.vmem(f'buffer_load_dwordx4 v4, {W}, s26 offen offset:{i*1024} sc1 lds','q')
    S(k,'s_add_u32 s27, s27, 4096; s_mov_b32 m0, s27; s_nop 0')
    for i in range(2): k.vmem(f'buffer_load_dwordx4 v4, {W}, s28 offen offset:{i*1024} sc1 lds','q')
    k.e('v_mov_b32 v9, 132'); k.vmem('buffer_load_dwordx2 v[6:7], v9, s[96:99], 0 offen sc1','hd')
    for kb in range(6):
        for kt in range(4): ld.add(a((kb*4+kt)*4,4),29,kt*6144+kb*1024,f'K{kb}',' sc1')
    for j in range(8):
        for i in range(3): ld.add(a(96+(j*3+i)*4,4),34,j*12288+i*1024,f'V{j}',' sc1')
    ld.issue(24)
    k.wvm('q'); k.e('s_barrier')
    def rdq(kb):
        for qt in range(4): k.ds(f'ds_read_b128 {v(QF+(kb&1)*16+4*qt,4)}, v4 offset:{(qt*6+kb)*1024}',f'q{kb}_{qt}')
    rdq(0)
    for kb in range(6):
        if kb<5: rdq(kb+1)
        k.wvm(f'K{kb}')
        for qt in range(4):
            k.wlg(f'q{kb}_{qt}')
            for kt in range(4):
                Dd=v(Sx+(qt*4+kt)*4,4)
                k.e(f'v_mfma_f32_16x16x32_bf16 {Dd}, {a((kb*4+kt)*4,4)}, {v(QF+(kb&1)*16+4*qt,4)}, {Dd if kb else 0}')
            ld.issue(1)
    k.stamp(6)
    k.e('s_mov_b32 s57, 0x100000'); k.lab('hl')
    S(k,f'v_readfirstlane_b32 s56, v6; v_readfirstlane_b32 s58, v7; s_add_u32 s56, s56, s58; s_cmp_eq_u32 s56, 9; s_cbranch_scc1 {k.ln("hk")}; s_sub_u32 s57, s57, 1; s_cbranch_scc1 {k.ln("hk")}; s_sleep 2; buffer_load_dwordx2 v[6:7], v9, s[96:99], 0 offen sc1; s_waitcnt vmcnt(0); s_branch {k.ln("hl")}')
    k.lab('hk')
    S(k,f's_lshr_b32 s56, s20, 4; s_mul_i32 s56, s56, 9216; s_lshl_b32 s57, s3, 10; s_add_u32 s56, s56, s57; s_add_u32 s56, s56, {1152*4}; s_lshr_b32 s58, s20, 4; s_mul_i32 s58, s58, 4608; s_add_u32 s58, s58, {0xC000+2304}; s_cmp_eq_u32 s3, 3; s_cselect_b32 s56, s58, s56; s_add_u32 m0, s57, 92160; s_nop 0')
    k.vmem(f'buffer_load_dwordx4 v4, {W}, s56 offen sc1 lds','mod')
    for ct in range(6):
        for kb in range(3): ld.add(wo_reg(kb*6+ct),35,ct*12288+kb*1024,'wo')
    S(k,'s_lshl_b32 s56, s33, 2; v_mov_b32 v5, 0'); k.vmem(f'buffer_load_dword v5, v5, s[96:99], s56 offen sc1','cnt')
    for ct in range(3):
        for kb in range(8): ld.add(a((kb*3+ct)*4,4),38,(ct*12+kb)*1024,'w1')
    k.e(f's_mov_b32 s40, {f2(192**-0.5*1.4426950408889634)}')
    S(k,'s_lshl_b32 s41, s3, 8; v_lshlrev_b32 v6, 4, v2; v_add_u32 v6, 57344, v6; v_add_u32 v7, s41, v6; s_mul_i32 s42, s3, 8192; s_add_u32 s42, s42, 24576; v_add_u32 v8, s42, v4; s_nop 4')
    for qt in range(4):
        b=Sx+qt*16
        k.e(f'v_max3_f32 v{T+qt}, v{b}, v{b+1}, v{b+2}')
        for i in range(3,15,2): k.e(f'v_max3_f32 v{T+qt}, v{T+qt}, v{b+i}, v{b+i+1}')
        k.e(f'v_max_f32 v{T+qt}, v{T+qt}, v{b+15}')
    xred(k,[T,T+1,T+2,T+3],[T+4,T+5,T+6,T+7],'v_max_f32')
    k.e(f'ds_write_b128 v7, {v(T,4)}'); ld.issue(1); k.e('s_waitcnt lgkmcnt(0)'); k.e('s_barrier')
    for w in range(4): k.e(f'ds_read_b128 {v(T+8+4*w,4)}, v6 offset:{w*256}')
    ld.issue(1)
    for i in range(4): k.e(f'v_mov_b32 v{T+4+i}, 0x3f803f80')
    S(k,'s_lshl_b32 s42, s3, 10; v_add_u32 v9, s42, v4; s_waitcnt lgkmcnt(0)')
    for qt in range(4):
        S(k,f'v_max3_f32 v{T+qt}, v{T+8+qt}, v{T+12+qt}, v{T+16+qt}; v_max_f32 v{T+qt}, v{T+qt}, v{T+20+qt}; v_mul_f32 v{T+qt}, s40, v{T+qt}; v_ceil_f32 v{T+qt}, v{T+qt}')
    for qt in range(4):
        b=Sx+qt*16
        for hh in range(2):
            for i in range(8*hh,8*hh+8): k.e(f'v_fma_f32 v{b+i}, v{b+i}, s40, -v{T+qt}')
            ld.issue(1)
            for i in range(8*hh,8*hh+8): k.e(f'v_exp_f32 v{b+i}, v{b+i}')
            ld.issue(1)
            for i in range(4*hh,4*hh+4): k.e(f'v_cvt_pk_bf16_f32 v{b+i}, v{b+2*i}, v{b+2*i+1}')
            k.e(f'ds_write_b128 v8, {v(b+4*hh,4)} offset:{(hh*4+qt)*1024}')
    k.e('s_waitcnt lgkmcnt(0)'); k.e('s_barrier'); k.lg=[]
    k.stamp(7)
    LA=T+8; PW=T+16
    def rdp(j):
        for qt in range(4): k.ds(f'ds_read_b128 {v(QF+(j&1)*16+4*qt,4)}, v4 offset:{24576+(j*4+qt)*1024}',f'p{j}_{qt}')
        k.ds(f'ds_read_b128 {v(PW+(j&1)*4,4)}, v9 offset:{24576+j*4096}',f'pw{j}')
    rdp(0)
    for j in range(8):
        if j<7: rdp(j+1)
        k.wvm(f'V{j}')
        for qt in range(4):
            k.wlg(f'p{j}_{qt}')
            for i in range(3):
                D=v(O+(qt*3+i)*4,4)
                k.e(f'v_mfma_f32_16x16x32_bf16 {D}, {a(96+(j*3+i)*4,4)}, {v(QF+(j&1)*16+4*qt,4)}, {D if j else 0}')
            ld.issue(1)
        k.wlg(f'pw{j}')
        k.e(f'v_mfma_f32_16x16x32_bf16 {v(LA,4)}, {v(T+4,4)}, {v(PW+(j&1)*4,4)}, {v(LA,4) if j else 0}')
        if j==2:
            S(k,'s_lshr_b32 s26, s22, 1; s_lshl_b32 s26, s26, 6; s_lshl_b32 s27, s24, 2; s_add_u32 s26, s26, s27')
            S(k,f's_lshl_b32 s27, s20, 2; s_add_u32 s27, s27, s23; s_mul_i32 s27, s27, 49152; s_add_u32 s27, s27, {WS_OP}')
            S(k,'s_and_b32 s28, s22, 1; s_mul_i32 s29, s28, 6144; s_add_u32 s32, s29, s27')
            stage_setup(k)
        if j==3:
            k.wvm('cnt'); S(k,'v_readfirstlane_b32 s56, v5; s_cmp_ge_u32 s56, 32; s_cselect_b32 s63, s63, 0')
            k.e(f'v_mov_b32 v{T+12}, v{T}')
            for qt in range(1,4): S(k,f's_cmp_eq_u32 s3, {qt}; s_cselect_b64 vcc, -1, 0; v_cndmask_b32 v{T+12}, v{T+12}, v{T+qt}, vcc')
            S(k,f's_lshl_b32 s27, s23, 1; s_add_u32 s27, s27, s28; s_lshl_b32 s27, s27, 14; s_add_u32 s26, s26, s3; s_lshl_b32 s26, s26, 7; s_add_u32 s27, s27, s26; s_add_u32 s27, s27, {WS_ML}; v_lshlrev_b32 v10, 3, v1')
    assert not ld.q
    k.e('s_nop 4'); k.stamp(8)
    for qt in range(4):
        for i in range(3): stage_put(k,O+(qt*3+i)*4,qt,i)
    S(k,f'v_mov_b32 v{T+13}, v{LA}; s_mov_b64 exec, 0xffff')
    dual(k,lambda sc: k.e(f'buffer_store_dwordx2 {v(T+12,2)}, v10, {W}, s27 offen{sc}'),'ml',bool(OPL))
    k.e('s_mov_b64 exec, -1')
    stage_out(k,32,12288,QF,'a' if OPL else None)
    S(k,'s_lshl_b32 s44, s28, 2; s_add_u32 s44, s44, s23')
    publish(k,1,43,44,'a')
def wo_phase(k,ld):
    X1A=f's_add_u32 s25, s25, s47; s_add_u32 s25, s25, {WS_X1}'
    if VAR=='B':
        S(k,f's_lshr_b32 s34, s20, 4; s_lshl_b32 s34, s34, 5; s_and_b32 s56, s20, 15; s_add_u32 s34, s34, s56; s_mul_i32 s34, s34, 24576; s_add_u32 s34, s34, {WS_Q}')
        X1A=f's_and_b32 s56, s36, 1; s_mul_i32 s56, s56, {16*24576}; s_add_u32 s25, s25, s56; s_add_u32 s25, s25, s34'
    AC=16; OPR=64; Wt=160; T=184; E=200
    S(k,'s_lshr_b32 s40, s3, 1; s_min_u32 s41, s3, 2; s_mul_i32 s48, s37, 3; s_add_u32 s48, s48, s41')
    S(k,f's_mul_i32 s47, s36, {32*768}; s_lshl_b32 s25, s48, 10; {X1A}; s_add_u32 s31, s25, 12288; s_lshl_b32 s49, s48, 6; s_add_u32 s47, s47, s49; s_add_u32 s49, s47, 12288')
    S(k,f's_lshr_b32 s26, s36, 5; s_mul_i32 s26, s26, 9216; s_lshl_b32 s27, s48, 7; s_add_u32 s26, s26, s27; s_add_u32 s26, s26, {768*4}')
    S(k,'v_mul_u32_u24 v6, 768, v2; v_lshl_add_u32 v6, v3, 4, v6; v_lshlrev_b32 v7, 5, v3')
    S(k,f's_lshl_b32 s27, s40, 14; s_lshl_b32 s28, s36, 8; s_add_u32 s27, s27, s28; s_add_u32 s27, s27, {WS_ML}; v_lshlrev_b32 v12, 3, v2')
    S(k,f's_mul_i32 s28, s3, 3072; s_mul_i32 s29, s20, 196608; s_add_u32 s29, s29, s28; s_and_b32 s28, s36, 1; s_mul_i32 s28, s28, 24576; s_add_u32 s29, s29, s28; s_add_u32 s29, s29, {WS_OP}; s_lshr_b32 s30, s36, 1')
    ld.reset(); poll8(k,1,30,'w'); k.stamp(9)
    for s in range(4):
        for rt in range(2): k.vmem(f'buffer_load_dwordx2 {v(Wt+(rt*4+s)*2,2)}, v12, {W}, s27 offen offset:{rt*128} sc1','ml')
        k.e('s_add_u32 s27, s27, 32768')
    for kb in range(3):
        for rt in range(2):
            for s in range(4): ld.add(v(OPR+((kb*2+rt)*4+s)*4,4),29,s*49152+rt*12288+kb*1024,f'o{kb}_{rt}',' sc1')
    ld.issue(16)
    k.xs('w0'); k.wvm('ml'); k.xs('w1')
    for rt in range(2):
        b=Wt+rt*8
        S(k,f'v_max3_f32 v{T}, v{b}, v{b+2}, v{b+4}; v_max_f32 v{T}, v{T}, v{b+6}')
        for s in range(4): k.e(f'v_sub_f32 v{b+2*s}, v{b+2*s}, v{T}')
        for s in range(4): k.e(f'v_exp_f32 v{b+2*s}, v{b+2*s}')
        k.e('s_nop 0')
        S(k,f'v_mul_f32 v{T}, v{b}, v{b+1}; v_mul_f32 v{T+1}, v{b+2}, v{b+3}; v_fmac_f32 v{T}, v{b+4}, v{b+5}; v_fmac_f32 v{T+1}, v{b+6}, v{b+7}; v_add_f32 v{T}, v{T}, v{T+1}; v_rcp_f32 v{T}, v{T}; s_nop 0')
        k.e(f'v_mov_b32 v{176+rt}, v{T}')
        for s in range(4): S(k,f'v_and_b32 v{b+2*s+1}, 0xffff0000, v{b+2*s}; v_lshrrev_b32 v{b+2*s}, 16, v{b+2*s}')
    for kb in range(3):
        for rt in range(2):
            if kb==1 and rt==0:
                assert not ld.q
                k.vmem(f'buffer_load_dwordx4 {v(E,4)}, v6, s[8:11], s47 offen','epi'); k.vmem(f'buffer_load_dwordx4 {v(E+4,4)}, v6, s[8:11], s49 offen','epi')
                k.vmem(f'buffer_load_dwordx4 {v(E+8,4)}, v7, {W}, s26 offen sc1','epi'); k.vmem(f'buffer_load_dwordx4 {v(E+12,4)}, v7, {W}, s26 offen offset:16 sc1','epi')
            if kb==1 and rt==0:
                for ct in range(3):
                    for k2 in range(8,12): ld.add(a((k2*3+ct)*4,4),38,(ct*12+k2)*1024,'w1')
            k.wvm(f'o{kb}_{rt}')
            if rt==0: k.xs('o%d'%kb)
            o=OPR+(kb*2+rt)*16
            for s in range(4):
                for p in range(8):
                    k.e(f'v_dot2_f32_bf16 v{T+p}, v{o+4*s+p//2}, v{Wt+rt*8+2*s+(p&1)}, '+('0' if s==0 else f'v{T+p}'))
                ld.issue(1)
            k.e('s_nop 2')
            for p in range(8): k.e(f'v_mul_f32 v{T+p}, v{T+p}, v{176+rt}')
            for p in range(4): k.e(f'v_cvt_pk_bf16_f32 v{o+p}, v{T+2*p}, v{T+2*p+1}')
            k.e('s_nop 1')
            for ct in range(6):
                D=v(AC+(rt*6+ct)*4,4)
                k.e(f'v_mfma_f32_16x16x32_bf16 {D}, {wo_reg(kb*6+ct)}, {v(o,4)}, {D if kb else 0}')
    k.stamp(10); k.wvm('epi')
    S(k,'s_mul_i32 s50, s3, 12288; v_add_u32 v8, s50, v4; s_lshl_b32 s50, s41, 11; v_lshrrev_b32 v9, 1, v3; v_lshlrev_b32 v9, 10, v9; v_and_b32 v13, 1, v3; v_lshl_add_u32 v9, v13, 9, v9; v_lshl_add_u32 v9, v2, 4, v9; v_add_u32 v9, s50, v9')
    for t in range(12): k.e(f'ds_write_b128 v8, {v(AC+4*t,4)} offset:{t*1024}')
    S(k,f's_waitcnt lgkmcnt(0); s_barrier; s_cmp_eq_u32 s3, 3; s_cbranch_scc1 {k.ln("wo3")}')
    for rt in range(2):
        for w in range(4):
            for e in range(2): k.e(f'ds_read_b128 {v(64+rt*32+w*8+e*4,4)}, v9 offset:{w*12288+rt*6144+e*256}')
    for rt in range(2):
        b=64+rt*32; t=128
        for p in range(4): S(k,f'v_lshlrev_b32 v{t+2*p}, 16, v{E+4*rt+p}; v_and_b32 v{t+2*p+1}, 0xffff0000, v{E+4*rt+p}')
        k.e(f's_waitcnt lgkmcnt({8-8*rt})')
        for h in range(8): S(k,f'v_add_f32 v{b+h}, v{b+h}, v{b+8+h}; v_add_f32 v{b+16+h}, v{b+16+h}, v{b+24+h}')
        for h in range(8): k.e(f'v_add_f32 v{b+h}, v{b+h}, v{b+16+h}')
        for h in range(8): k.e(f'v_fma_f32 v{b+h}, v{b+h}, v{E+8+h}, v{t+h}')
        for p in range(4): k.e(f'v_cvt_pk_bf16_f32 v{b+p}, v{b+2*p}, v{b+2*p+1}')
        dual(k,lambda sc: k.e(f'buffer_store_dwordx4 {v(b,4)}, v4, {W}, s{31 if rt else 25} offen{sc}'),f'x{rt}',True)
    k.lab('wo3')
    S(k,'s_and_b32 s44, s36, 1; s_lshl_b32 s44, s44, 2; s_add_u32 s44, s44, s37')
    publish(k,2,30,44,'w')
def ln2(k):
    SC=112; BI=208; RS=220; T2=64
    S(k,'v_lshlrev_b32 v7, 5, v3; v_add_u32 v7, 92160, v7; s_mul_i32 s50, s3, 12288; v_add_u32 v8, s50, v4; s_add_u32 s50, s50, s46')
    if VAR=='B': S(k,f's_lshr_b32 s56, s3, 1; s_mul_i32 s56, s56, {16*24576}; s_and_b32 s57, s3, 1; s_mul_i32 s57, s57, 12288; s_add_u32 s56, s56, s57; s_add_u32 s34, s34, s56; s_mov_b32 s50, s34')
    S(k,'s_add_u32 s51, s50, 4096; s_add_u32 s52, s50, 8192')
    poll8(k,2,20,'f'); k.stamp(11)
    for f in range(12): k.vmem(f'buffer_load_dwordx4 {v(X+4*f,4)}, v4, {W}, s{50+f//4} offen offset:{1024*(f%4)} sc1','x%d'%f)
    S(k,f'v_lshlrev_b32 v9, 4, v3; v_add_u32 v9, {92160+3072}, v9')
    for f in range(12): k.e(f'ds_read_b128 {a(144+4*f,4)}, v9 offset:{f*64}')
    for f in range(12):
        for q in range(2): k.e(f'ds_read_b128 {v(SC+8*f+4*q,4)}, v7 offset:{1536+f*128+q*16}')
    stage_setup(k)
    S(k,'s_mov_b32 s55, 0x3f803f80; v_mov_b32 v5, 0x3f80; v_mov_b32 v6, 0x3f800000; s_lshl_b32 s56, s3, 6; s_add_u32 s56, s56, 53248; v_lshlrev_b32 v9, 2, v2; v_add_u32 v7, s56, v9; v_add_u32 v9, 53248, v9')
    for i in range(8): k.e(f'v_mov_b32 v{T2+i}, 0')
    k.e('s_waitcnt lgkmcnt(0)')
    for f in range(12):
        if f%2==0: k.wvm('x%d'%(f+1))
        for p in range(4): k.e(f'v_dot2c_f32_bf16 v{T2+p}, s55, v{X+4*f+p}'); k.e(f'v_dot2c_f32_bf16 v{T2+4+p}, v{X+4*f+p}, v{X+4*f+p}')
    t=T2
    S(k,f's_nop 2; v_add_f32 v{t}, v{t}, v{t+1}; v_add_f32 v{t+2}, v{t+2}, v{t+3}; v_add_f32 v{t+4}, v{t+4}, v{t+5}; v_add_f32 v{t+6}, v{t+6}, v{t+7}; v_add_f32 v{t}, v{t}, v{t+2}; v_add_f32 v{t+1}, v{t+4}, v{t+6}')
    xred(k,[t,t+1],[t+2,t+3],'v_add_f32')
    S(k,f'v_mul_f32 v{t}, 0xbb2aaaab, v{t}; v_mul_f32 v{t+1}, 0x3b2aaaab, v{t+1}; v_fma_f32 v{t+1}, -v{t}, v{t}, v{t+1}; v_max_f32 v{t+1}, 0, v{t+1}; v_add_f32 v{t+1}, 0x3727c5ac, v{t+1}; v_rsq_f32 v{t+2}, v{t+1}')
    def ctr(f):
        for p in range(8): k.e(f'v_dot2_f32_bf16 v{T2+8+(f&1)*8+p}, v{X+4*f+p//2}, v{5+(p&1)}, v{t}')
    ctr(0); k.e(f'ds_write_b32 v7, v{t+2}')
    for f in range(12):
        if f<11: ctr(f+1)
        else: k.e('s_nop 2')
        c=T2+8+(f&1)*8
        k.e(f'v_mfma_f32_16x16x32_bf16 {v(BI+4*0,4)}, {a((f*3+0)*4,4)}, {a(144+4*f,4)}, {v(BI+4*0,4) if f else 0}')
        for p in range(8): k.e(f'v_mul_f32 v{c+p}, v{c+p}, v{SC+8*f+p}')
        k.e(f'v_mfma_f32_16x16x32_bf16 {v(BI+4*1,4)}, {a((f*3+1)*4,4)}, {a(144+4*f,4)}, {v(BI+4*1,4) if f else 0}')
        for p in range(4): k.e(f'v_cvt_pk_bf16_f32 v{X+4*f+p}, v{c+2*p}, v{c+2*p+1}')
        k.e(f'v_mfma_f32_16x16x32_bf16 {v(BI+4*2,4)}, {a((f*3+2)*4,4)}, {a(144+4*f,4)}, {v(BI+4*2,4) if f else 0}')
        k.e(f'ds_write_b128 v8, {v(X+4*f,4)} offset:{f*1024}')
    S(k,'s_waitcnt lgkmcnt(0); s_barrier'); k.lg=[]
    for rt in range(4): k.ds(f'ds_read_b32 v{RS+rt}, v9 offset:{64*rt}','rs')
    k.stamp(12)
def k_mega():
    k=K('mega_kernel',256,256,152064,256,256)
    S(k,f's_load_dwordx2 s[84:85], s[0:1], {KA["wo"]}; s_load_dwordx4 s[88:91], s[0:1], {KA["w1"]}; s_load_dwordx2 s[36:37], s[0:1], {KA["c"]}; s_load_dwordx2 s[92:93], s[0:1], {KA["wmod"]}')
    S(k,f's_cmp_ge_u32 s2, 256; s_cbranch_scc1 {k.ln("end")}; v_cmp_gt_u32 vcc, 16, v0; s_getpc_b64 s[40:41]')
    k.lab('pc')
    S(k,f's_and_saveexec_b64 s[44:45], vcc; s_cbranch_execz {k.ln("nocode")}; s_lshr_b32 s42, s2, 3; s_lshl_b32 s42, s42, 7; v_lshlrev_b32 v10, 12, v0; v_add_u32 v10, s42, v10; v_min_u32 v10, {k.ln("end")}-{k.ln("pc")}, v10; v_mov_b32 v11, s41; v_add_co_u32 v10, vcc, s40, v10; s_nop 1; v_addc_co_u32 v11, vcc, 0, v11, vcc; global_load_dword v243, v[10:11], off')
    k.lab('nocode'); k.e('s_mov_b64 exec, s[44:45]')
    prologue(k,256,[('x',4,XS),('ws',6,WS),('out',60,OS),('dbg',58,96),('wqkv',80,80)])
    ld=Loads(k,59)
    S(k,'s_getreg_b32 s33, hwreg(HW_REG_XCC_ID, 0, 3)')
    S(k,'s_and_b32 s25, s2, 7; s_lshr_b32 s26, s2, 3; s_and_b32 s27, s26, 3; s_lshl_b32 s20, s25, 2; s_add_u32 s20, s20, s27; s_lshr_b32 s21, s26, 2')
    if MAP2: S(k,'s_lshr_b32 s27, s25, 1; s_lshl_b32 s20, s27, 3; s_and_b32 s27, s26, 7; s_add_u32 s20, s20, s27; s_lshr_b32 s27, s26, 3; s_and_b32 s28, s25, 1; s_mul_i32 s28, s28, 3; s_add_u32 s28, s28, s27; s_cmp_ge_u32 s21, 6; s_cselect_b32 s21, s21, s28')
    S(k,f's_cmp_ge_u32 s21, 6; s_cbranch_scc1 {k.ln("idle")}')
    if STCH:
        S(k,f's_cmp_lg_u32 s3, 3; s_cbranch_scc1 {k.ln("nst")}')
        n=0
        for off in range(STCH,0xEC0000,STCH):
            S(k,f's_mov_b32 s56, {off}; s_load_dword s{64+n%12}, s[6:7], s56'); n+=1
        for off in range(0,1572864,STCH): S(k,f's_mov_b32 s56, {off}; s_load_dword s76, s[60:61], s56')
        k.lab('nst')
    qkv_front(k)
    S(k,f's_and_b32 s27, s21, 1; s_lshl_b32 s28, s47, 1; s_add_u32 s27, s27, s28; s_and_b32 s28, s20, 15; s_lshl_b32 s29, s27, 4; s_add_u32 s29, s29, s28; s_mul_i32 s29, s29, {24*1024}')
    S(k,f's_lshr_b32 s30, s21, 1; s_mul_i32 s31, s30, 0x180000; s_add_u32 s29, s29, s31; s_add_u32 s29, s29, {WS_Q}; s_cmp_eq_u32 s30, 2; s_cbranch_scc1 {k.ln("v")}')
    sv=(list(k.vm),list(k.lg))
    gemm(k,True,epi_list(False)); k.stamp(3); stage_out(k,29,6144,AF); k.e(f's_branch {k.ln("qdone")}')
    k.lab('v'); k.vm,k.lg=sv
    gemm(k,False); k.stamp(3); S(k,'s_nop 0')
    S(k,'s_mul_i32 s56, s3, 3072; s_add_u32 s56, s56, s29; s_add_u32 s57, s56, 12288; s_nop 4')
    for p in range(2):
        for ct in range(3):
            x=ACC+(2*p*3+ct)*4; y=ACC+((2*p+1)*3+ct)*4
            S(k,f'v_cvt_pk_bf16_f32 v{x}, v{x}, v{x+1}; v_cvt_pk_bf16_f32 v{x+1}, v{x+2}, v{x+3}; v_cvt_pk_bf16_f32 v{x+2}, v{y}, v{y+1}; v_cvt_pk_bf16_f32 v{x+3}, v{y+2}, v{y+3}')
            k.e(f'buffer_store_dwordx4 {v(x,4)}, v4, {W}, s{56+p} offen offset:{ct*1024} sc1')
    k.lab('qdone'); publish(k,0,20,21,'q'); k.e(f's_branch {k.ln("attn")}')
    k.lab('idle')
    S(k,'s_sub_u32 s30, s2, 192'); helper(k); k.stamp(2); k.stamp(3)
    k.e('s_waitcnt vmcnt(0)'); k.vm=[]
    k.lab('attn'); roles(k)
    S(k,'s_and_b32 s27, s26, 3; s_lshl_b32 s20, s25, 2; s_add_u32 s20, s20, s27; s_lshr_b32 s21, s26, 2')
    S(k,'s_lshr_b32 s22, s20, 4; s_lshl_b32 s22, s22, 1; s_lshr_b32 s27, s21, 2; s_add_u32 s22, s22, s27; s_and_b32 s23, s21, 3; s_and_b32 s24, s20, 15')
    S(k,'s_and_b32 s27, s21, 1; s_lshl_b32 s36, s20, 1; s_add_u32 s36, s36, s27; s_lshr_b32 s37, s21, 1')
    S(k,f's_lshl_b32 s28, s21, 2; s_add_u32 s28, s28, s3; s_mul_i32 s28, s28, {36*1024}; s_add_u32 s38, s28, {WS_W1}')
    S(k,f's_mul_i32 s39, s21, {3*48*1024}; s_mul_i32 s29, s3, 12288; s_add_u32 s39, s39, s29; s_add_u32 s39, s39, {WS_W2}')
    S(k,f's_mul_i32 s35, s37, {6*12288}; s_mul_i32 s29, s3, 3072; s_add_u32 s35, s35, s29; s_add_u32 s35, s35, {WS_WO}')
    k.stamp(4)
    attn_phase(k,ld)
    wo_phase(k,ld)
    S(k,f's_mul_i32 s46, s20, {64*768}; s_add_u32 s46, s46, {WS_X1}; s_lshr_b32 s47, s20, 4; s_mul_i32 s48, s47, 9216; s_add_u32 s48, s48, {1152*4}')
    S(k,f's_mul_i32 s29, s20, {4*48*1024}; s_mul_i32 s30, s21, 6144; s_add_u32 s30, s29, s30; s_add_u32 s30, s30, {WS_G}')
    ln2(k)
    c=-2*0.7978845608028654*1.4426950408889634
    S(k,f'v_mov_b32 v{T+12}, {f2(c)}; s_mov_b32 s61, {f2(c*0.044715)}')
    for i in sorted(range(36),key=lambda i:(i%3,i)): ld.add(w2_reg(i),39,((i%3)*48+i//3)*1024,'w2')
    gemm(k,True,epi_list(True),ld); k.stamp(13)
    assert not ld.q
    stage_out(k,30,48*1024,AF,'g')
    publish(k,3,20,21,'f')
    S(k,f's_lshl_b32 s46, s20, 2; s_add_u32 s46, s46, s3; s_mul_i32 s46, s46, {16*768}; s_mul_i32 s25, s21, 1536; s_add_u32 s25, s25, s46; s_add_u32 s25, s25, {WS_X1}; s_mul_i32 s24, s21, 96; s_add_u32 s46, s46, s24')
    if VAR=='B': S(k,'s_mul_i32 s25, s21, 1536; s_add_u32 s25, s25, s34')
    S(k,f's_mul_i32 s26, s47, 9216; s_mul_i32 s27, s21, 192; s_add_u32 s26, s26, s27; s_add_u32 s26, s26, {1920*4}')
    S(k,f's_mul_i32 s28, s3, 12288; s_add_u32 s29, s29, s28; s_add_u32 s29, s29, {WS_G}')
    ld.reset(); poll8(k,3,20,'g'); k.stamp(14)
    for kb in range(12):
        for rt in range(4): ld.add(v(64+((kb%10)*4+rt)*4,4),29,(rt*48+kb)*1024,f'G{kb}',' sc1')
    ld.issue(24)
    for kb in range(12):
        k.wvm(f'G{kb}')
        if kb==0: k.xs('f0')
        for rt in range(4):
            for ct in range(3):
                D=v(16+(rt*3+ct)*4,4)
                k.e(f'v_mfma_f32_16x16x32_bf16 {D}, {w2_reg(kb*3+ct)}, {v(64+((kb%10)*4+rt)*4,4)}, {D if kb else 0}')
            ld.issue(1)
        if kb==6: epi_loads(k,WS,25,26,lambda o,n: a(32+o,n),' sc1')
    k.xs('f1'); k.wvm('epi')
    if WBL2: S(k,f's_or_b32 s56, s21, s3; s_cmp_lg_u32 s56, 0; s_cbranch_scc1 {k.ln("nowb")}; buffer_wbl2 sc1'); k.lab('nowb')
    for i in range(20):
        if i not in (6,7): k.e(f'v_accvgpr_read_b32 v{128+i}, a{32+i}')
    reduce_epi(k,16,OS,46,128,64,'')
    k.xs('f2'); k.end(15)
    k.lab('end'); k.e('s_endpgm')
    return k
```

```python
from mega import *
import k_prep as kp
MODL=147968
CTS=12288+16
VAR=os.environ.get('VAR','B'); TCH=int(os.environ.get('TCH','0')); OPL=int(os.environ.get('OPL','0'))
def touch(k):
    if not TCH: return
    S(k,f'v_lshlrev_b32 v10, 18, v1; buffer_load_dword v248, v10, {W}, 0 offen sc1; v_mul_u32_u24 v10, 24576, v1; buffer_load_dword v249, v10, s[8:11], 0 offen')
    if VAR=='B':
        k.e('buffer_load_dword v251, v10, s[16:19], 0 offen sc1'); return
    S(k,f's_lshr_b32 s56, s2, 3; s_lshl_b32 s56, s56, 2; s_add_u32 s56, s56, s3; s_lshl_b32 s57, s33, 7; s_add_u32 s57, s57, s56; s_mul_i32 s58, s57, 6144; s_add_u32 s58, s58, {WS_OP}; v_lshlrev_b32 v6, 7, v1; v_add_u32 v10, s58, v6')
    S(k,f's_mul_i32 s57, s57, 1536; s_add_u32 s58, s57, {WS_X1-48*128}; v_add_u32 v7, s58, v6; v_cmp_gt_u32 vcc, 48, v1; s_lshr_b32 s58, s56, 4; s_lshl_b32 s58, s58, 14; v_cndmask_b32 v10, v7, v10, vcc')
    S(k,f's_and_b32 s56, s56, 15; s_lshl_b32 s56, s56, 7; s_add_u32 s58, s58, s56; s_lshl_b32 s56, s33, 11; s_add_u32 s58, s58, s56; s_add_u32 s58, s58, {WS_ML}; v_mov_b32 v7, s58; v_cmp_gt_u32 vcc, 60, v1; v_min_u32 v6, {11*128}, v6; s_nop 0; v_cndmask_b32 v10, v7, v10, vcc')
    S(k,f'buffer_load_dword v250, v10, {W}, 0 offen sc1; buffer_load_dword v251, v6, s[16:19], s57 offen sc1')
def prep_params(k,t,B):
    S(k,f's_cmp_lt_u32 s{t}, 180; s_cselect_b32 s{B}, s86, s88; s_cselect_b32 s{B+1}, s87, s89; s_cselect_b32 s{B+5}, 3072, 768; s_cselect_b32 s{B+6}, 0, 1; s_cselect_b32 s{B+7}, {WS_W1}, {WS_W2}'.replace(f's_cselect_b32 s{B+7}, {WS_W1}, {WS_W2}',f's_mov_b32 s56, {WS_W2}; s_cselect_b32 s{B+7}, {WS_W1}, s56').replace(f's_cselect_b32 s{B+5}, 3072, 768',f's_movk_i32 s56, 768; s_cselect_b32 s{B+5}, 3072, s56'))
    S(k,f's_cselect_b32 s57, 12, 48; s_cselect_b32 s58, 19, 21; s_movk_i32 s56, 180; s_cselect_b32 s56, 36, s56; s_mov_b32 s{B+2}, 1179648')
    S(k,f's_cmp_lt_u32 s{t}, 36; s_cselect_b32 s{B}, s84, s{B}; s_cselect_b32 s{B+1}, s85, s{B+1}; s_cselect_b32 s{B+5}, 768, s{B+5}; s_cselect_b32 s{B+6}, 1, s{B+6}; s_cselect_b32 s{B+7}, {WS_WO}, s{B+7}; s_cselect_b32 s56, 0, s56; s_cselect_b32 s{B+2}, 294912, s{B+2}')
    S(k,f's_and_b32 s{B+1}, s{B+1}, 0xffff; s_mov_b32 s{B+3}, 0x20000; s_sub_u32 s56, s{t}, s56; s_mul_i32 s55, s56, 43691; s_lshr_b32 s55, s55, s58; s_mul_i32 s54, s55, s57; s_sub_u32 s56, s56, s54')
    S(k,f's_lshl_b32 s54, s54, 3; s_add_u32 s54, s54, s56; s_lshl_b32 s54, s54, 10; s_add_u32 s{B+7}, s{B+7}, s54; s_lshl_b32 s{B+8}, s57, 10')
    S(k,f's_mul_i32 s{B+4}, s56, s{B+5}; s_lshl_b32 s{B+4}, s{B+4}, 5; s_lshl_b32 s55, s55, 8; s_add_u32 s{B+4}, s{B+4}, s55')
def prep_load(k,B,R,va):
    S(k,f's_sub_u32 s56, 3, s{B+6}; s_lshl_b32 s56, s{B+5}, s56; v_mul_lo_u32 v{va}, v3, s56; v_lshl_add_u32 v{va}, v2, 4, v{va}; s_mul_i32 s57, s{B+6}, 12; s_mul_i32 s57, s57, s{B+5}; s_mov_b32 s58, s{B+4}')
    for j in range(8):
        k.e(f'buffer_load_dwordx4 {v(R+4*j,4)}, v{va}, s[{B}:{B+3}], s58 offen'); k.e(f's_add_u32 s58, s58, s{B+5}')
        if j==3: k.e('s_add_u32 s58, s58, s57')
def prep_store(k,B,R,O):
    S(k,'v_lshrrev_b32 v7, 1, v2; v_mul_u32_u24 v7, 1040, v7; v_lshl_add_u32 v7, v3, 8, v7; v_and_b32 v8, 1, v2; v_lshl_add_u32 v7, v8, 7, v7; s_mul_i32 s56, s3, 8320; s_add_u32 s56, s56, 8192; v_add_u32 v7, s56, v7; v_add_u32 v8, s56, v4; s_mov_b32 s47, 0x05040100; s_mov_b32 s48, 0x07060302')
    for f in range(8):
        for p in range(4): k.e(f'v_perm_b32 v{O+4*f+p}, v{R+4*(2*p+1)+(f>>1)}, v{R+4*(2*p)+(f>>1)}, s{48 if f&1 else 47}')
        k.e(f'ds_write_b128 v7, {v(O+4*f,4)} offset:{16*f}')
    k.e('s_waitcnt lgkmcnt(0)')
    for f in range(8): k.e(f'ds_read_b128 {v(R+4*f,4)}, v8 offset:{1040*f}')
    k.e(f's_mov_b32 s56, s{B+7}')
    for f in range(8): S(k,f's_waitcnt lgkmcnt({7-f}); buffer_store_dwordx4 {v(R+4*f,4)}, v4, {W}, s56 offen sc1; s_add_u32 s56, s56, s{B+8}')
def helper(k):
    S(k,'s_mov_b32 s86, s88; s_mov_b32 s87, s89; s_mov_b32 s88, s90; s_mov_b32 s89, s91')
    k.srd(36,36,'c'); k.srd(92,92,'wmod')
    S(k,f's_cmp_lg_u32 s30, 0; s_cbranch_scc1 {k.ln("nz")}; v_lshlrev_b32 v6, 4, v0; v_mov_b32 v8, 0; v_mov_b32 v9, 0; v_mov_b32 v10, 0; v_mov_b32 v11, 0')
    for p in range(4): S(k,f's_mov_b32 s40, {WS_FL+p*4096}; buffer_store_dwordx4 v[8:11], v6, {W}, s40 offen sc1')
    k.lab('nz')
    S(k,'s_lshl_b32 s31, s30, 2; s_add_u32 s31, s31, s3; s_add_u32 s32, s31, 128; s_min_u32 s32, s32, 323; s_mov_b32 s34, s30')
    S(k,'v_lshrrev_b32 v15, 5, v1; v_mul_u32_u24 v15, 3072, v15; v_and_b32 v12, 30, v1; v_lshl_add_u32 v15, v12, 2, v15; s_min_u32 s35, s30, 23; s_lshl_b32 s35, s35, 7; s_add_u32 s35, s35, 0x5000')
    k.e(f'buffer_load_dwordx2 v[224:225], v15, {W}, s35 offen sc1')
    k.lab('modl')
    k2=K(k.name,0,0,0,0,0); kp.mod_body(k2,0,36,92,12,' sc1')
    L=[x.replace('s_sub_u32 s40, s2, 0','s_mov_b32 s40, s34') for x in k2.L]
    i=[n for n,x in enumerate(L) if 's_waitcnt vmcnt(5)' in x][0]
    i0=[n for n,x in enumerate(L) if 'v_mov_b32 v64, 0' in x][0]
    k.L+=L[:i0]; prep_params(k,31,68); prep_params(k,32,20); k.L+=L[i0:i]
    S(k,f's_cmp_ge_u32 s34, 56; s_cbranch_scc1 {k.ln("nopl")}; s_cmp_lt_u32 s34, 24; s_cselect_b32 s56, s3, 1; s_cmp_eq_u32 s56, 0; s_cbranch_scc1 {k.ln("nopl")}'); prep_load(k,68,96,13); prep_load(k,20,128,14); k.e('s_waitcnt vmcnt(16)'); k.e(f's_branch {k.ln("npl2")}')
    k.lab('nopl'); S(k,f's_sub_u32 s56, s34, 56; s_cmp_ge_u32 s56, 8; s_cbranch_scc1 {k.ln("npl1")}')
    for q in range(6): S(k,f's_add_u32 s42, s41, {q*64*4608}; buffer_load_dwordx4 {v(96+4*q,4)}, v8, s[92:95], s42 offen offset:512')
    S(k,f's_waitcnt vmcnt(6); s_branch {k.ln("npl2")}')
    k.lab('npl1'); k.e('s_waitcnt vmcnt(0)'); k.lab('npl2')
    j=[n for n,x in enumerate(L) if 'moddone:' in x][0]
    k.L+=[x for x in L[i:j] if 's_waitcnt vmcnt' not in x]
    S(k,f's_cmp_ge_u32 s34, 24; s_cbranch_scc1 {k.ln("moddone")}; s_nop 1; v_mov_b32_dpp v17, v16 quad_perm:[1,1,3,3] row_mask:0xf bank_mask:0xf; v_lshrrev_b32 v224, 16, v16; v_or_b32 v224, v224, v17; v_add_u32 v225, 1, v225; s_mov_b32 exec_lo, 0x55555555; s_mov_b32 exec_hi, 0x55555555; buffer_store_dwordx2 v[224:225], v15, {W}, s35 offen sc1; s_waitcnt vmcnt(0); v_mov_b32 v10, 0; v_mov_b32 v11, 1; s_mov_b64 exec, 1; buffer_atomic_add v11, v10, {D}, 0 offen offset:64 sc0 sc1; s_waitcnt vmcnt(0); v_readfirstlane_b32 s56, v11; v_mov_b32 v11, 1; s_cmp_lg_u32 s56, 23; s_cbranch_scc1 {k.ln("moddone")}; buffer_store_dword v11, v10, {D}, 0 offen offset:128 sc1')
    k.lab('moddone'); k.e('s_mov_b64 exec, -1'); k.stamp(1)
    S(k,f's_cmp_ge_u32 s34, 64; s_cbranch_scc1 {k.ln("m2")}; s_cmp_lt_u32 s34, 24; s_cselect_b32 s56, s3, 1; s_cmp_lg_u32 s56, 0; s_cbranch_scc1 {k.ln("late")}'); prep_load(k,68,96,13); k.lab('late')
    ticket(k,'i'); touch(k)
    S(k,f's_cmp_ge_u32 s34, 56; s_cbranch_scc1 {k.ln("np2")}; s_waitcnt vmcnt(0)')
    prep_store(k,68,96,160)
    S(k,f's_sub_u32 s56, s31, 96; s_cmp_ge_u32 s56, 100; s_cbranch_scc1 {k.ln("np2")}'); prep_store(k,20,128,192); k.lab('np2')
    S(k,f's_waitcnt vmcnt(0); s_barrier; s_cmp_lg_u32 s3, 0; s_cbranch_scc1 {k.ln("hd")}; v_mov_b32 v10, 0; v_mov_b32 v11, 1; s_mov_b64 exec, 1; buffer_atomic_add v11, v10, {D}, 0 offen offset:68 sc0 sc1; s_waitcnt vmcnt(0); v_readfirstlane_b32 s56, v11; v_mov_b32 v11, 1; s_cmp_lg_u32 s56, 63; s_cbranch_scc1 {k.ln("hd")}; buffer_store_dword v11, v10, {D}, 0 offen offset:132 sc1')
    k.lab('hd'); k.e('s_mov_b64 exec, -1')
    S(k,f's_add_u32 s34, s34, 8; s_cmp_ge_u32 s34, 64; s_cbranch_scc1 {k.ln("modl")}; s_branch {k.ln("m3")}')
    k.lab('m2')
    S(k,f's_cmp_lg_u32 s3, 0; s_cbranch_scc1 {k.ln("m3")}; s_waitcnt vmcnt(0); v_mov_b32 v10, 0; v_mov_b32 v11, 1; s_mov_b64 exec, 1; buffer_atomic_add v11, v10, {D}, 0 offen offset:136 sc1')
    k.lab('m3'); k.e('s_mov_b64 exec, -1')
    dpoll(k,'v_mov_b32 v10, 128',1,'w',False)
def dpoll(k,voff,val,tag,bar=True):
    S(k,f's_cmp_lg_u32 s3, 0; s_cbranch_scc1 {k.ln("dd"+tag)}; {voff}; s_mov_b32 s57, 0x100000')
    k.lab('dl'+tag)
    S(k,f'buffer_load_dword v11, v10, {D}, 0 offen sc1; s_waitcnt vmcnt(0); v_cmp_ne_u32 vcc, {val}, v11; s_sub_u32 s57, s57, 1; s_cbranch_scc1 {k.ln("dd"+tag)}; s_cbranch_vccz {k.ln("dd"+tag)}; s_sleep 2; s_branch {k.ln("dl"+tag)}')
    k.lab('dd'+tag)
    if bar: k.e('s_barrier')
def qkv_front(k):
    R=64; PO=208; T=224; XH=64
    S(k,f'v_mul_u32_u24 v6, 768, v2; v_lshl_add_u32 v6, v3, 4, v6; s_mul_i32 s50, s3, {16*768}; s_mul_i32 s46, s20, {64*768}; s_add_u32 s50, s50, s46')
    for f in range(12): k.vmem(f'buffer_load_dwordx4 {v(X+4*f,4)}, v6, s[8:11], s50 offen offset:{64*f}','x%d'%f)
    S(k,'v_lshrrev_b32 v7, 3, v1; v_mul_u32_u24 v8, 2304, v7; v_and_b32 v9, 7, v1; v_and_b32 v7, 2, v7; v_xor_b32 v9, v9, v7; v_xor_b32 v7, 4, v9; v_lshl_add_u32 v12, v9, 4, v8; v_lshl_add_u32 v13, v7, 4, v8')
    S(k,f's_mul_i32 s51, s3, {96*2304}; s_mul_i32 s52, s21, 384; s_add_u32 s51, s51, s52; s_mul_i32 s52, s3, 12288; s_mov_b32 s55, 0x3f803f80')
    S(k,'s_mul_i32 s60, s33, 3; s_lshr_b32 s60, s60, 2; s_lshl_b32 s60, s60, 1')
    def ldu(n):
        S(k,f's_lshl_b32 s44, s60, 10; s_add_u32 s44, s44, s52; s_mul_i32 s45, s60, {8*2304}; s_add_u32 s45, s45, s51; s_add_u32 s60, s60, 1; s_cmp_eq_u32 s60, 12; s_cselect_b32 s60, 0, s60')
        for cg in range(3):
            S(k,f's_add_u32 m0, s44, {cg*49152}; s_add_u32 s59, s45, {cg*128}'); k.vmem(f'buffer_load_dwordx4 v{12+(n&1)}, s[80:83], s59 offen lds','u')
    S(k,f's_lshr_b32 s53, s20, 4; s_mul_i32 s53, s53, 3072; s_min_u32 s54, s3, 2; s_lshl_b32 s54, s54, 10; s_add_u32 s53, s53, s54; s_add_u32 s53, s53, 0x5000')
    k.vmem(f'buffer_load_dwordx4 v[232:235], v4, {W}, s53 offen sc1','snap')
    for n in range(6): ldu(n)
    touch(k)
    k.vm+=['t']*((3 if VAR=='B' else 4) if TCH else 0)
    for i in range(8): k.e(f'v_mov_b32 v{T+i}, 0')
    for f in range(12):
        if f%4==0: k.wvm('x%d'%(f+3))
        for p in range(4): k.e(f'v_dot2c_f32_bf16 v{T+p}, s55, v{X+4*f+p}'); k.e(f'v_dot2c_f32_bf16 v{T+4+p}, v{X+4*f+p}, v{X+4*f+p}')
    S(k,f's_nop 2; v_add_f32 v{T}, v{T}, v{T+1}; v_add_f32 v{T+2}, v{T+2}, v{T+3}; v_add_f32 v{T+4}, v{T+4}, v{T+5}; v_add_f32 v{T+6}, v{T+6}, v{T+7}; v_add_f32 v{T}, v{T}, v{T+2}; v_add_f32 v{T+1}, v{T+4}, v{T+6}')
    xred(k,[T,T+1],[T+2,T+3],'v_add_f32')
    S(k,f'v_mul_f32 v{T}, 0x3b2aaaab, v{T}; v_mul_f32 v{T+1}, 0x3b2aaaab, v{T+1}; v_fma_f32 v{T+1}, -v{T}, v{T}, v{T+1}; v_max_f32 v{T+1}, 0, v{T+1}; v_add_f32 v{T+1}, 0x3727c5ac, v{T+1}')
    S(k,f'v_rsq_f32 v{T+2}, v{T+1}; s_nop 0; v_mul_f32 v{T+4}, v{T}, v{T+2}; v_sub_f32 v{T+4}, 0, v{T+4}')
    def xhat(f):
        for p in range(4): S(k,f'v_lshlrev_b32 v{XH+8*f+2*p}, 16, v{X+4*f+p}; v_and_b32 v{XH+8*f+2*p+1}, 0xffff0000, v{X+4*f+p}')
        for p in range(8): k.e(f'v_fma_f32 v{XH+8*f+p}, v{XH+8*f+p}, v{T+2}, v{T+4}')
    k.stamp(1)
    for n in range(6): ldu(6+n); xhat(2*n); xhat(2*n+1)
    k.e(f'buffer_load_dwordx4 v[236:239], v4, {W}, s53 offen sc1')
    S(k,'v_bfe_u32 v7, v1, 2, 2; v_lshlrev_b32 v8, 7, v7; v_lshl_add_u32 v8, v3, 10, v8; v_and_b32 v9, 3, v1; v_lshl_add_u32 v8, v9, 3, v8; v_lshrrev_b32 v7, 1, v7; v_and_b32 v9, 1, v3; v_lshl_add_u32 v7, v9, 1, v7; s_mul_i32 s56, s3, 3')
    for ct in range(3): S(k,f's_add_u32 s57, s56, {ct}; s_and_b32 s58, s57, 3; s_lshr_b32 s57, s57, 2; s_mul_i32 s57, s57, 49152; v_xor_b32 v9, s58, v7; v_lshl_add_u32 v9, v9, 5, v8; v_add_u32 v{244+ct}, s57, v9')
    if True:
        if True:
            k.xs('q0'); S(k,'v_mov_b32 v10, 128; s_mov_b32 s57, 0x100000; s_waitcnt vmcnt(0)'); k.xs('q1'); k.e(f's_branch {k.ln("gc")}'); k.lab('gl')
            S(k,f's_sub_u32 s57, s57, 1; s_cbranch_scc1 {k.ln("gd")}; s_mov_b32 s56, 0; s_and_b32 s58, s57, 7; s_cbranch_scc1 {k.ln("gn")}; buffer_load_dword v11, v10, {D}, 0 offen sc1; s_waitcnt vmcnt(0); v_readfirstlane_b32 s56, v11')
            k.lab('gn')
            S(k,f'buffer_load_dwordx4 v[236:239], v4, {W}, s53 offen sc1; s_waitcnt vmcnt(0); s_cmp_eq_u32 s56, 1; s_cbranch_scc1 {k.ln("gd")}')
            k.lab('gc')
            S(k,f'v_cmp_eq_u32 vcc, v233, v237; v_cmp_eq_u32 s[58:59], v235, v239; s_or_b64 vcc, vcc, s[58:59]; s_cbranch_vccnz {k.ln("gl")}')
            k.lab('gd')
            S(k,f'v_lshlrev_b32 v240, 16, v236; v_and_b32 v241, 0xffff0000, v236; v_lshlrev_b32 v242, 16, v238; v_and_b32 v243, 0xffff0000, v238; s_add_u32 s54, s54, {MODL}; v_add_u32 v10, s54, v4; ds_write_b128 v10, v[240:243]')
    ticket(k,'q'); k.stamp(2); k.xs('q2')
    S(k,'s_waitcnt lgkmcnt(0); s_barrier')
    k.vm=[]; k.lg=[]
    S(k,f's_lshr_b32 s47, s20, 4; v_lshlrev_b32 v7, 5, v3; v_add_u32 v7, {MODL}, v7; s_mul_i32 s50, s3, 12288; v_add_u32 v8, s50, v4')
    def rdmod(f):
        for q in range(4): k.ds(f'ds_read_b128 {v(160+(f%3)*16+4*q,4)}, v7 offset:{f*128+(q&1)*16+(q>>1)*1536}',f'm{f}')
    rdmod(0); rdmod(1)
    for f in range(12):
        k.wlg(f'm{f}')
        if f<10: rdmod(f+2)
        for ct in range(3):
            for h in range(2): k.ds(f'ds_read_b64_tr_b16 {a((f*3+ct)*4+2*h,2)}, v{244+ct} offset:{f*4096+h*512}','b')
        o=160+(f%3)*16; t=XH+8*f
        for p in range(8): k.e(f'v_fma_f32 v{t+p}, v{t+p}, v{o+8+p}, v{o+p}')
        for p in range(4): k.e(f'v_cvt_pk_bf16_f32 v{X+4*f+p}, v{t+2*p}, v{t+2*p+1}')
    k.xs('q3'); S(k,'s_waitcnt lgkmcnt(0); s_barrier')
    for f in range(12): k.e(f'ds_write_b128 v8, {v(X+4*f,4)} offset:{f*1024}')
    stage_setup(k)
    S(k,'s_waitcnt lgkmcnt(0); s_barrier'); k.lg=[]
```

```python
from mega import *
import k_prep as kp
MODL=147968
CTS=12288+16
VAR=os.environ.get('VAR','B'); TCH=int(os.environ.get('TCH','0')); OPL=int(os.environ.get('OPL','0'))
def touch(k):
    if not TCH: return
    S(k,f'v_lshlrev_b32 v10, 18, v1; buffer_load_dword v248, v10, {W}, 0 offen sc1; v_mul_u32_u24 v10, 24576, v1; buffer_load_dword v249, v10, s[8:11], 0 offen')
    if VAR=='B':
        k.e('buffer_load_dword v251, v10, s[16:19], 0 offen sc1'); return
    S(k,f's_lshr_b32 s56, s2, 3; s_lshl_b32 s56, s56, 2; s_add_u32 s56, s56, s3; s_lshl_b32 s57, s33, 7; s_add_u32 s57, s57, s56; s_mul_i32 s58, s57, 6144; s_add_u32 s58, s58, {WS_OP}; v_lshlrev_b32 v6, 7, v1; v_add_u32 v10, s58, v6')
    S(k,f's_mul_i32 s57, s57, 1536; s_add_u32 s58, s57, {WS_X1-48*128}; v_add_u32 v7, s58, v6; v_cmp_gt_u32 vcc, 48, v1; s_lshr_b32 s58, s56, 4; s_lshl_b32 s58, s58, 14; v_cndmask_b32 v10, v7, v10, vcc')
    S(k,f's_and_b32 s56, s56, 15; s_lshl_b32 s56, s56, 7; s_add_u32 s58, s58, s56; s_lshl_b32 s56, s33, 11; s_add_u32 s58, s58, s56; s_add_u32 s58, s58, {WS_ML}; v_mov_b32 v7, s58; v_cmp_gt_u32 vcc, 60, v1; v_min_u32 v6, {11*128}, v6; s_nop 0; v_cndmask_b32 v10, v7, v10, vcc')
    S(k,f'buffer_load_dword v250, v10, {W}, 0 offen sc1; buffer_load_dword v251, v6, s[16:19], s57 offen sc1')
NU=int(os.environ.get('NU','12'))
def prep_params(k,t,B):
    S(k,f's_cmp_lt_u32 s{t}, 180; s_cselect_b32 s{B}, s86, s88; s_cselect_b32 s{B+1}, s87, s89; s_cselect_b32 s{B+5}, 3072, 768; s_cselect_b32 s{B+6}, 0, 1; s_cselect_b32 s{B+7}, {WS_W1}, {WS_W2}'.replace(f's_cselect_b32 s{B+7}, {WS_W1}, {WS_W2}',f's_mov_b32 s56, {WS_W2}; s_cselect_b32 s{B+7}, {WS_W1}, s56').replace(f's_cselect_b32 s{B+5}, 3072, 768',f's_movk_i32 s56, 768; s_cselect_b32 s{B+5}, 3072, s56'))
    S(k,f's_cselect_b32 s57, 12, 48; s_cselect_b32 s58, 19, 21; s_movk_i32 s56, 180; s_cselect_b32 s56, 36, s56; s_mov_b32 s{B+2}, 1179648')
    S(k,f's_cmp_lt_u32 s{t}, 36; s_cselect_b32 s{B}, s84, s{B}; s_cselect_b32 s{B+1}, s85, s{B+1}; s_cselect_b32 s{B+5}, 768, s{B+5}; s_cselect_b32 s{B+6}, 1, s{B+6}; s_cselect_b32 s{B+7}, {WS_WO}, s{B+7}; s_cselect_b32 s56, 0, s56; s_cselect_b32 s{B+2}, 294912, s{B+2}')
    S(k,f's_and_b32 s{B+1}, s{B+1}, 0xffff; s_mov_b32 s{B+3}, 0x20000; s_sub_u32 s56, s{t}, s56; s_mul_i32 s55, s56, 43691; s_lshr_b32 s55, s55, s58; s_mul_i32 s54, s55, s57; s_sub_u32 s56, s56, s54')
    S(k,f's_lshl_b32 s54, s54, 3; s_add_u32 s54, s54, s56; s_lshl_b32 s54, s54, 10; s_add_u32 s{B+7}, s{B+7}, s54; s_lshl_b32 s{B+8}, s57, 10')
    S(k,f's_mul_i32 s{B+4}, s56, s{B+5}; s_lshl_b32 s{B+4}, s{B+4}, 5; s_lshl_b32 s55, s55, 8; s_add_u32 s{B+4}, s{B+4}, s55')
def prep_load(k,B,R,va):
    S(k,f's_sub_u32 s56, 3, s{B+6}; s_lshl_b32 s56, s{B+5}, s56; v_mul_lo_u32 v{va}, v3, s56; v_lshl_add_u32 v{va}, v2, 4, v{va}; s_mul_i32 s57, s{B+6}, 12; s_mul_i32 s57, s57, s{B+5}; s_mov_b32 s58, s{B+4}')
    for j in range(8):
        k.e(f'buffer_load_dwordx4 {v(R+4*j,4)}, v{va}, s[{B}:{B+3}], s58 offen'); k.e(f's_add_u32 s58, s58, s{B+5}')
        if j==3: k.e('s_add_u32 s58, s58, s57')
def prep_store(k,B,R,O):
    S(k,'v_lshrrev_b32 v7, 1, v2; v_mul_u32_u24 v7, 1040, v7; v_lshl_add_u32 v7, v3, 8, v7; v_and_b32 v8, 1, v2; v_lshl_add_u32 v7, v8, 7, v7; s_mul_i32 s56, s3, 8320; s_add_u32 s56, s56, 8192; v_add_u32 v7, s56, v7; v_add_u32 v8, s56, v4; s_mov_b32 s47, 0x05040100; s_mov_b32 s48, 0x07060302')
    for f in range(8):
        for p in range(4): k.e(f'v_perm_b32 v{O+4*f+p}, v{R+4*(2*p+1)+(f>>1)}, v{R+4*(2*p)+(f>>1)}, s{48 if f&1 else 47}')
        k.e(f'ds_write_b128 v7, {v(O+4*f,4)} offset:{16*f}')
    k.e('s_waitcnt lgkmcnt(0)')
    for f in range(8): k.e(f'ds_read_b128 {v(R+4*f,4)}, v8 offset:{1040*f}')
    k.e(f's_mov_b32 s56, s{B+7}')
    for f in range(8): S(k,f's_waitcnt lgkmcnt({7-f}); buffer_store_dwordx4 {v(R+4*f,4)}, v4, {W}, s56 offen sc1; s_add_u32 s56, s56, s{B+8}')
def helper(k):
    S(k,'s_mov_b32 s86, s88; s_mov_b32 s87, s89; s_mov_b32 s88, s90; s_mov_b32 s89, s91')
    k.srd(36,36,'c'); k.srd(92,92,'wmod')
    S(k,f's_cmp_lg_u32 s30, 0; s_cbranch_scc1 {k.ln("nz")}; v_lshlrev_b32 v6, 4, v0; v_mov_b32 v8, 0; v_mov_b32 v9, 0; v_mov_b32 v10, 0; v_mov_b32 v11, 0')
    for p in range(4): S(k,f's_mov_b32 s40, {WS_FL+p*4096}; buffer_store_dwordx4 v[8:11], v6, {W}, s40 offen sc1')
    k.lab('nz')
    S(k,'s_lshl_b32 s31, s30, 2; s_add_u32 s31, s31, s3; s_add_u32 s32, s31, 128; s_min_u32 s32, s32, 323; s_mov_b32 s34, s30')
    S(k,'v_lshrrev_b32 v15, 5, v1; v_mul_u32_u24 v15, 3072, v15; v_and_b32 v12, 30, v1; v_lshl_add_u32 v15, v12, 2, v15; s_min_u32 s35, s30, 23; s_lshl_b32 s35, s35, 7; s_add_u32 s35, s35, 0x5000')
    k.e(f'buffer_load_dwordx2 v[224:225], v15, {W}, s35 offen sc1')
    k.lab('modl')
    k2=K(k.name,0,0,0,0,0); kp.mod_body(k2,0,36,92,12,' sc1')
    L=[x.replace('s_sub_u32 s40, s2, 0','s_mov_b32 s40, s34') for x in k2.L]
    i=[n for n,x in enumerate(L) if 's_waitcnt vmcnt(5)' in x][0]
    i0=[n for n,x in enumerate(L) if 'v_mov_b32 v64, 0' in x][0]
    k.L+=L[:i0]; prep_params(k,31,68); prep_params(k,32,20)
    def paths(tag,fa,fb,fc):
        S(k,f's_cmp_ge_u32 s34, 56; s_cbranch_scc1 {k.ln("pb"+tag)}'); fa(); k.e(f's_branch {k.ln("pe"+tag)}')
        k.lab('pb'+tag); S(k,f's_cmp_ge_u32 s34, 64; s_cbranch_scc1 {k.ln("pc"+tag)}'); fb(); k.e(f's_branch {k.ln("pe"+tag)}')
        k.lab('pc'+tag); fc(); k.lab('pe'+tag)
    def fa(): prep_load(k,68,96,13); prep_load(k,20,128,14); k.e('s_waitcnt vmcnt(22)')
    def fb():
        for q in range(6): S(k,f's_add_u32 s42, s41, {q*64*4608}; buffer_load_dwordx4 {v(96+4*q,4)}, v8, s[92:95], s42 offen offset:512')
        k.e('s_waitcnt vmcnt(12)')
    paths('1',fa,fb,lambda: k.e('s_waitcnt vmcnt(6)'))
    k.L+=[x for x in L[i0:i] if 's_waitcnt vmcnt' not in x]
    paths('2',lambda: k.e('s_waitcnt vmcnt(16)'),lambda: k.e('s_waitcnt vmcnt(6)'),lambda: k.e('s_waitcnt vmcnt(0)'))
    j=[n for n,x in enumerate(L) if 'moddone:' in x][0]
    k.L+=[x for x in L[i:j] if 's_waitcnt vmcnt' not in x]
    S(k,f's_cmp_ge_u32 s34, 24; s_cbranch_scc1 {k.ln("moddone")}; s_nop 1; v_mov_b32_dpp v17, v16 quad_perm:[1,1,3,3] row_mask:0xf bank_mask:0xf; v_lshrrev_b32 v224, 16, v16; v_or_b32 v224, v224, v17; v_add_u32 v225, 1, v225; s_mov_b32 exec_lo, 0x55555555; s_mov_b32 exec_hi, 0x55555555; buffer_store_dwordx2 v[224:225], v15, {W}, s35 offen sc1; s_waitcnt vmcnt(0); v_mov_b32 v10, 0; v_mov_b32 v11, 1; s_mov_b64 exec, 1; buffer_atomic_add v11, v10, {D}, 0 offen offset:64 sc0 sc1; s_waitcnt vmcnt(0); v_readfirstlane_b32 s56, v11; v_mov_b32 v11, 1; s_cmp_lg_u32 s56, 23; s_cbranch_scc1 {k.ln("moddone")}; buffer_store_dword v11, v10, {D}, 0 offen offset:128 sc1')
    k.lab('moddone'); k.e('s_mov_b64 exec, -1'); k.stamp(1)
    S(k,f's_cmp_ge_u32 s34, 64; s_cbranch_scc1 {k.ln("m2")}')
    ticket(k,'i'); touch(k)
    S(k,f's_cmp_ge_u32 s34, 56; s_cbranch_scc1 {k.ln("np2")}; s_waitcnt vmcnt(0)')
    prep_store(k,68,96,160)
    S(k,f's_sub_u32 s56, s31, 96; s_cmp_ge_u32 s56, 100; s_cbranch_scc1 {k.ln("np2")}'); prep_store(k,20,128,192); k.lab('np2')
    S(k,f's_waitcnt vmcnt(0); s_barrier; s_cmp_lg_u32 s3, 0; s_cbranch_scc1 {k.ln("hd")}; v_mov_b32 v10, 0; v_mov_b32 v11, 1; s_mov_b64 exec, 1; buffer_atomic_add v11, v10, {D}, 0 offen offset:68 sc0 sc1; s_waitcnt vmcnt(0); v_readfirstlane_b32 s56, v11; v_mov_b32 v11, 1; s_cmp_lg_u32 s56, 63; s_cbranch_scc1 {k.ln("hd")}; buffer_store_dword v11, v10, {D}, 0 offen offset:132 sc1')
    k.lab('hd'); k.e('s_mov_b64 exec, -1')
    S(k,f's_add_u32 s34, s34, 8; s_cmp_ge_u32 s34, 64; s_cbranch_scc1 {k.ln("modl")}; s_branch {k.ln("m3")}')
    k.lab('m2')
    S(k,f's_cmp_lg_u32 s3, 0; s_cbranch_scc1 {k.ln("m3")}; s_waitcnt vmcnt(0); v_mov_b32 v10, 0; v_mov_b32 v11, 1; s_mov_b64 exec, 1; buffer_atomic_add v11, v10, {D}, 0 offen offset:136 sc1')
    k.lab('m3'); k.e('s_mov_b64 exec, -1')
    dpoll(k,'v_mov_b32 v10, 128',1,'w',False)
def dpoll(k,voff,val,tag,bar=True):
    S(k,f's_cmp_lg_u32 s3, 0; s_cbranch_scc1 {k.ln("dd"+tag)}; {voff}; s_mov_b32 s57, 0x100000')
    k.lab('dl'+tag)
    S(k,f'buffer_load_dword v11, v10, {D}, 0 offen sc1; s_waitcnt vmcnt(0); v_cmp_ne_u32 vcc, {val}, v11; s_sub_u32 s57, s57, 1; s_cbranch_scc1 {k.ln("dd"+tag)}; s_cbranch_vccz {k.ln("dd"+tag)}; s_sleep 2; s_branch {k.ln("dl"+tag)}')
    k.lab('dd'+tag)
    if bar: k.e('s_barrier')
def qkv_front(k):
    R=64; PO=208; T=224; XH=64
    S(k,f'v_mul_u32_u24 v6, 768, v2; v_lshl_add_u32 v6, v3, 4, v6; s_mul_i32 s50, s3, {16*768}; s_mul_i32 s46, s20, {64*768}; s_add_u32 s50, s50, s46')
    for f in range(12): k.vmem(f'buffer_load_dwordx4 {v(X+4*f,4)}, v6, s[8:11], s50 offen offset:{64*f}','x%d'%f)
    S(k,'v_lshrrev_b32 v7, 3, v1; v_mul_u32_u24 v8, 2304, v7; v_and_b32 v9, 7, v1; v_and_b32 v7, 2, v7; v_xor_b32 v9, v9, v7; v_xor_b32 v7, 4, v9; v_lshl_add_u32 v12, v9, 4, v8; v_lshl_add_u32 v13, v7, 4, v8')
    S(k,f's_mul_i32 s51, s3, {96*2304}; s_mul_i32 s52, s21, 384; s_add_u32 s51, s51, s52; s_mul_i32 s52, s3, 12288; s_mov_b32 s55, 0x3f803f80')
    S(k,'s_mul_i32 s60, s33, 3; s_lshr_b32 s60, s60, 2; s_lshl_b32 s60, s60, 1')
    def ldu(n):
        S(k,f's_lshl_b32 s44, s60, 10; s_add_u32 s44, s44, s52; s_mul_i32 s45, s60, {8*2304}; s_add_u32 s45, s45, s51; s_add_u32 s60, s60, 1; s_cmp_eq_u32 s60, 12; s_cselect_b32 s60, 0, s60')
        for cg in range(3):
            S(k,f's_add_u32 m0, s44, {cg*49152}; s_add_u32 s59, s45, {cg*128}'); k.vmem(f'buffer_load_dwordx4 v{12+(n&1)}, s[80:83], s59 offen lds','u')
    S(k,f's_lshr_b32 s53, s20, 4; s_mul_i32 s53, s53, 3072; s_min_u32 s54, s3, 2; s_lshl_b32 s54, s54, 10; s_add_u32 s53, s53, s54; s_add_u32 s53, s53, 0x5000')
    k.vmem(f'buffer_load_dwordx4 v[232:235], v4, {W}, s53 offen sc1','snap')
    for n in range(NU): ldu(n)
    touch(k)
    k.vm+=['t']*((3 if VAR=='B' else 4) if TCH else 0)
    for i in range(8): k.e(f'v_mov_b32 v{T+i}, 0')
    for f in range(12):
        if f%4==0: k.wvm('x%d'%(f+3))
        for p in range(4): k.e(f'v_dot2c_f32_bf16 v{T+p}, s55, v{X+4*f+p}'); k.e(f'v_dot2c_f32_bf16 v{T+4+p}, v{X+4*f+p}, v{X+4*f+p}')
    S(k,f's_nop 2; v_add_f32 v{T}, v{T}, v{T+1}; v_add_f32 v{T+2}, v{T+2}, v{T+3}; v_add_f32 v{T+4}, v{T+4}, v{T+5}; v_add_f32 v{T+6}, v{T+6}, v{T+7}; v_add_f32 v{T}, v{T}, v{T+2}; v_add_f32 v{T+1}, v{T+4}, v{T+6}')
    xred(k,[T,T+1],[T+2,T+3],'v_add_f32')
    S(k,f'v_mul_f32 v{T}, 0x3b2aaaab, v{T}; v_mul_f32 v{T+1}, 0x3b2aaaab, v{T+1}; v_fma_f32 v{T+1}, -v{T}, v{T}, v{T+1}; v_max_f32 v{T+1}, 0, v{T+1}; v_add_f32 v{T+1}, 0x3727c5ac, v{T+1}')
    S(k,f'v_rsq_f32 v{T+2}, v{T+1}; s_nop 0; v_mul_f32 v{T+4}, v{T}, v{T+2}; v_sub_f32 v{T+4}, 0, v{T+4}')
    def xhat(f):
        for p in range(4): S(k,f'v_lshlrev_b32 v{XH+8*f+2*p}, 16, v{X+4*f+p}; v_and_b32 v{XH+8*f+2*p+1}, 0xffff0000, v{X+4*f+p}')
        for p in range(8): k.e(f'v_fma_f32 v{XH+8*f+p}, v{XH+8*f+p}, v{T+2}, v{T+4}')
    k.stamp(1)
    for n in range(6):
        if NU+n<12: ldu(NU+n)
        xhat(2*n); xhat(2*n+1)
    k.e(f'buffer_load_dwordx4 v[236:239], v4, {W}, s53 offen sc1')
    S(k,'v_bfe_u32 v7, v1, 2, 2; v_lshlrev_b32 v8, 7, v7; v_lshl_add_u32 v8, v3, 10, v8; v_and_b32 v9, 3, v1; v_lshl_add_u32 v8, v9, 3, v8; v_lshrrev_b32 v7, 1, v7; v_and_b32 v9, 1, v3; v_lshl_add_u32 v7, v9, 1, v7; s_mul_i32 s56, s3, 3')
    for ct in range(3): S(k,f's_add_u32 s57, s56, {ct}; s_and_b32 s58, s57, 3; s_lshr_b32 s57, s57, 2; s_mul_i32 s57, s57, 49152; v_xor_b32 v9, s58, v7; v_lshl_add_u32 v9, v9, 5, v8; v_add_u32 v{244+ct}, s57, v9')
    if True:
        if True:
            k.xs('q0'); S(k,'v_mov_b32 v10, 128; s_mov_b32 s57, 0x100000; s_waitcnt vmcnt(0)'); k.xs('q1'); k.e(f's_branch {k.ln("gc")}'); k.lab('gl')
            S(k,f's_sub_u32 s57, s57, 1; s_cbranch_scc1 {k.ln("gd")}; s_mov_b32 s56, 0; s_and_b32 s58, s57, 7; s_cbranch_scc1 {k.ln("gn")}; buffer_load_dword v11, v10, {D}, 0 offen sc1; s_waitcnt vmcnt(0); v_readfirstlane_b32 s56, v11')
            k.lab('gn')
            S(k,f'buffer_load_dwordx4 v[236:239], v4, {W}, s53 offen sc1; s_waitcnt vmcnt(0); s_cmp_eq_u32 s56, 1; s_cbranch_scc1 {k.ln("gd")}')
            k.lab('gc')
            S(k,f'v_cmp_eq_u32 vcc, v233, v237; v_cmp_eq_u32 s[58:59], v235, v239; s_or_b64 vcc, vcc, s[58:59]; s_cbranch_vccnz {k.ln("gl")}')
            k.lab('gd')
            S(k,f'v_lshlrev_b32 v240, 16, v236; v_and_b32 v241, 0xffff0000, v236; v_lshlrev_b32 v242, 16, v238; v_and_b32 v243, 0xffff0000, v238; s_add_u32 s54, s54, {MODL}; v_add_u32 v10, s54, v4; ds_write_b128 v10, v[240:243]')
    ticket(k,'q'); k.stamp(2); k.xs('q2')
    S(k,'s_waitcnt lgkmcnt(0); s_barrier')
    k.vm=[]; k.lg=[]
    S(k,f's_lshr_b32 s47, s20, 4; v_lshlrev_b32 v7, 5, v3; v_add_u32 v7, {MODL}, v7; s_mul_i32 s50, s3, 12288; v_add_u32 v8, s50, v4')
    def rdmod(f):
        for q in range(4): k.ds(f'ds_read_b128 {v(160+(f%3)*16+4*q,4)}, v7 offset:{f*128+(q&1)*16+(q>>1)*1536}',f'm{f}')
    rdmod(0); rdmod(1)
    for f in range(12):
        k.wlg(f'm{f}')
        if f<10: rdmod(f+2)
        for ct in range(3):
            for h in range(2): k.ds(f'ds_read_b64_tr_b16 {a((f*3+ct)*4+2*h,2)}, v{244+ct} offset:{f*4096+h*512}','b')
        o=160+(f%3)*16; t=XH+8*f
        for p in range(8): k.e(f'v_fma_f32 v{t+p}, v{t+p}, v{o+8+p}, v{o+p}')
        for p in range(4): k.e(f'v_cvt_pk_bf16_f32 v{X+4*f+p}, v{t+2*p}, v{t+2*p+1}')
    k.xs('q3'); S(k,'s_waitcnt lgkmcnt(0); s_barrier')
    for f in range(12): k.e(f'ds_write_b128 v8, {v(X+4*f,4)} offset:{f*1024}')
    stage_setup(k)
    S(k,'s_waitcnt lgkmcnt(0); s_barrier'); k.lg=[]
```

```python
from mega import *
import k_prep as kp
MODL=147968
CTS=12288+16
VAR=os.environ.get('VAR','B'); TCH=int(os.environ.get('TCH','0')); OPL=int(os.environ.get('OPL','0'))
def touch(k):
    if not TCH: return
    S(k,f'v_lshlrev_b32 v10, 18, v1; buffer_load_dword v248, v10, {W}, 0 offen sc1; v_mul_u32_u24 v10, 24576, v1; buffer_load_dword v249, v10, s[8:11], 0 offen')
    if VAR=='B':
        k.e('buffer_load_dword v251, v10, s[16:19], 0 offen sc1'); return
    S(k,f's_lshr_b32 s56, s2, 3; s_lshl_b32 s56, s56, 2; s_add_u32 s56, s56, s3; s_lshl_b32 s57, s33, 7; s_add_u32 s57, s57, s56; s_mul_i32 s58, s57, 6144; s_add_u32 s58, s58, {WS_OP}; v_lshlrev_b32 v6, 7, v1; v_add_u32 v10, s58, v6')
    S(k,f's_mul_i32 s57, s57, 1536; s_add_u32 s58, s57, {WS_X1-48*128}; v_add_u32 v7, s58, v6; v_cmp_gt_u32 vcc, 48, v1; s_lshr_b32 s58, s56, 4; s_lshl_b32 s58, s58, 14; v_cndmask_b32 v10, v7, v10, vcc')
    S(k,f's_and_b32 s56, s56, 15; s_lshl_b32 s56, s56, 7; s_add_u32 s58, s58, s56; s_lshl_b32 s56, s33, 11; s_add_u32 s58, s58, s56; s_add_u32 s58, s58, {WS_ML}; v_mov_b32 v7, s58; v_cmp_gt_u32 vcc, 60, v1; v_min_u32 v6, {11*128}, v6; s_nop 0; v_cndmask_b32 v10, v7, v10, vcc')
    S(k,f'buffer_load_dword v250, v10, {W}, 0 offen sc1; buffer_load_dword v251, v6, s[16:19], s57 offen sc1')
NU=int(os.environ.get('NU','6'))
def prep_params(k,t,B):
    S(k,f's_cmp_lt_u32 s{t}, 180; s_cselect_b32 s{B}, s86, s88; s_cselect_b32 s{B+1}, s87, s89; s_cselect_b32 s{B+5}, 3072, 768; s_cselect_b32 s{B+6}, 0, 1; s_cselect_b32 s{B+7}, {WS_W1}, {WS_W2}'.replace(f's_cselect_b32 s{B+7}, {WS_W1}, {WS_W2}',f's_mov_b32 s56, {WS_W2}; s_cselect_b32 s{B+7}, {WS_W1}, s56').replace(f's_cselect_b32 s{B+5}, 3072, 768',f's_movk_i32 s56, 768; s_cselect_b32 s{B+5}, 3072, s56'))
    S(k,f's_cselect_b32 s57, 12, 48; s_cselect_b32 s58, 19, 21; s_movk_i32 s56, 180; s_cselect_b32 s56, 36, s56; s_mov_b32 s{B+2}, 1179648')
    S(k,f's_cmp_lt_u32 s{t}, 36; s_cselect_b32 s{B}, s84, s{B}; s_cselect_b32 s{B+1}, s85, s{B+1}; s_cselect_b32 s{B+5}, 768, s{B+5}; s_cselect_b32 s{B+6}, 1, s{B+6}; s_cselect_b32 s{B+7}, {WS_WO}, s{B+7}; s_cselect_b32 s56, 0, s56; s_cselect_b32 s{B+2}, 294912, s{B+2}')
    S(k,f's_and_b32 s{B+1}, s{B+1}, 0xffff; s_mov_b32 s{B+3}, 0x20000; s_sub_u32 s56, s{t}, s56; s_mul_i32 s55, s56, 43691; s_lshr_b32 s55, s55, s58; s_mul_i32 s54, s55, s57; s_sub_u32 s56, s56, s54')
    S(k,f's_lshl_b32 s54, s54, 3; s_add_u32 s54, s54, s56; s_lshl_b32 s54, s54, 10; s_add_u32 s{B+7}, s{B+7}, s54; s_lshl_b32 s{B+8}, s57, 10')
    S(k,f's_mul_i32 s{B+4}, s56, s{B+5}; s_lshl_b32 s{B+4}, s{B+4}, 5; s_lshl_b32 s55, s55, 8; s_add_u32 s{B+4}, s{B+4}, s55')
def prep_load(k,B,R,va):
    S(k,f's_sub_u32 s56, 3, s{B+6}; s_lshl_b32 s56, s{B+5}, s56; v_mul_lo_u32 v{va}, v3, s56; v_lshl_add_u32 v{va}, v2, 4, v{va}; s_mul_i32 s57, s{B+6}, 12; s_mul_i32 s57, s57, s{B+5}; s_mov_b32 s58, s{B+4}')
    for j in range(8):
        k.e(f'buffer_load_dwordx4 {v(R+4*j,4)}, v{va}, s[{B}:{B+3}], s58 offen'); k.e(f's_add_u32 s58, s58, s{B+5}')
        if j==3: k.e('s_add_u32 s58, s58, s57')
def prep_store(k,B,R,O):
    S(k,'v_lshrrev_b32 v7, 1, v2; v_mul_u32_u24 v7, 1040, v7; v_lshl_add_u32 v7, v3, 8, v7; v_and_b32 v8, 1, v2; v_lshl_add_u32 v7, v8, 7, v7; s_mul_i32 s56, s3, 8320; s_add_u32 s56, s56, 8192; v_add_u32 v7, s56, v7; v_add_u32 v8, s56, v4; s_mov_b32 s47, 0x05040100; s_mov_b32 s48, 0x07060302')
    for f in range(8):
        for p in range(4): k.e(f'v_perm_b32 v{O+4*f+p}, v{R+4*(2*p+1)+(f>>1)}, v{R+4*(2*p)+(f>>1)}, s{48 if f&1 else 47}')
        k.e(f'ds_write_b128 v7, {v(O+4*f,4)} offset:{16*f}')
    k.e('s_waitcnt lgkmcnt(0)')
    for f in range(8): k.e(f'ds_read_b128 {v(R+4*f,4)}, v8 offset:{1040*f}')
    k.e(f's_mov_b32 s56, s{B+7}')
    for f in range(8): S(k,f's_waitcnt lgkmcnt({7-f}); buffer_store_dwordx4 {v(R+4*f,4)}, v4, {W}, s56 offen sc1; s_add_u32 s56, s56, s{B+8}')
def helper(k):
    S(k,'s_mov_b32 s86, s88; s_mov_b32 s87, s89; s_mov_b32 s88, s90; s_mov_b32 s89, s91')
    k.srd(36,36,'c'); k.srd(92,92,'wmod')
    S(k,f's_cmp_ge_u32 s30, 11; s_cbranch_scc1 {k.ln("nz")}; v_lshlrev_b32 v6, 4, v0; v_mov_b32 v8, 0; v_mov_b32 v9, 0; v_mov_b32 v10, 0; v_mov_b32 v11, 0')
    S(k,f's_mov_b32 s40, {WS_FL-7*4096}; s_cmp_lt_u32 s30, 8; s_cselect_b32 s40, {WS_X1}, s40; s_lshl_b32 s41, s30, 12; s_add_u32 s40, s40, s41; buffer_store_dwordx4 v[8:11], v6, {W}, s40 offen sc1; s_nop 1')
    k.lab('nz')
    S(k,'s_lshl_b32 s31, s30, 2; s_add_u32 s31, s31, s3; s_add_u32 s32, s31, 128; s_min_u32 s32, s32, 323; s_mov_b32 s34, s30')
    S(k,'v_lshrrev_b32 v15, 5, v1; v_mul_u32_u24 v15, 3072, v15; v_and_b32 v12, 30, v1; v_lshl_add_u32 v15, v12, 2, v15; s_min_u32 s35, s30, 23; s_lshl_b32 s35, s35, 7; s_add_u32 s35, s35, 0x5000')
    k.e(f'buffer_load_dwordx2 v[224:225], v15, {W}, s35 offen sc1')
    k.lab('modl')
    k2=K(k.name,0,0,0,0,0); kp.mod_body(k2,0,36,92,12,' sc1')
    L=[x.replace('s_sub_u32 s40, s2, 0','s_mov_b32 s40, s34') for x in k2.L]
    i=[n for n,x in enumerate(L) if 's_waitcnt vmcnt(5)' in x][0]
    i0=[n for n,x in enumerate(L) if 'v_mov_b32 v64, 0' in x][0]
    k.L+=L[:i0]; prep_params(k,31,68); prep_params(k,32,20)
    def paths(tag,fa,fb,fc):
        S(k,f's_cmp_lt_u32 s34, 24; s_cbranch_scc1 {k.ln("pc"+tag)}; s_cmp_ge_u32 s34, 56; s_cbranch_scc1 {k.ln("pb"+tag)}'); fa(); k.e(f's_branch {k.ln("pe"+tag)}')
        k.lab('pb'+tag); S(k,f's_cmp_ge_u32 s34, 64; s_cbranch_scc1 {k.ln("pc"+tag)}'); fb(); k.e(f's_branch {k.ln("pe"+tag)}')
        k.lab('pc'+tag); fc(); k.lab('pe'+tag)
    def fa(): prep_load(k,68,96,13); prep_load(k,20,128,14); k.e('s_waitcnt vmcnt(22)')
    def fb():
        for q in range(6): S(k,f's_add_u32 s42, s41, {q*64*4608}; buffer_load_dwordx4 {v(96+4*q,4)}, v8, s[92:95], s42 offen offset:512')
        k.e('s_waitcnt vmcnt(12)')
    paths('1',fa,fb,lambda: k.e('s_waitcnt vmcnt(6)'))
    k.L+=[x for x in L[i0:i] if 's_waitcnt vmcnt' not in x]
    paths('2',lambda: k.e('s_waitcnt vmcnt(16)'),lambda: k.e('s_waitcnt vmcnt(6)'),lambda: k.e('s_waitcnt vmcnt(0)'))
    j=[n for n,x in enumerate(L) if 'moddone:' in x][0]
    k.L+=[x for x in L[i:j] if 's_waitcnt vmcnt' not in x]
    S(k,f's_cmp_ge_u32 s34, 24; s_cbranch_scc1 {k.ln("moddone")}; s_nop 1; v_mov_b32_dpp v17, v16 quad_perm:[1,1,3,3] row_mask:0xf bank_mask:0xf; v_lshrrev_b32 v224, 16, v16; v_or_b32 v224, v224, v17; v_add_u32 v225, 1, v225; s_mov_b32 exec_lo, 0x55555555; s_mov_b32 exec_hi, 0x55555555; buffer_store_dwordx2 v[224:225], v15, {W}, s35 offen sc1; s_mov_b64 exec, -1')
    prep_load(k,68,96,13)
    S(k,f's_waitcnt vmcnt(8); v_mov_b32 v10, 0; v_mov_b32 v11, 1; s_mov_b64 exec, 1; buffer_atomic_add v11, v10, {D}, 0 offen offset:64 sc0 sc1; s_waitcnt vmcnt(0); v_readfirstlane_b32 s56, v11; v_mov_b32 v11, 1; s_cmp_lg_u32 s56, 23; s_cbranch_scc1 {k.ln("moddone")}; buffer_store_dword v11, v10, {D}, 0 offen offset:128 sc1')
    k.lab('moddone'); k.e('s_mov_b64 exec, -1'); k.stamp(1)
    S(k,f's_cmp_ge_u32 s34, 64; s_cbranch_scc1 {k.ln("m2")}; s_cmp_lt_u32 s34, 24; s_cselect_b32 s56, s3, 0; s_cmp_eq_u32 s56, 0; s_cbranch_scc1 {k.ln("late")}'); prep_load(k,68,96,13); k.lab('late')
    ticket(k,'i'); touch(k)
    S(k,f's_cmp_ge_u32 s34, 56; s_cbranch_scc1 {k.ln("np2")}; s_waitcnt vmcnt(0)')
    prep_store(k,68,96,160)
    S(k,f's_sub_u32 s56, s31, 96; s_cmp_ge_u32 s56, 100; s_cbranch_scc1 {k.ln("np2")}'); prep_store(k,20,128,192); k.lab('np2')
    S(k,f's_waitcnt vmcnt(0); s_barrier; s_cmp_lg_u32 s3, 0; s_cbranch_scc1 {k.ln("hd")}; v_mov_b32 v10, 0; v_mov_b32 v11, 1; s_mov_b64 exec, 1; buffer_atomic_add v11, v10, {D}, 0 offen offset:68 sc0 sc1; s_waitcnt vmcnt(0); v_readfirstlane_b32 s56, v11; v_mov_b32 v11, 1; s_cmp_lg_u32 s56, 63; s_cbranch_scc1 {k.ln("hd")}; buffer_store_dword v11, v10, {D}, 0 offen offset:132 sc1')
    k.lab('hd'); k.e('s_mov_b64 exec, -1')
    S(k,f's_add_u32 s34, s34, 8; s_cmp_ge_u32 s34, 64; s_cbranch_scc1 {k.ln("modl")}; s_branch {k.ln("m3")}')
    k.lab('m2')
    S(k,f's_cmp_lg_u32 s3, 0; s_cbranch_scc1 {k.ln("m3")}; s_waitcnt vmcnt(0); v_mov_b32 v10, 0; v_mov_b32 v11, 1; s_mov_b64 exec, 1; buffer_atomic_add v11, v10, {D}, 0 offen offset:136 sc1')
    k.lab('m3'); k.e('s_mov_b64 exec, -1')
    dpoll(k,'v_mov_b32 v10, 128',1,'w',False)
def dpoll(k,voff,val,tag,bar=True):
    S(k,f's_cmp_lg_u32 s3, 0; s_cbranch_scc1 {k.ln("dd"+tag)}; {voff}; s_mov_b32 s57, 0x100000')
    k.lab('dl'+tag)
    S(k,f'buffer_load_dword v11, v10, {D}, 0 offen sc1; s_waitcnt vmcnt(0); v_cmp_ne_u32 vcc, {val}, v11; s_sub_u32 s57, s57, 1; s_cbranch_scc1 {k.ln("dd"+tag)}; s_cbranch_vccz {k.ln("dd"+tag)}; s_sleep 2; s_branch {k.ln("dl"+tag)}')
    k.lab('dd'+tag)
    if bar: k.e('s_barrier')
def qkv_front(k):
    R=64; PO=208; T=224; XH=64
    S(k,f'v_mul_u32_u24 v6, 768, v2; v_lshl_add_u32 v6, v3, 4, v6; s_mul_i32 s50, s3, {16*768}; s_mul_i32 s46, s20, {64*768}; s_add_u32 s50, s50, s46')
    for f in range(12): k.vmem(f'buffer_load_dwordx4 {v(X+4*f,4)}, v6, s[8:11], s50 offen offset:{64*f}','x%d'%f)
    S(k,'v_lshrrev_b32 v7, 3, v1; v_mul_u32_u24 v8, 2304, v7; v_and_b32 v9, 7, v1; v_and_b32 v7, 2, v7; v_xor_b32 v9, v9, v7; v_xor_b32 v7, 4, v9; v_lshl_add_u32 v12, v9, 4, v8; v_lshl_add_u32 v13, v7, 4, v8')
    S(k,f's_mul_i32 s51, s3, {96*2304}; s_mul_i32 s52, s21, 384; s_add_u32 s51, s51, s52; s_mul_i32 s52, s3, 12288; s_mov_b32 s55, 0x3f803f80')
    S(k,'s_mul_i32 s60, s33, 3; s_lshr_b32 s60, s60, 2; s_lshl_b32 s60, s60, 1')
    def ldu(n):
        S(k,f's_lshl_b32 s44, s60, 10; s_add_u32 s44, s44, s52; s_mul_i32 s45, s60, {8*2304}; s_add_u32 s45, s45, s51; s_add_u32 s60, s60, 1; s_cmp_eq_u32 s60, 12; s_cselect_b32 s60, 0, s60')
        for cg in range(3):
            S(k,f's_add_u32 m0, s44, {cg*49152}; s_add_u32 s59, s45, {cg*128}'); k.vmem(f'buffer_load_dwordx4 v{12+(n&1)}, s[80:83], s59 offen lds','u')
    S(k,f's_lshr_b32 s53, s20, 4; s_mul_i32 s53, s53, 3072; s_min_u32 s54, s3, 2; s_lshl_b32 s54, s54, 10; s_add_u32 s53, s53, s54; s_add_u32 s53, s53, 0x5000')
    k.vmem(f'buffer_load_dwordx4 v[232:235], v4, {W}, s53 offen sc1','snap')
    for n in range(NU): ldu(n)
    touch(k)
    k.vm+=['t']*((3 if VAR=='B' else 4) if TCH else 0)
    for i in range(8): k.e(f'v_mov_b32 v{T+i}, 0')
    for f in range(12):
        if f%4==0: k.wvm('x%d'%(f+3))
        for p in range(4): k.e(f'v_dot2c_f32_bf16 v{T+p}, s55, v{X+4*f+p}'); k.e(f'v_dot2c_f32_bf16 v{T+4+p}, v{X+4*f+p}, v{X+4*f+p}')
    S(k,f's_nop 2; v_add_f32 v{T}, v{T}, v{T+1}; v_add_f32 v{T+2}, v{T+2}, v{T+3}; v_add_f32 v{T+4}, v{T+4}, v{T+5}; v_add_f32 v{T+6}, v{T+6}, v{T+7}; v_add_f32 v{T}, v{T}, v{T+2}; v_add_f32 v{T+1}, v{T+4}, v{T+6}')
    xred(k,[T,T+1],[T+2,T+3],'v_add_f32')
    S(k,f'v_mul_f32 v{T}, 0x3b2aaaab, v{T}; v_mul_f32 v{T+1}, 0x3b2aaaab, v{T+1}; v_fma_f32 v{T+1}, -v{T}, v{T}, v{T+1}; v_max_f32 v{T+1}, 0, v{T+1}; v_add_f32 v{T+1}, 0x3727c5ac, v{T+1}')
    S(k,f'v_rsq_f32 v{T+2}, v{T+1}; s_nop 0; v_mul_f32 v{T+4}, v{T}, v{T+2}; v_sub_f32 v{T+4}, 0, v{T+4}')
    def xhat(f):
        for p in range(4): S(k,f'v_lshlrev_b32 v{XH+8*f+2*p}, 16, v{X+4*f+p}; v_and_b32 v{XH+8*f+2*p+1}, 0xffff0000, v{X+4*f+p}')
        for p in range(8): k.e(f'v_fma_f32 v{XH+8*f+p}, v{XH+8*f+p}, v{T+2}, v{T+4}')
    k.stamp(1)
    for n in range(6):
        if NU+n<12: ldu(NU+n)
        xhat(2*n); xhat(2*n+1)
    k.e(f'buffer_load_dwordx4 v[236:239], v4, {W}, s53 offen sc1')
    S(k,'v_bfe_u32 v7, v1, 2, 2; v_lshlrev_b32 v8, 7, v7; v_lshl_add_u32 v8, v3, 10, v8; v_and_b32 v9, 3, v1; v_lshl_add_u32 v8, v9, 3, v8; v_lshrrev_b32 v7, 1, v7; v_and_b32 v9, 1, v3; v_lshl_add_u32 v7, v9, 1, v7; s_mul_i32 s56, s3, 3')
    for ct in range(3): S(k,f's_add_u32 s57, s56, {ct}; s_and_b32 s58, s57, 3; s_lshr_b32 s57, s57, 2; s_mul_i32 s57, s57, 49152; v_xor_b32 v9, s58, v7; v_lshl_add_u32 v9, v9, 5, v8; v_add_u32 v{244+ct}, s57, v9')
    if True:
        if True:
            k.xs('q0'); S(k,'v_mov_b32 v10, 128; s_mov_b32 s57, 0x100000; s_waitcnt vmcnt(0)'); k.xs('q1'); k.e(f's_branch {k.ln("gc")}'); k.lab('gl')
            S(k,f's_sub_u32 s57, s57, 1; s_cbranch_scc1 {k.ln("gd")}; s_mov_b32 s56, 0; s_and_b32 s58, s57, 1; s_cbranch_scc1 {k.ln("gn")}; buffer_load_dword v11, v10, {D}, 0 offen sc1; s_waitcnt vmcnt(0); v_readfirstlane_b32 s56, v11')
            k.lab('gn')
            S(k,f'buffer_load_dwordx4 v[236:239], v4, {W}, s53 offen sc1; s_waitcnt vmcnt(0); s_cmp_eq_u32 s56, 1; s_cbranch_scc1 {k.ln("gd")}')
            k.lab('gc')
            S(k,f'v_cmp_eq_u32 vcc, v233, v237; v_cmp_eq_u32 s[58:59], v235, v239; s_or_b64 vcc, vcc, s[58:59]; s_cbranch_vccnz {k.ln("gl")}')
            k.lab('gd')
            S(k,f'v_lshlrev_b32 v240, 16, v236; v_and_b32 v241, 0xffff0000, v236; v_lshlrev_b32 v242, 16, v238; v_and_b32 v243, 0xffff0000, v238; s_add_u32 s54, s54, {MODL}; v_add_u32 v10, s54, v4; ds_write_b128 v10, v[240:243]')
    ticket(k,'q'); k.stamp(2); k.xs('q2')
    S(k,'s_waitcnt lgkmcnt(0); s_barrier')
    k.vm=[]; k.lg=[]
    S(k,f's_lshr_b32 s47, s20, 4; v_lshlrev_b32 v7, 5, v3; v_add_u32 v7, {MODL}, v7; s_mul_i32 s50, s3, 12288; v_add_u32 v8, s50, v4')
    def rdmod(f):
        for q in range(4): k.ds(f'ds_read_b128 {v(160+(f%3)*16+4*q,4)}, v7 offset:{f*128+(q&1)*16+(q>>1)*1536}',f'm{f}')
    rdmod(0); rdmod(1)
    for f in range(12):
        k.wlg(f'm{f}')
        if f<10: rdmod(f+2)
        for ct in range(3):
            for h in range(2): k.ds(f'ds_read_b64_tr_b16 {a((f*3+ct)*4+2*h,2)}, v{244+ct} offset:{f*4096+h*512}','b')
        o=160+(f%3)*16; t=XH+8*f
        for p in range(8): k.e(f'v_fma_f32 v{t+p}, v{t+p}, v{o+8+p}, v{o+p}')
        for p in range(4): k.e(f'v_cvt_pk_bf16_f32 v{X+4*f+p}, v{t+2*p}, v{t+2*p+1}')
    k.xs('q3'); S(k,'s_waitcnt lgkmcnt(0); s_barrier')
    for f in range(12): k.e(f'ds_write_b128 v8, {v(X+4*f,4)} offset:{f*1024}')
    stage_setup(k)
    S(k,'s_waitcnt lgkmcnt(0); s_barrier'); k.lg=[]
```

```python
from mega import *
from start import *
MAP2=int(os.environ.get('MAP2','1'))
STCH=int(os.environ.get('STCH','0'))<<10
WBL2=int(os.environ.get('WBL2','1'))
def attn_phase(k,ld):
    Sx=16; O=80; QF=128; T=160
    S(k,f's_lshl_b32 s25, s22, 6; s_lshl_b32 s26, s24, 2; s_add_u32 s26, s26, s25; s_add_u32 s26, s26, s3; s_mul_i32 s26, s26, 6144; s_add_u32 s26, s26, {WS_Q}')
    S(k,f's_lshl_b32 s29, s23, 4; s_add_u32 s29, s29, s25; s_lshl_b32 s27, s3, 2; s_add_u32 s29, s29, s27; s_mul_i32 s29, s29, 6144; s_add_u32 s29, s29, {WS_K}')
    S(k,f's_lshl_b32 s34, s22, 5; s_lshl_b32 s27, s23, 3; s_add_u32 s34, s34, s27; s_mul_i32 s34, s34, 12288; s_mul_i32 s27, s3, 3072; s_add_u32 s34, s34, s27; s_add_u32 s34, s34, {WS_V}')
    S(k,'s_lshr_b32 s40, s22, 1; s_lshl_b32 s40, s40, 4; s_and_b32 s41, s22, 1; s_lshl_b32 s42, s23, 2; s_add_u32 s42, s42, s40; s_add_u32 s43, s40, s24')
    S(k,'v_and_b32 v10, 3, v1; v_add_u32 v10, s42, v10; v_lshlrev_b32 v10, 7, v10; v_lshrrev_b32 v11, 2, v1; v_lshl_add_u32 v10, v11, 3, v10; s_lshl_b32 s44, s41, 2; s_add_u32 s45, s44, 8; v_add_u32 v10, s45, v10')
    S(k,'s_lshl_b32 s45, s43, 7; s_add_u32 s45, s45, s44; v_mov_b32 v11, s45; v_cmp_gt_u32 vcc, 8, v1; s_nop 1; v_cndmask_b32 v10, v11, v10, vcc')
    S(k,'s_mul_i32 s27, s3, 6144; s_mov_b32 m0, s27; s_add_u32 s28, s26, 4096')
    poll(k,0,'a'); k.stamp(5)
    for i in range(4): k.vmem(f'buffer_load_dwordx4 v4, {W}, s26 offen offset:{i*1024} sc1 lds','q')
    S(k,'s_add_u32 s27, s27, 4096; s_mov_b32 m0, s27; s_nop 0')
    for i in range(2): k.vmem(f'buffer_load_dwordx4 v4, {W}, s28 offen offset:{i*1024} sc1 lds','q')
    k.e('v_mov_b32 v9, 132'); k.vmem('buffer_load_dwordx2 v[6:7], v9, s[96:99], 0 offen sc1','hd')
    for kb in range(6):
        for kt in range(4): ld.add(a((kb*4+kt)*4,4),29,kt*6144+kb*1024,f'K{kb}',' sc1')
    for j in range(8):
        for i in range(3): ld.add(a(96+(j*3+i)*4,4),34,j*12288+i*1024,f'V{j}',' sc1')
    ld.issue(24)
    k.wvm('q'); k.e('s_barrier')
    def rdq(kb):
        for qt in range(4): k.ds(f'ds_read_b128 {v(QF+(kb&1)*16+4*qt,4)}, v4 offset:{(qt*6+kb)*1024}',f'q{kb}_{qt}')
    rdq(0)
    for kb in range(6):
        if kb<5: rdq(kb+1)
        k.wvm(f'K{kb}')
        for qt in range(4):
            k.wlg(f'q{kb}_{qt}')
            for kt in range(4):
                Dd=v(Sx+(qt*4+kt)*4,4)
                k.e(f'v_mfma_f32_16x16x32_bf16 {Dd}, {a((kb*4+kt)*4,4)}, {v(QF+(kb&1)*16+4*qt,4)}, {Dd if kb else 0}')
            ld.issue(1)
    k.stamp(6)
    k.e('s_mov_b32 s57, 0x100000'); k.lab('hl')
    S(k,f'v_readfirstlane_b32 s56, v6; v_readfirstlane_b32 s58, v7; s_add_u32 s56, s56, s58; s_cmp_eq_u32 s56, 9; s_cbranch_scc1 {k.ln("hk")}; s_sub_u32 s57, s57, 1; s_cbranch_scc1 {k.ln("hk")}; s_sleep 2; buffer_load_dwordx2 v[6:7], v9, s[96:99], 0 offen sc1; s_waitcnt vmcnt(0); s_branch {k.ln("hl")}')
    k.lab('hk')
    S(k,f's_lshr_b32 s56, s20, 4; s_mul_i32 s56, s56, 9216; s_lshl_b32 s57, s3, 10; s_add_u32 s56, s56, s57; s_add_u32 s56, s56, {1152*4}; s_lshr_b32 s58, s20, 4; s_mul_i32 s58, s58, 4608; s_add_u32 s58, s58, {0xC000+2304}; s_cmp_eq_u32 s3, 3; s_cselect_b32 s56, s58, s56; s_add_u32 m0, s57, 92160; s_nop 0')
    k.vmem(f'buffer_load_dwordx4 v4, {W}, s56 offen sc1 lds','mod')
    for ct in range(6):
        for kb in range(3): ld.add(wo_reg(kb*6+ct),35,ct*12288+kb*1024,'wo')
    S(k,'s_lshl_b32 s56, s33, 2; v_mov_b32 v5, 0'); k.vmem(f'buffer_load_dword v5, v5, s[96:99], s56 offen sc1','cnt')
    for ct in range(3):
        for kb in range(8): ld.add(a((kb*3+ct)*4,4),38,(ct*12+kb)*1024,'w1')
    k.e(f's_mov_b32 s40, {f2(192**-0.5*1.4426950408889634)}')
    S(k,'s_lshl_b32 s41, s3, 8; v_lshlrev_b32 v6, 4, v2; v_add_u32 v6, 57344, v6; v_add_u32 v7, s41, v6; s_mul_i32 s42, s3, 8192; s_add_u32 s42, s42, 24576; v_add_u32 v8, s42, v4; s_nop 4')
    for qt in range(4):
        b=Sx+qt*16
        k.e(f'v_max3_f32 v{T+qt}, v{b}, v{b+1}, v{b+2}')
        for i in range(3,15,2): k.e(f'v_max3_f32 v{T+qt}, v{T+qt}, v{b+i}, v{b+i+1}')
        k.e(f'v_max_f32 v{T+qt}, v{T+qt}, v{b+15}')
    xred(k,[T,T+1,T+2,T+3],[T+4,T+5,T+6,T+7],'v_max_f32')
    k.e(f'ds_write_b128 v7, {v(T,4)}'); ld.issue(1); k.e('s_waitcnt lgkmcnt(0)'); k.e('s_barrier')
    for w in range(4): k.e(f'ds_read_b128 {v(T+8+4*w,4)}, v6 offset:{w*256}')
    ld.issue(1)
    for i in range(4): k.e(f'v_mov_b32 v{T+4+i}, 0x3f803f80')
    S(k,'s_lshl_b32 s42, s3, 10; v_add_u32 v9, s42, v4; s_waitcnt lgkmcnt(0)')
    for qt in range(4):
        S(k,f'v_max3_f32 v{T+qt}, v{T+8+qt}, v{T+12+qt}, v{T+16+qt}; v_max_f32 v{T+qt}, v{T+qt}, v{T+20+qt}; v_mul_f32 v{T+qt}, s40, v{T+qt}; v_ceil_f32 v{T+qt}, v{T+qt}')
    for qt in range(4):
        b=Sx+qt*16
        for hh in range(2):
            for i in range(8*hh,8*hh+8): k.e(f'v_fma_f32 v{b+i}, v{b+i}, s40, -v{T+qt}')
            ld.issue(1)
            for i in range(8*hh,8*hh+8): k.e(f'v_exp_f32 v{b+i}, v{b+i}')
            ld.issue(1)
            for i in range(4*hh,4*hh+4): k.e(f'v_cvt_pk_bf16_f32 v{b+i}, v{b+2*i}, v{b+2*i+1}')
            k.e(f'ds_write_b128 v8, {v(b+4*hh,4)} offset:{(hh*4+qt)*1024}')
    k.e('s_waitcnt lgkmcnt(0)'); k.e('s_barrier'); k.lg=[]
    k.stamp(7)
    LA=T+8; PW=T+16
    def rdp(j):
        for qt in range(4): k.ds(f'ds_read_b128 {v(QF+(j&1)*16+4*qt,4)}, v4 offset:{24576+(j*4+qt)*1024}',f'p{j}_{qt}')
        k.ds(f'ds_read_b128 {v(PW+(j&1)*4,4)}, v9 offset:{24576+j*4096}',f'pw{j}')
    rdp(0)
    for j in range(8):
        if j<7: rdp(j+1)
        k.wvm(f'V{j}')
        for qt in range(4):
            k.wlg(f'p{j}_{qt}')
            for i in range(3):
                D=v(O+(qt*3+i)*4,4)
                k.e(f'v_mfma_f32_16x16x32_bf16 {D}, {a(96+(j*3+i)*4,4)}, {v(QF+(j&1)*16+4*qt,4)}, {D if j else 0}')
            ld.issue(1)
        k.wlg(f'pw{j}')
        k.e(f'v_mfma_f32_16x16x32_bf16 {v(LA,4)}, {v(T+4,4)}, {v(PW+(j&1)*4,4)}, {v(LA,4) if j else 0}')
        if j==2:
            S(k,'s_lshr_b32 s26, s22, 1; s_lshl_b32 s26, s26, 6; s_lshl_b32 s27, s24, 2; s_add_u32 s26, s26, s27')
            S(k,f's_lshl_b32 s27, s20, 2; s_add_u32 s27, s27, s23; s_mul_i32 s27, s27, 49152; s_add_u32 s27, s27, {WS_OP}')
            S(k,'s_and_b32 s28, s22, 1; s_mul_i32 s29, s28, 6144; s_add_u32 s32, s29, s27')
            stage_setup(k)
        if j==3:
            k.wvm('cnt'); S(k,'v_readfirstlane_b32 s56, v5; s_cmp_ge_u32 s56, 32; s_cselect_b32 s63, s63, 0')
            k.e(f'v_mov_b32 v{T+12}, v{T}')
            for qt in range(1,4): S(k,f's_cmp_eq_u32 s3, {qt}; s_cselect_b64 vcc, -1, 0; v_cndmask_b32 v{T+12}, v{T+12}, v{T+qt}, vcc')
            S(k,f's_lshl_b32 s27, s23, 1; s_add_u32 s27, s27, s28; s_lshl_b32 s27, s27, 14; s_add_u32 s26, s26, s3; s_lshl_b32 s26, s26, 7; s_add_u32 s27, s27, s26; s_add_u32 s27, s27, {WS_ML}; v_lshlrev_b32 v10, 3, v1')
    assert not ld.q
    k.e('s_nop 4'); k.stamp(8)
    for qt in range(4):
        for i in range(3): stage_put(k,O+(qt*3+i)*4,qt,i)
    S(k,f'v_mov_b32 v{T+13}, v{LA}; s_mov_b64 exec, 0xffff')
    dual(k,lambda sc: k.e(f'buffer_store_dwordx2 {v(T+12,2)}, v10, {W}, s27 offen{sc}'),'ml',bool(OPL))
    k.e('s_mov_b64 exec, -1')
    stage_out(k,32,12288,QF,'a' if OPL else None)
    S(k,'s_lshl_b32 s44, s28, 2; s_add_u32 s44, s44, s23')
    publish(k,1,43,44,'a')
def wo_phase(k,ld):
    X1A=f's_add_u32 s25, s25, s47; s_add_u32 s25, s25, {WS_X1}'
    if VAR=='B':
        S(k,f's_lshr_b32 s34, s20, 4; s_lshl_b32 s34, s34, 5; s_and_b32 s56, s20, 15; s_add_u32 s34, s34, s56; s_mul_i32 s34, s34, 24576; s_add_u32 s34, s34, {WS_Q}')
        X1A=f's_and_b32 s56, s36, 1; s_mul_i32 s56, s56, {16*24576}; s_add_u32 s25, s25, s56; s_add_u32 s25, s25, s34'
    AC=16; OPR=64; Wt=160; T=184; E=200
    S(k,'s_lshr_b32 s40, s3, 1; s_min_u32 s41, s3, 2; s_mul_i32 s48, s37, 3; s_add_u32 s48, s48, s41')
    S(k,f's_mul_i32 s47, s36, {32*768}; s_lshl_b32 s25, s48, 10; {X1A}; s_add_u32 s31, s25, 12288; s_lshl_b32 s49, s48, 6; s_add_u32 s47, s47, s49; s_add_u32 s49, s47, 12288')
    S(k,f's_lshr_b32 s26, s36, 5; s_mul_i32 s26, s26, 9216; s_lshl_b32 s27, s48, 7; s_add_u32 s26, s26, s27; s_add_u32 s26, s26, {768*4}')
    S(k,'v_mul_u32_u24 v6, 768, v2; v_lshl_add_u32 v6, v3, 4, v6; v_lshlrev_b32 v7, 5, v3')
    S(k,f's_lshl_b32 s27, s40, 14; s_lshl_b32 s28, s36, 8; s_add_u32 s27, s27, s28; s_add_u32 s27, s27, {WS_ML}; v_lshlrev_b32 v12, 3, v2')
    S(k,f's_mul_i32 s28, s3, 3072; s_mul_i32 s29, s20, 196608; s_add_u32 s29, s29, s28; s_and_b32 s28, s36, 1; s_mul_i32 s28, s28, 24576; s_add_u32 s29, s29, s28; s_add_u32 s29, s29, {WS_OP}; s_lshr_b32 s30, s36, 1')
    ld.reset(); poll8(k,1,30,'w'); k.stamp(9)
    for s in range(4):
        for rt in range(2): k.vmem(f'buffer_load_dwordx2 {v(Wt+(rt*4+s)*2,2)}, v12, {W}, s27 offen offset:{rt*128} sc1','ml')
        k.e('s_add_u32 s27, s27, 32768')
    for kb in range(3):
        for rt in range(2):
            for s in range(4): ld.add(v(OPR+((kb*2+rt)*4+s)*4,4),29,s*49152+rt*12288+kb*1024,f'o{kb}_{rt}',' sc1')
    ld.issue(16)
    k.xs('w0'); k.wvm('ml'); k.xs('w1')
    for rt in range(2):
        b=Wt+rt*8
        S(k,f'v_max3_f32 v{T}, v{b}, v{b+2}, v{b+4}; v_max_f32 v{T}, v{T}, v{b+6}')
        for s in range(4): k.e(f'v_sub_f32 v{b+2*s}, v{b+2*s}, v{T}')
        for s in range(4): k.e(f'v_exp_f32 v{b+2*s}, v{b+2*s}')
        k.e('s_nop 0')
        S(k,f'v_mul_f32 v{T}, v{b}, v{b+1}; v_mul_f32 v{T+1}, v{b+2}, v{b+3}; v_fmac_f32 v{T}, v{b+4}, v{b+5}; v_fmac_f32 v{T+1}, v{b+6}, v{b+7}; v_add_f32 v{T}, v{T}, v{T+1}; v_rcp_f32 v{T}, v{T}; s_nop 0')
        k.e(f'v_mov_b32 v{176+rt}, v{T}')
        for s in range(4): S(k,f'v_and_b32 v{b+2*s+1}, 0xffff0000, v{b+2*s}; v_lshrrev_b32 v{b+2*s}, 16, v{b+2*s}')
    for kb in range(3):
        for rt in range(2):
            if kb==1 and rt==0:
                assert not ld.q
                k.vmem(f'buffer_load_dwordx4 {v(E,4)}, v6, s[8:11], s47 offen','epi'); k.vmem(f'buffer_load_dwordx4 {v(E+4,4)}, v6, s[8:11], s49 offen','epi')
                k.vmem(f'buffer_load_dwordx4 {v(E+8,4)}, v7, {W}, s26 offen sc1','epi'); k.vmem(f'buffer_load_dwordx4 {v(E+12,4)}, v7, {W}, s26 offen offset:16 sc1','epi')
            if kb==1 and rt==0:
                for ct in range(3):
                    for k2 in range(8,12): ld.add(a((k2*3+ct)*4,4),38,(ct*12+k2)*1024,'w1')
            k.wvm(f'o{kb}_{rt}')
            if rt==0: k.xs('o%d'%kb)
            o=OPR+(kb*2+rt)*16
            for s in range(4):
                for p in range(8):
                    k.e(f'v_dot2_f32_bf16 v{T+p}, v{o+4*s+p//2}, v{Wt+rt*8+2*s+(p&1)}, '+('0' if s==0 else f'v{T+p}'))
                ld.issue(1)
            k.e('s_nop 2')
            for p in range(8): k.e(f'v_mul_f32 v{T+p}, v{T+p}, v{176+rt}')
            for p in range(4): k.e(f'v_cvt_pk_bf16_f32 v{o+p}, v{T+2*p}, v{T+2*p+1}')
            k.e('s_nop 1')
            for ct in range(6):
                D=v(AC+(rt*6+ct)*4,4)
                k.e(f'v_mfma_f32_16x16x32_bf16 {D}, {wo_reg(kb*6+ct)}, {v(o,4)}, {D if kb else 0}')
    k.stamp(10); k.wvm('epi')
    S(k,'s_mul_i32 s50, s3, 12288; v_add_u32 v8, s50, v4; s_lshl_b32 s50, s41, 11; v_lshrrev_b32 v9, 1, v3; v_lshlrev_b32 v9, 10, v9; v_and_b32 v13, 1, v3; v_lshl_add_u32 v9, v13, 9, v9; v_lshl_add_u32 v9, v2, 4, v9; v_add_u32 v9, s50, v9')
    for t in range(12): k.e(f'ds_write_b128 v8, {v(AC+4*t,4)} offset:{t*1024}')
    S(k,f's_waitcnt lgkmcnt(0); s_barrier; s_cmp_eq_u32 s3, 3; s_cbranch_scc1 {k.ln("wo3")}')
    for rt in range(2):
        for w in range(4):
            for e in range(2): k.e(f'ds_read_b128 {v(64+rt*32+w*8+e*4,4)}, v9 offset:{w*12288+rt*6144+e*256}')
    for rt in range(2):
        b=64+rt*32; t=128
        for p in range(4): S(k,f'v_lshlrev_b32 v{t+2*p}, 16, v{E+4*rt+p}; v_and_b32 v{t+2*p+1}, 0xffff0000, v{E+4*rt+p}')
        k.e(f's_waitcnt lgkmcnt({8-8*rt})')
        for h in range(8): S(k,f'v_add_f32 v{b+h}, v{b+h}, v{b+8+h}; v_add_f32 v{b+16+h}, v{b+16+h}, v{b+24+h}')
        for h in range(8): k.e(f'v_add_f32 v{b+h}, v{b+h}, v{b+16+h}')
        for h in range(8): k.e(f'v_fma_f32 v{b+h}, v{b+h}, v{E+8+h}, v{t+h}')
        for p in range(4): k.e(f'v_cvt_pk_bf16_f32 v{b+p}, v{b+2*p}, v{b+2*p+1}')
        dual(k,lambda sc: k.e(f'buffer_store_dwordx4 {v(b,4)}, v4, {W}, s{31 if rt else 25} offen{sc}'),f'x{rt}',True)
    k.lab('wo3')
    S(k,'s_and_b32 s44, s36, 1; s_lshl_b32 s44, s44, 2; s_add_u32 s44, s44, s37')
    publish(k,2,30,44,'w')
def ln2(k):
    SC=112; BI=208; RS=220; T2=64
    S(k,'v_lshlrev_b32 v7, 5, v3; v_add_u32 v7, 92160, v7; s_mul_i32 s50, s3, 12288; v_add_u32 v8, s50, v4; s_add_u32 s50, s50, s46')
    if VAR=='B': S(k,f's_lshr_b32 s56, s3, 1; s_mul_i32 s56, s56, {16*24576}; s_and_b32 s57, s3, 1; s_mul_i32 s57, s57, 12288; s_add_u32 s56, s56, s57; s_add_u32 s34, s34, s56; s_mov_b32 s50, s34')
    S(k,'s_add_u32 s51, s50, 4096; s_add_u32 s52, s50, 8192')
    poll8(k,2,20,'f'); k.stamp(11)
    for f in range(12): k.vmem(f'buffer_load_dwordx4 {v(X+4*f,4)}, v4, {W}, s{50+f//4} offen offset:{1024*(f%4)} sc1','x%d'%f)
    S(k,f'v_lshlrev_b32 v9, 4, v3; v_add_u32 v9, {92160+3072}, v9')
    for f in range(12): k.e(f'ds_read_b128 {a(144+4*f,4)}, v9 offset:{f*64}')
    for f in range(12):
        for q in range(2): k.e(f'ds_read_b128 {v(SC+8*f+4*q,4)}, v7 offset:{1536+f*128+q*16}')
    stage_setup(k)
    S(k,'s_mov_b32 s55, 0x3f803f80; v_mov_b32 v5, 0x3f80; v_mov_b32 v6, 0x3f800000; s_lshl_b32 s56, s3, 6; s_add_u32 s56, s56, 53248; v_lshlrev_b32 v9, 2, v2; v_add_u32 v7, s56, v9; v_add_u32 v9, 53248, v9')
    for i in range(8): k.e(f'v_mov_b32 v{T2+i}, 0')
    k.e('s_waitcnt lgkmcnt(0)')
    for f in range(12):
        if f%2==0: k.wvm('x%d'%(f+1))
        for p in range(4): k.e(f'v_dot2c_f32_bf16 v{T2+p}, s55, v{X+4*f+p}'); k.e(f'v_dot2c_f32_bf16 v{T2+4+p}, v{X+4*f+p}, v{X+4*f+p}')
    t=T2
    S(k,f's_nop 2; v_add_f32 v{t}, v{t}, v{t+1}; v_add_f32 v{t+2}, v{t+2}, v{t+3}; v_add_f32 v{t+4}, v{t+4}, v{t+5}; v_add_f32 v{t+6}, v{t+6}, v{t+7}; v_add_f32 v{t}, v{t}, v{t+2}; v_add_f32 v{t+1}, v{t+4}, v{t+6}')
    xred(k,[t,t+1],[t+2,t+3],'v_add_f32')
    S(k,f'v_mul_f32 v{t}, 0xbb2aaaab, v{t}; v_mul_f32 v{t+1}, 0x3b2aaaab, v{t+1}; v_fma_f32 v{t+1}, -v{t}, v{t}, v{t+1}; v_max_f32 v{t+1}, 0, v{t+1}; v_add_f32 v{t+1}, 0x3727c5ac, v{t+1}; v_rsq_f32 v{t+2}, v{t+1}')
    def ctr(f):
        for p in range(8): k.e(f'v_dot2_f32_bf16 v{T2+8+(f&1)*8+p}, v{X+4*f+p//2}, v{5+(p&1)}, v{t}')
    ctr(0); k.e(f'ds_write_b32 v7, v{t+2}')
    for f in range(12):
        if f<11: ctr(f+1)
        else: k.e('s_nop 2')
        c=T2+8+(f&1)*8
        k.e(f'v_mfma_f32_16x16x32_bf16 {v(BI+4*0,4)}, {a((f*3+0)*4,4)}, {a(144+4*f,4)}, {v(BI+4*0,4) if f else 0}')
        for p in range(8): k.e(f'v_mul_f32 v{c+p}, v{c+p}, v{SC+8*f+p}')
        k.e(f'v_mfma_f32_16x16x32_bf16 {v(BI+4*1,4)}, {a((f*3+1)*4,4)}, {a(144+4*f,4)}, {v(BI+4*1,4) if f else 0}')
        for p in range(4): k.e(f'v_cvt_pk_bf16_f32 v{X+4*f+p}, v{c+2*p}, v{c+2*p+1}')
        k.e(f'v_mfma_f32_16x16x32_bf16 {v(BI+4*2,4)}, {a((f*3+2)*4,4)}, {a(144+4*f,4)}, {v(BI+4*2,4) if f else 0}')
        k.e(f'ds_write_b128 v8, {v(X+4*f,4)} offset:{f*1024}')
    S(k,'s_waitcnt lgkmcnt(0); s_barrier'); k.lg=[]
    for rt in range(4): k.ds(f'ds_read_b32 v{RS+rt}, v9 offset:{64*rt}','rs')
    k.stamp(12)
def k_mega():
    k=K('mega_kernel',256,256,152064,256,256)
    S(k,f's_load_dwordx2 s[84:85], s[0:1], {KA["wo"]}; s_load_dwordx4 s[88:91], s[0:1], {KA["w1"]}; s_load_dwordx2 s[36:37], s[0:1], {KA["c"]}; s_load_dwordx2 s[92:93], s[0:1], {KA["wmod"]}')
    S(k,f's_cmp_ge_u32 s2, 256; s_cbranch_scc1 {k.ln("end")}; v_cmp_gt_u32 vcc, 16, v0; s_getpc_b64 s[40:41]')
    k.lab('pc')
    S(k,f's_and_saveexec_b64 s[44:45], vcc; s_cbranch_execz {k.ln("nocode")}; s_lshr_b32 s42, s2, 3; s_lshl_b32 s42, s42, 7; v_lshlrev_b32 v10, 12, v0; v_add_u32 v10, s42, v10; v_min_u32 v10, {k.ln("end")}-{k.ln("pc")}, v10; v_mov_b32 v11, s41; v_add_co_u32 v10, vcc, s40, v10; s_nop 1; v_addc_co_u32 v11, vcc, 0, v11, vcc; global_load_dword v243, v[10:11], off')
    k.lab('nocode'); k.e('s_mov_b64 exec, s[44:45]')
    prologue(k,256,[('x',4,XS),('ws',6,WS),('out',60,OS),('dbg',58,96),('wqkv',80,80)])
    ld=Loads(k,59)
    S(k,'s_getreg_b32 s33, hwreg(HW_REG_XCC_ID, 0, 3); s_add_u32 s2, s2, 192; s_and_b32 s2, s2, 255')
    S(k,'s_and_b32 s25, s2, 7; s_lshr_b32 s26, s2, 3; s_and_b32 s27, s26, 3; s_lshl_b32 s20, s25, 2; s_add_u32 s20, s20, s27; s_lshr_b32 s21, s26, 2')
    if MAP2: S(k,'s_lshr_b32 s27, s25, 1; s_lshl_b32 s20, s27, 3; s_and_b32 s27, s26, 7; s_add_u32 s20, s20, s27; s_lshr_b32 s27, s26, 3; s_and_b32 s28, s25, 1; s_mul_i32 s28, s28, 3; s_add_u32 s28, s28, s27; s_cmp_ge_u32 s21, 6; s_cselect_b32 s21, s21, s28')
    S(k,f's_cmp_ge_u32 s21, 6; s_cbranch_scc1 {k.ln("idle")}')
    if STCH:
        S(k,f's_cmp_lg_u32 s3, 3; s_cbranch_scc1 {k.ln("nst")}')
        n=0
        for off in range(STCH,0xEC0000,STCH):
            S(k,f's_mov_b32 s56, {off}; s_load_dword s{64+n%12}, s[6:7], s56'); n+=1
        for off in range(0,1572864,STCH): S(k,f's_mov_b32 s56, {off}; s_load_dword s76, s[60:61], s56')
        k.lab('nst')
    qkv_front(k)
    S(k,f's_and_b32 s27, s21, 1; s_lshl_b32 s28, s47, 1; s_add_u32 s27, s27, s28; s_and_b32 s28, s20, 15; s_lshl_b32 s29, s27, 4; s_add_u32 s29, s29, s28; s_mul_i32 s29, s29, {24*1024}')
    S(k,f's_lshr_b32 s30, s21, 1; s_mul_i32 s31, s30, 0x180000; s_add_u32 s29, s29, s31; s_add_u32 s29, s29, {WS_Q}; s_cmp_eq_u32 s30, 2; s_cbranch_scc1 {k.ln("v")}')
    sv=(list(k.vm),list(k.lg))
    gemm(k,True,epi_list(False)); k.stamp(3); stage_out(k,29,6144,AF); k.e(f's_branch {k.ln("qdone")}')
    k.lab('v'); k.vm,k.lg=sv
    gemm(k,False); k.stamp(3); S(k,'s_nop 0')
    S(k,'s_mul_i32 s56, s3, 3072; s_add_u32 s56, s56, s29; s_add_u32 s57, s56, 12288; s_nop 4')
    for p in range(2):
        for ct in range(3):
            x=ACC+(2*p*3+ct)*4; y=ACC+((2*p+1)*3+ct)*4
            S(k,f'v_cvt_pk_bf16_f32 v{x}, v{x}, v{x+1}; v_cvt_pk_bf16_f32 v{x+1}, v{x+2}, v{x+3}; v_cvt_pk_bf16_f32 v{x+2}, v{y}, v{y+1}; v_cvt_pk_bf16_f32 v{x+3}, v{y+2}, v{y+3}')
            k.e(f'buffer_store_dwordx4 {v(x,4)}, v4, {W}, s{56+p} offen offset:{ct*1024} sc1')
    k.lab('qdone'); publish(k,0,20,21,'q'); k.e(f's_branch {k.ln("attn")}')
    k.lab('idle')
    S(k,'s_sub_u32 s30, s2, 192'); helper(k); k.stamp(2); k.stamp(3)
    k.e('s_waitcnt vmcnt(0)'); k.vm=[]
    k.lab('attn'); roles(k)
    S(k,'s_and_b32 s27, s26, 3; s_lshl_b32 s20, s25, 2; s_add_u32 s20, s20, s27; s_lshr_b32 s21, s26, 2')
    S(k,'s_lshr_b32 s22, s20, 4; s_lshl_b32 s22, s22, 1; s_lshr_b32 s27, s21, 2; s_add_u32 s22, s22, s27; s_and_b32 s23, s21, 3; s_and_b32 s24, s20, 15')
    S(k,'s_and_b32 s27, s21, 1; s_lshl_b32 s36, s20, 1; s_add_u32 s36, s36, s27; s_lshr_b32 s37, s21, 1')
    S(k,f's_lshl_b32 s28, s21, 2; s_add_u32 s28, s28, s3; s_mul_i32 s28, s28, {36*1024}; s_add_u32 s38, s28, {WS_W1}')
    S(k,f's_mul_i32 s39, s21, {3*48*1024}; s_mul_i32 s29, s3, 12288; s_add_u32 s39, s39, s29; s_add_u32 s39, s39, {WS_W2}')
    S(k,f's_mul_i32 s35, s37, {6*12288}; s_mul_i32 s29, s3, 3072; s_add_u32 s35, s35, s29; s_add_u32 s35, s35, {WS_WO}')
    k.stamp(4)
    attn_phase(k,ld)
    wo_phase(k,ld)
    S(k,f's_mul_i32 s46, s20, {64*768}; s_add_u32 s46, s46, {WS_X1}; s_lshr_b32 s47, s20, 4; s_mul_i32 s48, s47, 9216; s_add_u32 s48, s48, {1152*4}')
    S(k,f's_mul_i32 s29, s20, {4*48*1024}; s_mul_i32 s30, s21, 6144; s_add_u32 s30, s29, s30; s_add_u32 s30, s30, {WS_G}')
    ln2(k)
    c=-2*0.7978845608028654*1.4426950408889634
    S(k,f'v_mov_b32 v{T+12}, {f2(c)}; s_mov_b32 s61, {f2(c*0.044715)}')
    for i in sorted(range(36),key=lambda i:(i%3,i)): ld.add(w2_reg(i),39,((i%3)*48+i//3)*1024,'w2')
    gemm(k,True,epi_list(True),ld); k.stamp(13)
    assert not ld.q
    stage_out(k,30,48*1024,AF,'g')
    publish(k,3,20,21,'f')
    S(k,f's_lshl_b32 s46, s20, 2; s_add_u32 s46, s46, s3; s_mul_i32 s46, s46, {16*768}; s_mul_i32 s25, s21, 1536; s_add_u32 s25, s25, s46; s_add_u32 s25, s25, {WS_X1}; s_mul_i32 s24, s21, 96; s_add_u32 s46, s46, s24')
    if VAR=='B': S(k,'s_mul_i32 s25, s21, 1536; s_add_u32 s25, s25, s34')
    S(k,f's_mul_i32 s26, s47, 9216; s_mul_i32 s27, s21, 192; s_add_u32 s26, s26, s27; s_add_u32 s26, s26, {1920*4}')
    S(k,f's_mul_i32 s28, s3, 12288; s_add_u32 s29, s29, s28; s_add_u32 s29, s29, {WS_G}')
    ld.reset(); poll8(k,3,20,'g'); k.stamp(14)
    for kb in range(12):
        for rt in range(4): ld.add(v(64+((kb%10)*4+rt)*4,4),29,(rt*48+kb)*1024,f'G{kb}',' sc1')
    ld.issue(24)
    for kb in range(12):
        k.wvm(f'G{kb}')
        if kb==0: k.xs('f0')
        for rt in range(4):
            for ct in range(3):
                D=v(16+(rt*3+ct)*4,4)
                k.e(f'v_mfma_f32_16x16x32_bf16 {D}, {w2_reg(kb*3+ct)}, {v(64+((kb%10)*4+rt)*4,4)}, {D if kb else 0}')
            ld.issue(1)
        if kb==6: epi_loads(k,WS,25,26,lambda o,n: a(32+o,n),' sc1')
    k.xs('f1'); k.wvm('epi')
    if WBL2: S(k,f's_or_b32 s56, s21, s3; s_cmp_lg_u32 s56, 0; s_cbranch_scc1 {k.ln("nowb")}; buffer_wbl2 sc1'); k.lab('nowb')
    for i in range(20):
        if i not in (6,7): k.e(f'v_accvgpr_read_b32 v{128+i}, a{32+i}')
    reduce_epi(k,16,OS,46,128,64,'')
    k.xs('f2'); k.end(15)
    k.lab('end'); k.e('s_endpgm')
    L=k.L; b=L.index('  s_cbranch_scc1 mega_kernel_idle'); i=L.index('mega_kernel_idle:'); j=L.index('mega_kernel_attn:')
    assert L[i-1]=='  s_branch mega_kernel_attn'
    k.L=L[:b]+['  s_cbranch_scc0 mega_kernel_qkv']+L[i+1:j]+['  s_branch mega_kernel_attn','mega_kernel_qkv:']+L[b+1:i-1]+L[j:]
    return k
```

```python
from base import *
import struct
f2=lambda x: hex(struct.unpack('<I',struct.pack('<f',x))[0])
WS_FL=0x8000
XS,WS,OS=8,12,16
W='s[12:15]'
def S(k,expr_list):
    for t in expr_list.split(';'):
        t=t.strip()
        if t: k.e(t)
def dual(k,fn,tag,local):
    if not local: fn(' sc1'); return
    S(k,f's_cmp_eq_u32 s63, 1; s_cbranch_scc1 {k.ln("df"+tag)}'); fn(' sc1'); k.e(f's_branch {k.ln("de"+tag)}')
    k.lab('df'+tag); fn(''); k.lab('de'+tag)
def publish(k,phase,s_grp,s_j,tag):
    S(k,f's_lshl_b32 s56, s{s_grp}, 7; s_lshl_b32 s57, s{s_j}, 2; s_add_u32 s56, s56, s57; s_add_u32 s56, s56, {WS_FL+phase*4096}; v_mov_b32 v10, 0; v_mov_b32 v11, 1; s_cmp_lg_u32 s3, 0')
    k.e('s_waitcnt vmcnt(0)'); k.vm=[]; k.e('s_barrier')
    S(k,f's_cbranch_scc1 {k.ln("pub"+tag)}; s_mov_b64 exec, 1')
    dual(k,lambda sc: k.e(f'buffer_store_dword v11, v10, {W}, s56 offen{sc}'),'p'+tag,phase>0)
    k.e('s_mov_b64 exec, -1')
    k.lab('pub'+tag)
def poll(k,phase,tag):
    S(k,f's_mov_b32 s56, {WS_FL+phase*4096}; s_mov_b32 s57, 0x100000')
    k.lab('pl'+tag)
    S(k,f'buffer_load_dword v11, v10, {W}, s56 offen sc1; s_waitcnt vmcnt(0); v_cmp_ne_u32 vcc, 1, v11; s_sub_u32 s57, s57, 1; s_cbranch_scc1 {k.ln("pd"+tag)}; s_cbranch_vccz {k.ln("pd"+tag)}; s_sleep {3 if phase==0 else 1}; s_branch {k.ln("pl"+tag)}')
    k.lab('pd'+tag)
def poll8(k,phase,s_grp,tag):
    if phase==3: S(k,'v_and_b32 v10, 1, v1; s_lshl_b32 s57, s3, 3')
    else: S(k,'v_and_b32 v10, 3, v1; s_lshr_b32 s57, s3, 1; s_lshl_b32 s57, s57, 4')
    S(k,f'v_lshlrev_b32 v10, 2, v10; s_lshl_b32 s58, s{s_grp}, 7; s_add_u32 s58, s58, s57; v_add_u32 v10, s58, v10')
    poll(k,phase,tag)
class Loads:
    def __init__(s,k,sreg): s.k=k; s.q=[]; s.sreg=sreg; s.pool={}
    def add(s,dst,sb,off,tag,fl=' sc1'): s.q.append((dst,sb,off,tag,fl))
    def issue(s,n=999):
        while n and s.q:
            dst,sb,off,tag,fl=s.q.pop(0); n-=1
            key=(sb,off>>12)
            if key not in s.pool:
                if len(s.pool)<16: r=64+len(s.pool)
                else: r=s.pool.pop(next(iter(s.pool)))
                s.pool[key]=r; s.k.e(f's_add_u32 s{r}, s{sb}, {off&~4095}')
            s.k.vmem(f'buffer_load_dwordx4 {dst}, v4, {W}, s{s.pool[key]} offen offset:{off&4095}{fl}',tag)
    def reset(s): s.pool={('x',i):64+i for i in range(16)}
X=16; ACC=64; AF=112; MT=144; T=160
def ln_phase(k,xsrd,xsoff,modoff,fl,ld,pre,per):
    S(k,f's_lshl_b32 s50, s3, 10; s_add_u32 s51, s50, 49152; s_mov_b32 m0, s51; s_add_u32 s50, s50, s{modoff}')
    k.vmem(f'buffer_load_dwordx4 v4, {W}, s50 offen sc1 lds','mod')
    S(k,f'v_mul_u32_u24 v6, 768, v2; v_lshl_add_u32 v6, v3, 4, v6; s_mul_i32 s50, s3, {16*768}; s_add_u32 s50, s50, s{xsoff}; s_add_u32 s51, s50, 4096; s_add_u32 s52, s50, 8192')
    for f in range(12):
        if fl: k.vmem(f'buffer_load_dwordx4 {v(X+4*f,4)}, v4, {W}, s{50+f//4} offen offset:{1024*(f%4)}{fl}','x%d'%f)
        else: k.vmem(f'buffer_load_dwordx4 {v(X+4*f,4)}, v6, s[{xsrd}:{xsrd+3}], s50 offen offset:{64*f}','x%d'%f)
    ld.issue(pre)
    k.e('s_mov_b32 s55, 0x3f803f80')
    for i in range(8): k.e(f'v_mov_b32 v{T+i}, 0')
    S(k,'v_lshlrev_b32 v7, 5, v3; v_add_u32 v7, 49152, v7; s_mul_i32 s50, s3, 12288; v_add_u32 v8, s50, v4')
    for f in range(12):
        if f%4==0: k.wvm('x%d'%(f+3))
        if f==0: k.xs('l1')
        for p in range(4):
            k.e(f'v_dot2c_f32_bf16 v{T+p}, s55, v{X+4*f+p}'); k.e(f'v_dot2c_f32_bf16 v{T+4+p}, v{X+4*f+p}, v{X+4*f+p}')
    k.xs('l2'); k.e('s_barrier')
    def rdmod(f):
        o=MT+(f&1)*16+32
        for q in range(4): k.ds(f'ds_read_b128 {v(o+4*q,4)}, v7 offset:{f*128+(q&1)*16+(q>>1)*1536}',f'm{f}')
    rdmod(0); ld.issue(per); stage_setup(k)
    S(k,f'v_add_f32 v{T}, v{T}, v{T+1}; v_add_f32 v{T+2}, v{T+2}, v{T+3}; v_add_f32 v{T+4}, v{T+4}, v{T+5}; v_add_f32 v{T+6}, v{T+6}, v{T+7}; v_add_f32 v{T}, v{T}, v{T+2}; v_add_f32 v{T+1}, v{T+4}, v{T+6}')
    xred(k,[T,T+1],[T+2,T+3],'v_add_f32')
    S(k,f'v_mul_f32 v{T}, 0x3b2aaaab, v{T}; v_mul_f32 v{T+1}, 0x3b2aaaab, v{T+1}; v_fma_f32 v{T+1}, -v{T}, v{T}, v{T+1}; v_max_f32 v{T+1}, 0, v{T+1}; v_add_f32 v{T+1}, 0x3727c5ac, v{T+1}')
    S(k,f'v_rsq_f32 v{T+2}, v{T+1}; s_nop 0; v_mul_f32 v{T+4}, v{T}, v{T+2}; v_sub_f32 v{T+4}, 0, v{T+4}')
    k.xs('l3')
    for f in range(12):
        if f<11: rdmod(f+1)
        ld.issue(per)
        o=MT+(f&1)*16+32; t=MT+(f&1)*8
        for p in range(4):
            k.e(f'v_lshlrev_b32 v{t+2*p}, 16, v{X+4*f+p}'); k.e(f'v_and_b32 v{t+2*p+1}, 0xffff0000, v{X+4*f+p}')
        for p in range(4): k.e(f'v_pk_fma_f32 {v(t+2*p,2)}, {v(t+2*p,2)}, {v(T+2,2)}, {v(T+4,2)} op_sel_hi:[1,0,0]')
        k.wlg(f'm{f}')
        for p in range(4): k.e(f'v_pk_fma_f32 {v(t+2*p,2)}, {v(t+2*p,2)}, {v(o+8+2*p,2)}, {v(o+2*p,2)}')
        for p in range(4): k.e(f'v_cvt_pk_bf16_f32 v{X+4*f+p}, v{t+2*p}, v{t+2*p+1}')
        k.ds(f'ds_write_b128 v8, {v(X+4*f,4)} offset:{f*1024}','w')
    ld.issue()
    k.e('s_waitcnt lgkmcnt(0)'); k.e('s_barrier'); k.lg=[]
def gemm(k,trans,epi=None,ld=None):
    seq=[(rt,kb) for rt in range(4) for kb in range(12)]
    def rd(n):
        rt,kb=seq[n]; k.ds(f'ds_read_b128 {v(AF+(n%8)*4,4)}, v4 offset:{(rt*12+kb)*1024}',f'a{n}')
    for n in range(6): rd(n)
    pend=[]
    for n,(rt,kb) in enumerate(seq):
        if n+6<48: rd(n+6)
        if kb==3 and rt>0 and epi: pend=epi(rt-1); per=-(-len(pend)//27)
        k.wlg(f'a{n}')
        for ct in range(3):
            A=v(AF+(n%8)*4,4); B=a((kb*3+ct)*4,4); D=v(ACC+(rt*3+ct)*4,4); C=D if kb else '0'
            k.e(f'v_mfma_f32_16x16x32_bf16 {D}, {B}, {A}, {C}' if trans else f'v_mfma_f32_16x16x32_bf16 {D}, {A}, {B}, {C}')
            for _ in range(per if pend else 0):
                if pend:
                    t=pend.pop(0)
                    k.ds(t,'e') if t.startswith('ds_') else k.e(t)
        if ld and n%4!=3: ld.issue(1)
    assert not pend
    k.e('s_nop 7')
    if epi:
        for t in epi(3): k.e(t)
def epi_list(act):
    def f(rt):
        kk=K('tmp',0,0,0,0,0)
        if act:
            x=ACC+rt*12
            for i in range(12): kk.e(f'v_fma_f32 v{x+i}, v{x+i}, v{220+rt}, v{208+i}')
            for op in ('v_mul_f32 v{t}, v{x}, v{x}','v_fma_f32 v{t}, v{t}, s61, v%d'%(T+12),'v_mul_f32 v{t}, v{t}, v{x}','v_exp_f32 v{t}, v{t}','v_add_f32 v{t}, 1.0, v{t}','v_rcp_f32 v{t}, v{t}','v_mul_f32 v{x}, v{x}, v{t}'):
                for i in range(12): kk.e(op.format(t=T+i,x=x+i))
        for ct in range(3): stage_put(kk,ACC+(rt*3+ct)*4,rt,ct)
        return [t.strip() for t in kk.L]
    return f
def gelu4(k,x,t):
    for op in ('v_mul_f32 v{t}, v{x}, v{x}','v_fma_f32 v{t}, v{t}, s61, v%d'%(T+12),'v_mul_f32 v{t}, v{t}, v{x}','v_exp_f32 v{t}, v{t}','v_add_f32 v{t}, 1.0, v{t}','v_rcp_f32 v{t}, v{t}','v_mul_f32 v{x}, v{x}, v{t}'):
        for i in range(4): k.e(op.format(t=t+i,x=x+i))
STG=65536
def stage_setup(k):
    k.e('s_mul_i32 s56, s3, 3')
    for ct in range(3):
        S(k,f's_add_u32 s57, s56, {ct}; s_lshr_b32 s58, s57, 1; s_lshl_b32 s58, s58, 10; s_and_b32 s57, s57, 1; s_lshl_b32 s57, s57, 3; s_add_u32 s58, s58, s57; s_add_u32 s58, s58, {STG}; v_add_u32 v{12+ct}, s58, v4')
    S(k,f's_mul_i32 s58, s3, 6144; s_add_u32 s58, s58, {STG}; v_add_u32 v15, s58, v4')
def stage_put(k,x,rt,ct):
    k.e(f'v_cvt_pk_bf16_f32 v{x}, v{x}, v{x+1}'); k.e(f'v_cvt_pk_bf16_f32 v{x+1}, v{x+2}, v{x+3}')
    k.e(f'ds_write_b64 v{12+ct}, {v(x,2)} offset:{rt*6144}')
def stage_out(k,sbase,rtstride,R,tag=None):
    S(k,f's_mul_i32 s52, s3, {rtstride}; s_add_u32 s52, s52, s{sbase}; s_add_u32 s53, s52, 4096; s_waitcnt lgkmcnt(0); s_barrier')
    for f in range(6): k.e(f'ds_read_b128 {v(R+4*f,4)}, v15 offset:{f*1024}')
    def st(sc):
        for f in range(6):
            k.e(f's_waitcnt lgkmcnt({5-f})')
            k.e(f'buffer_store_dwordx4 {v(R+4*f,4)}, v4, {W}, s{52+f//4} offen offset:{(f%4)*1024}{sc}')
    dual(k,st,'s%s'%tag,tag is not None)
def epi_half(k,sbase,rtstride,act,tag=None):
    for rt in range(4):
        for ct in range(3):
            x=ACC+(rt*3+ct)*4
            if act: gelu4(k,x,T+(ct&1)*4)
            stage_put(k,x,rt,ct)
    if act: k.xs('g1')
    stage_out(k,sbase,rtstride,AF,tag)
    if act: k.xs('g2')
def epi_loads(k,rsrd,s_res,s_gate,dst,fl):
    S(k,'v_mul_u32_u24 v6, 768, v2; v_lshl_add_u32 v6, v3, 3, v6; v_lshlrev_b32 v7, 4, v3')
    S(k,'v_lshrrev_b32 v12, 1, v3; v_lshlrev_b32 v12, 8, v12; v_lshl_add_u32 v12, v2, 4, v12; v_and_b32 v13, 1, v3; v_lshl_add_u32 v12, v13, 3, v12')
    for i in range(3): k.vmem(f'buffer_load_dwordx2 {dst(2*i,2)}, v12, s[{rsrd}:{rsrd+3}], s{s_res} offen offset:{512*i}{fl}','epi')
    for i in range(3): k.vmem(f'buffer_load_dwordx4 {dst(8+4*i,4)}, v7, {W}, s{s_gate} offen offset:{64*i} sc1','epi')
def reduce_epi(k,AC,osrd,s_out,E,T,sc):
    S(k,'s_mul_i32 s50, s3, 12288; v_add_u32 v8, s50, v4; s_mul_i32 s50, s3, 3072; v_add_u32 v9, s50, v4; s_nop 4')
    for t in range(12): k.e(f'ds_write_b128 v8, {v(AC+4*t,4)} offset:{t*1024}')
    k.e('s_waitcnt lgkmcnt(0)'); k.e('s_barrier')
    for i in range(3):
        for w in range(4): k.e(f'ds_read_b128 {v(T+(i*4+w)*4,4)}, v9 offset:{w*12288+i*1024}')
    for i in range(3):
        b=T+i*16; x=E+2*i; g=E+8+4*i; t=T+48
        S(k,f'v_lshlrev_b32 v{t}, 16, v{x}; v_and_b32 v{t+1}, 0xffff0000, v{x}; v_lshlrev_b32 v{t+2}, 16, v{x+1}; v_and_b32 v{t+3}, 0xffff0000, v{x+1}; s_waitcnt lgkmcnt({8-4*i})')
        for h in range(4): k.e(f'v_add_f32 v{b+h}, v{b+h}, v{b+4+h}'); k.e(f'v_add_f32 v{b+8+h}, v{b+8+h}, v{b+12+h}')
        for h in range(4): k.e(f'v_add_f32 v{b+h}, v{b+h}, v{b+8+h}')
        for h in range(4): k.e(f'v_fma_f32 v{b+h}, v{b+h}, v{g+h}, v{t+h}')
        k.e(f'v_cvt_pk_bf16_f32 v{b}, v{b}, v{b+1}'); k.e(f'v_cvt_pk_bf16_f32 v{b+1}, v{b+2}, v{b+3}')
        k.vmem(f'buffer_store_dwordx2 {v(b,2)}, v6, s[{osrd}:{osrd+3}], s{s_out} offen offset:{32*i}{sc}')
def wo_reg(i): return a(192+4*i,4) if i<16 else v(248+4*(i-16),4)
def w2_reg(i): return a(144+4*i,4) if i<28 else v(224+4*(i-28),4)

D='s[96:99]'
def ticket(k,tag):
    S(k,f's_cmp_lg_u32 s3, 0; s_cbranch_scc1 {k.ln("tk"+tag)}; s_lshl_b32 s56, s33, 2; v_mov_b32 v5, 1; v_mov_b32 v10, 0; s_mov_b64 exec, 1; buffer_atomic_add v5, v10, {D}, s56 offen sc0 sc1; s_mov_b64 exec, -1')
    k.lab('tk'+tag)
def roles(k):
    S(k,f's_cmp_lg_u32 s3, 0; s_cbranch_scc1 {k.ln("r1")}; v_readfirstlane_b32 s26, v5; s_mov_b32 s25, s33; s_mov_b32 s27, 1; s_cmp_lt_u32 s26, 32; s_cbranch_scc1 {k.ln("r0")}')
    S(k,'v_and_b32 v10, 7, v1; v_lshlrev_b32 v10, 2, v10; s_mov_b32 s57, 0x100000')
    k.lab('rl')
    S(k,f'buffer_load_dword v11, v10, {D}, 0 offen sc1; s_waitcnt vmcnt(0); s_mov_b32 s28, 0')
    for x in range(8): S(k,f'v_readlane_b32 s{40+x}, v11, {x}; s_nop 0; s_add_u32 s28, s28, s{40+x}')
    S(k,f's_sub_u32 s57, s57, 1; s_cbranch_scc1 {k.ln("rg")}; s_cmp_lt_u32 s28, 256; s_cbranch_scc1 {k.ln("rl")}')
    k.lab('rg')
    k.e('s_sub_u32 s26, s26, 32')
    for x in range(8): S(k,f's_max_u32 s28, s{40+x}, 32; s_sub_u32 s28, s28, 32; s_cmp_lt_u32 {x}, s33; s_cselect_b32 s28, s28, 0; s_add_u32 s26, s26, s28')
    k.e('s_mov_b32 s27, 0')
    for x in range(8):
        S(k,f's_min_u32 s28, s{40+x}, 32; s_sub_u32 s29, 32, s28; s_mov_b32 s25, {x}; s_cmp_lt_u32 s26, s29; s_cselect_b32 s28, s28, 0; s_cbranch_scc1 {k.ln("rf")}; s_sub_u32 s26, s26, s29')
    k.lab('rf'); S(k,'s_add_u32 s26, s26, s28; s_and_b32 s26, s26, 31')
    k.lab('r0')
    S(k,f'v_mov_b32 v10, s25; v_mov_b32 v11, s26; v_mov_b32 v12, s27; v_mov_b32 v13, {STG+24576}; ds_write_b96 v13, v[10:12]; s_waitcnt lgkmcnt(0)')
    k.lab('r1')
    S(k,f's_barrier; v_mov_b32 v13, {STG+24576}; ds_read_b96 v[10:12], v13; s_waitcnt lgkmcnt(0); v_readfirstlane_b32 s25, v10; v_readfirstlane_b32 s26, v11; v_readfirstlane_b32 s63, v12')
```

```python
from mega import *
from start import *
MAP2=int(os.environ.get('MAP2','1'))
STCH=int(os.environ.get('STCH','0'))<<10
NW2=int(os.environ.get('NW2','0'))
WBL2=int(os.environ.get('WBL2','1'))
def attn_phase(k,ld):
    Sx=16; O=80; QF=128; T=160
    S(k,f's_lshl_b32 s25, s22, 6; s_lshl_b32 s26, s24, 2; s_add_u32 s26, s26, s25; s_add_u32 s26, s26, s3; s_mul_i32 s26, s26, 6144; s_add_u32 s26, s26, {WS_Q}')
    S(k,f's_lshl_b32 s29, s23, 4; s_add_u32 s29, s29, s25; s_lshl_b32 s27, s3, 2; s_add_u32 s29, s29, s27; s_mul_i32 s29, s29, 6144; s_add_u32 s29, s29, {WS_K}')
    S(k,f's_lshl_b32 s34, s22, 5; s_lshl_b32 s27, s23, 3; s_add_u32 s34, s34, s27; s_mul_i32 s34, s34, 12288; s_mul_i32 s27, s3, 3072; s_add_u32 s34, s34, s27; s_add_u32 s34, s34, {WS_V}')
    S(k,'s_lshr_b32 s40, s22, 1; s_lshl_b32 s40, s40, 4; s_and_b32 s41, s22, 1; s_lshl_b32 s42, s23, 2; s_add_u32 s42, s42, s40; s_add_u32 s43, s40, s24')
    S(k,'v_and_b32 v10, 3, v1; '+('v_mov_b32 v11, s3; v_cmp_gt_u32 vcc, 4, v1; s_nop 1; v_cndmask_b32 v10, v10, v11, vcc; ' if PALL else '')+'v_add_u32 v10, s42, v10; v_lshlrev_b32 v10, 7, v10; v_lshrrev_b32 v11, 2, v1; v_lshl_add_u32 v10, v11, 3, v10; s_lshl_b32 s44, s41, 2; s_add_u32 s45, s44, 8; v_add_u32 v10, s45, v10')
    S(k,'s_lshl_b32 s45, s43, 7; s_add_u32 s45, s45, s44; v_mov_b32 v11, s45; v_cmp_gt_u32 vcc, 8, v1; s_nop 1; v_cndmask_b32 v10, v11, v10, vcc')
    S(k,'s_mul_i32 s27, s3, 6144; s_mov_b32 m0, s27; s_add_u32 s28, s26, 4096')
    poll(k,0,'a'); k.stamp(5)
    for i in range(4): k.vmem(f'buffer_load_dwordx4 v4, {W}, s26 offen offset:{i*1024} sc1 lds','q')
    S(k,'s_add_u32 s27, s27, 4096; s_mov_b32 m0, s27; s_nop 0')
    for i in range(2): k.vmem(f'buffer_load_dwordx4 v4, {W}, s28 offen offset:{i*1024} sc1 lds','q')
    k.e('v_mov_b32 v9, 132'); k.vmem('buffer_load_dwordx2 v[6:7], v9, s[96:99], 0 offen sc1','hd')
    for kb,kt in [(2*p+e,r) for p in range(3) for r in range(4) for e in range(2)]: ld.add(a((kb*4+kt)*4,4),29,kt*6144+kb*1024,f'K{kb}',' sc1')
    for j in range(8):
        for i in range(3): ld.add(a(96+(j*3+i)*4,4),34,j*12288+i*1024,f'V{j}',' sc1')
    ld.issue(24)
    k.wvm('q'); k.e('s_barrier')
    def rdq(kb):
        for qt in range(4): k.ds(f'ds_read_b128 {v(QF+(kb&1)*16+4*qt,4)}, v4 offset:{(qt*6+kb)*1024}',f'q{kb}_{qt}')
    rdq(0)
    for kb in range(6):
        if kb<5: rdq(kb+1)
        k.wvm(f'K{kb}')
        for qt in range(4):
            k.wlg(f'q{kb}_{qt}')
            for kt in range(4):
                Dd=v(Sx+(qt*4+kt)*4,4)
                k.e(f'v_mfma_f32_16x16x32_bf16 {Dd}, {a((kb*4+kt)*4,4)}, {v(QF+(kb&1)*16+4*qt,4)}, {Dd if kb else 0}')
            ld.issue(1)
    k.stamp(6)
    k.e('s_mov_b32 s57, 0x100000'); k.lab('hl')
    S(k,f'v_readfirstlane_b32 s56, v6; v_readfirstlane_b32 s58, v7; s_add_u32 s56, s56, s58; s_cmp_eq_u32 s56, 9; s_cbranch_scc1 {k.ln("hk")}; s_sub_u32 s57, s57, 1; s_cbranch_scc1 {k.ln("hk")}; s_sleep 2; buffer_load_dwordx2 v[6:7], v9, s[96:99], 0 offen sc1; s_waitcnt vmcnt(0); s_branch {k.ln("hl")}')
    k.lab('hk')
    S(k,f's_lshr_b32 s56, s20, 4; s_mul_i32 s56, s56, 9216; s_lshl_b32 s57, s3, 10; s_add_u32 s56, s56, s57; s_add_u32 s56, s56, {1152*4}; s_lshr_b32 s58, s20, 4; s_mul_i32 s58, s58, 4608; s_add_u32 s58, s58, {0xC000+2304}; s_cmp_eq_u32 s3, 3; s_cselect_b32 s56, s58, s56; s_add_u32 m0, s57, 92160; s_nop 0')
    k.vmem(f'buffer_load_dwordx4 v4, {W}, s56 offen sc1 lds','mod')
    for ct in range(6):
        for kb in range(3): ld.add(wo_reg(kb*6+ct),35,ct*12288+kb*1024,'wo')
    S(k,'s_lshl_b32 s56, s33, 2; v_mov_b32 v5, 0'); k.vmem(f'buffer_load_dword v5, v5, s[96:99], s56 offen sc1','cnt')
    for ct in range(3):
        for kb in range(8): ld.add(a((kb*3+ct)*4,4),38,(ct*12+kb)*1024,'w1')
    k.e(f's_mov_b32 s40, {f2(192**-0.5*1.4426950408889634)}')
    S(k,'s_lshl_b32 s41, s3, 8; v_lshlrev_b32 v6, 4, v2; v_add_u32 v6, 57344, v6; v_add_u32 v7, s41, v6; s_mul_i32 s42, s3, 8192; s_add_u32 s42, s42, 24576; v_add_u32 v8, s42, v4; s_nop 4')
    for qt in range(4):
        b=Sx+qt*16
        k.e(f'v_max3_f32 v{T+qt}, v{b}, v{b+1}, v{b+2}')
        for i in range(3,15,2): k.e(f'v_max3_f32 v{T+qt}, v{T+qt}, v{b+i}, v{b+i+1}')
        k.e(f'v_max_f32 v{T+qt}, v{T+qt}, v{b+15}')
    xred(k,[T,T+1,T+2,T+3],[T+4,T+5,T+6,T+7],'v_max_f32')
    k.e(f'ds_write_b128 v7, {v(T,4)}'); ld.issue(1); k.e('s_waitcnt lgkmcnt(0)'); k.e('s_barrier')
    for w in range(4): k.e(f'ds_read_b128 {v(T+8+4*w,4)}, v6 offset:{w*256}')
    ld.issue(1)
    for i in range(4): k.e(f'v_mov_b32 v{T+4+i}, 0x3f803f80')
    S(k,'s_lshl_b32 s42, s3, 10; v_add_u32 v9, s42, v4; s_waitcnt lgkmcnt(0)')
    for qt in range(4):
        S(k,f'v_max3_f32 v{T+qt}, v{T+8+qt}, v{T+12+qt}, v{T+16+qt}; v_max_f32 v{T+qt}, v{T+qt}, v{T+20+qt}; v_mul_f32 v{T+qt}, s40, v{T+qt}; v_ceil_f32 v{T+qt}, v{T+qt}')
    for qt in range(4):
        b=Sx+qt*16
        for hh in range(2):
            for i in range(8*hh,8*hh+8): k.e(f'v_fma_f32 v{b+i}, v{b+i}, s40, -v{T+qt}')
            ld.issue(1)
            for i in range(8*hh,8*hh+8): k.e(f'v_exp_f32 v{b+i}, v{b+i}')
            ld.issue(1)
            for i in range(4*hh,4*hh+4): k.e(f'v_cvt_pk_bf16_f32 v{b+i}, v{b+2*i}, v{b+2*i+1}')
            k.e(f'ds_write_b128 v8, {v(b+4*hh,4)} offset:{(hh*4+qt)*1024}')
    k.e('s_waitcnt lgkmcnt(0)'); k.e('s_barrier'); k.lg=[]
    k.stamp(7)
    LA=T+8; PW=T+16
    def rdp(j):
        for qt in range(4): k.ds(f'ds_read_b128 {v(QF+(j&1)*16+4*qt,4)}, v4 offset:{24576+(j*4+qt)*1024}',f'p{j}_{qt}')
        k.ds(f'ds_read_b128 {v(PW+(j&1)*4,4)}, v9 offset:{24576+j*4096}',f'pw{j}')
    rdp(0)
    for j in range(8):
        if j<7: rdp(j+1)
        k.wvm(f'V{j}')
        for qt in range(4):
            k.wlg(f'p{j}_{qt}')
            for i in range(3):
                D=v(O+(qt*3+i)*4,4)
                k.e(f'v_mfma_f32_16x16x32_bf16 {D}, {a(96+(j*3+i)*4,4)}, {v(QF+(j&1)*16+4*qt,4)}, {D if j else 0}')
            ld.issue(1)
        k.wlg(f'pw{j}')
        k.e(f'v_mfma_f32_16x16x32_bf16 {v(LA,4)}, {v(T+4,4)}, {v(PW+(j&1)*4,4)}, {v(LA,4) if j else 0}')
        if j==2:
            S(k,'s_lshr_b32 s26, s22, 1; s_lshl_b32 s26, s26, 6; s_lshl_b32 s27, s24, 2; s_add_u32 s26, s26, s27')
            S(k,f's_lshl_b32 s27, s20, 2; s_add_u32 s27, s27, s23; s_mul_i32 s27, s27, 49152; s_add_u32 s27, s27, {WS_OP}')
            S(k,'s_and_b32 s28, s22, 1; s_mul_i32 s29, s28, 6144; s_add_u32 s32, s29, s27')
            stage_setup(k)
        if j==3:
            k.wvm('cnt'); S(k,'v_readfirstlane_b32 s56, v5; s_cmp_ge_u32 s56, 32; s_cselect_b32 s63, s63, 0')
            k.e(f'v_mov_b32 v{T+12}, v{T}')
            for qt in range(1,4): S(k,f's_cmp_eq_u32 s3, {qt}; s_cselect_b64 vcc, -1, 0; v_cndmask_b32 v{T+12}, v{T+12}, v{T+qt}, vcc')
            S(k,f's_lshl_b32 s27, s23, 1; s_add_u32 s27, s27, s28; s_lshl_b32 s27, s27, 14; s_add_u32 s26, s26, s3; s_lshl_b32 s26, s26, 7; s_add_u32 s27, s27, s26; s_add_u32 s27, s27, {WS_ML}; v_lshlrev_b32 v10, 3, v1')
    assert not ld.q
    k.e('s_nop 4'); k.stamp(8)
    for qt in range(4):
        for i in range(3): stage_put(k,O+(qt*3+i)*4,qt,i)
    S(k,f'v_mov_b32 v{T+13}, v{LA}; s_mov_b64 exec, 0xffff')
    dual(k,lambda sc: k.e(f'buffer_store_dwordx2 {v(T+12,2)}, v10, {W}, s27 offen{sc}'),'ml',bool(OPL))
    k.e('s_mov_b64 exec, -1')
    stage_out(k,32,12288,QF,'a' if OPL else None)
    S(k,'s_lshl_b32 s44, s28, 2; s_add_u32 s44, s44, s23')
    publish(k,1,43,44,'a')
def wo_phase(k,ld):
    X1A=f's_add_u32 s25, s25, s47; s_add_u32 s25, s25, {WS_X1}'
    if VAR=='B':
        S(k,f's_lshr_b32 s34, s20, 4; s_lshl_b32 s34, s34, 5; s_and_b32 s56, s20, 15; s_add_u32 s34, s34, s56; s_mul_i32 s34, s34, 24576; s_add_u32 s34, s34, {WS_Q}')
        X1A=f's_and_b32 s56, s36, 1; s_mul_i32 s56, s56, {16*24576}; s_add_u32 s25, s25, s56; s_add_u32 s25, s25, s34'
    AC=16; OPR=64; Wt=160; T=184; E=200
    S(k,'s_lshr_b32 s40, s3, 1; s_min_u32 s41, s3, 2; s_mul_i32 s48, s37, 3; s_add_u32 s48, s48, s41')
    S(k,f's_mul_i32 s47, s36, {32*768}; s_lshl_b32 s25, s48, 10; {X1A}; s_add_u32 s31, s25, 12288; s_lshl_b32 s49, s48, 6; s_add_u32 s47, s47, s49; s_add_u32 s49, s47, 12288')
    S(k,f's_lshr_b32 s26, s36, 5; s_mul_i32 s26, s26, 9216; s_lshl_b32 s27, s48, 7; s_add_u32 s26, s26, s27; s_add_u32 s26, s26, {768*4}')
    S(k,'v_mul_u32_u24 v6, 768, v2; v_lshl_add_u32 v6, v3, 4, v6; v_lshlrev_b32 v7, 5, v3')
    S(k,f's_lshl_b32 s27, s40, 14; s_lshl_b32 s28, s36, 8; s_add_u32 s27, s27, s28; s_add_u32 s27, s27, {WS_ML}; v_lshlrev_b32 v12, 3, v2')
    S(k,f's_mul_i32 s28, s3, 3072; s_mul_i32 s29, s20, 196608; s_add_u32 s29, s29, s28; s_and_b32 s28, s36, 1; s_mul_i32 s28, s28, 24576; s_add_u32 s29, s29, s28; s_add_u32 s29, s29, {WS_OP}; s_lshr_b32 s30, s36, 1')
    ld.reset(); poll8(k,1,30,'w'); k.stamp(9)
    for s in range(4):
        for rt in range(2): k.vmem(f'buffer_load_dwordx2 {v(Wt+(rt*4+s)*2,2)}, v12, {W}, s27 offen offset:{rt*128} sc1','ml')
        k.e('s_add_u32 s27, s27, 32768')
    for kb,rt,s in [(e,r,q) for r in range(2) for q in range(4) for e in range(2)]+[(2,r,q) for r in range(2) for q in range(4)]: ld.add(v(OPR+((kb*2+rt)*4+s)*4,4),29,s*49152+rt*12288+kb*1024,f'o{kb}_{rt}',' sc1')
    ld.issue(16)
    k.xs('w0'); k.wvm('ml'); k.xs('w1')
    for rt in range(2):
        b=Wt+rt*8
        S(k,f'v_max3_f32 v{T}, v{b}, v{b+2}, v{b+4}; v_max_f32 v{T}, v{T}, v{b+6}')
        for s in range(4): k.e(f'v_sub_f32 v{b+2*s}, v{b+2*s}, v{T}')
        for s in range(4): k.e(f'v_exp_f32 v{b+2*s}, v{b+2*s}')
        k.e('s_nop 0')
        S(k,f'v_mul_f32 v{T}, v{b}, v{b+1}; v_mul_f32 v{T+1}, v{b+2}, v{b+3}; v_fmac_f32 v{T}, v{b+4}, v{b+5}; v_fmac_f32 v{T+1}, v{b+6}, v{b+7}; v_add_f32 v{T}, v{T}, v{T+1}; v_rcp_f32 v{T}, v{T}; s_nop 0')
        k.e(f'v_mov_b32 v{176+rt}, v{T}')
        for s in range(4): S(k,f'v_and_b32 v{b+2*s+1}, 0xffff0000, v{b+2*s}; v_lshrrev_b32 v{b+2*s}, 16, v{b+2*s}')
    for kb in range(3):
        for rt in range(2):
            if kb==1 and rt==0:
                assert not ld.q
                k.vmem(f'buffer_load_dwordx4 {v(E,4)}, v6, s[8:11], s47 offen','epi'); k.vmem(f'buffer_load_dwordx4 {v(E+4,4)}, v6, s[8:11], s49 offen','epi')
                k.vmem(f'buffer_load_dwordx4 {v(E+8,4)}, v7, {W}, s26 offen sc1','epi'); k.vmem(f'buffer_load_dwordx4 {v(E+12,4)}, v7, {W}, s26 offen offset:16 sc1','epi')
            if kb==1 and rt==0:
                for ct in range(3):
                    for k2 in range(8,12): ld.add(a((k2*3+ct)*4,4),38,(ct*12+k2)*1024,'w1')
            k.wvm(f'o{kb}_{rt}')
            if rt==0: k.xs('o%d'%kb)
            o=OPR+(kb*2+rt)*16
            for s in range(4):
                for p in range(8):
                    k.e(f'v_dot2_f32_bf16 v{T+p}, v{o+4*s+p//2}, v{Wt+rt*8+2*s+(p&1)}, '+('0' if s==0 else f'v{T+p}'))
                ld.issue(1)
            k.e('s_nop 2')
            for p in range(8): k.e(f'v_mul_f32 v{T+p}, v{T+p}, v{176+rt}')
            for p in range(4): k.e(f'v_cvt_pk_bf16_f32 v{o+p}, v{T+2*p}, v{T+2*p+1}')
            k.e('s_nop 1')
            for ct in range(6):
                D=v(AC+(rt*6+ct)*4,4)
                k.e(f'v_mfma_f32_16x16x32_bf16 {D}, {wo_reg(kb*6+ct)}, {v(o,4)}, {D if kb else 0}')
    k.stamp(10); k.wvm('epi')
    S(k,'s_mul_i32 s50, s3, 12288; v_add_u32 v8, s50, v4; s_lshl_b32 s50, s41, 11; v_lshrrev_b32 v9, 1, v3; v_lshlrev_b32 v9, 10, v9; v_and_b32 v13, 1, v3; v_lshl_add_u32 v9, v13, 9, v9; v_lshl_add_u32 v9, v2, 4, v9; v_add_u32 v9, s50, v9')
    for t in range(12): k.e(f'ds_write_b128 v8, {v(AC+4*t,4)} offset:{t*1024}')
    S(k,f's_waitcnt lgkmcnt(0); s_barrier; s_cmp_eq_u32 s3, 3; s_cbranch_scc1 {k.ln("wo3")}')
    for rt in range(2):
        for w in range(4):
            for e in range(2): k.e(f'ds_read_b128 {v(64+rt*32+w*8+e*4,4)}, v9 offset:{w*12288+rt*6144+e*256}')
    for rt in range(2):
        b=64+rt*32; t=128
        for p in range(4): S(k,f'v_lshlrev_b32 v{t+2*p}, 16, v{E+4*rt+p}; v_and_b32 v{t+2*p+1}, 0xffff0000, v{E+4*rt+p}')
        k.e(f's_waitcnt lgkmcnt({8-8*rt})')
        for h in range(8): S(k,f'v_add_f32 v{b+h}, v{b+h}, v{b+8+h}; v_add_f32 v{b+16+h}, v{b+16+h}, v{b+24+h}')
        for h in range(8): k.e(f'v_add_f32 v{b+h}, v{b+h}, v{b+16+h}')
        for h in range(8): k.e(f'v_fma_f32 v{b+h}, v{b+h}, v{E+8+h}, v{t+h}')
        for p in range(4): k.e(f'v_cvt_pk_bf16_f32 v{b+p}, v{b+2*p}, v{b+2*p+1}')
        dual(k,lambda sc: k.e(f'buffer_store_dwordx4 {v(b,4)}, v4, {W}, s{31 if rt else 25} offen{sc}'),f'x{rt}',True)
    k.lab('wo3')
    S(k,'s_and_b32 s44, s36, 1; s_lshl_b32 s44, s44, 2; s_add_u32 s44, s44, s37')
    publish(k,2,30,44,'w')
def ln2(k,ld):
    SC=112; BI=208; RS=220; T2=64
    S(k,'v_lshlrev_b32 v7, 5, v3; v_add_u32 v7, 92160, v7; s_mul_i32 s50, s3, 12288; v_add_u32 v8, s50, v4; s_add_u32 s50, s50, s46')
    if VAR=='B': S(k,f's_lshr_b32 s56, s3, 1; s_mul_i32 s56, s56, {16*24576}; s_and_b32 s57, s3, 1; s_mul_i32 s57, s57, 12288; s_add_u32 s56, s56, s57; s_add_u32 s34, s34, s56; s_mov_b32 s50, s34')
    S(k,'s_add_u32 s51, s50, 4096; s_add_u32 s52, s50, 8192')
    poll8(k,2,20,'f'); k.stamp(11)
    for f in range(12): k.vmem(f'buffer_load_dwordx4 {v(X+4*f,4)}, v4, {W}, s{50+f//4} offen offset:{1024*(f%4)} sc1','x%d'%f)
    S(k,f'v_lshlrev_b32 v9, 4, v3; v_add_u32 v9, {92160+3072}, v9')
    for f in range(12): k.e(f'ds_read_b128 {a(144+4*f,4)}, v9 offset:{f*64}')
    for f in range(12):
        for q in range(2): k.e(f'ds_read_b128 {v(SC+8*f+4*q,4)}, v7 offset:{1536+f*128+q*16}')
    stage_setup(k)
    S(k,'s_mov_b32 s55, 0x3f803f80; v_mov_b32 v5, 0x3f80; v_mov_b32 v6, 0x3f800000; s_lshl_b32 s56, s3, 6; s_add_u32 s56, s56, 53248; v_lshlrev_b32 v9, 2, v2; v_add_u32 v7, s56, v9; v_add_u32 v9, 53248, v9')
    for i in range(8): k.e(f'v_mov_b32 v{T2+i}, 0')
    k.e('s_waitcnt lgkmcnt(0)')
    ld.issue(NW2)
    for f in range(12):
        if f%2==0: k.wvm('x%d'%(f+1))
        for p in range(4): k.e(f'v_dot2c_f32_bf16 v{T2+p}, s55, v{X+4*f+p}'); k.e(f'v_dot2c_f32_bf16 v{T2+4+p}, v{X+4*f+p}, v{X+4*f+p}')
    t=T2
    S(k,f's_nop 2; v_add_f32 v{t}, v{t}, v{t+1}; v_add_f32 v{t+2}, v{t+2}, v{t+3}; v_add_f32 v{t+4}, v{t+4}, v{t+5}; v_add_f32 v{t+6}, v{t+6}, v{t+7}; v_add_f32 v{t}, v{t}, v{t+2}; v_add_f32 v{t+1}, v{t+4}, v{t+6}')
    xred(k,[t,t+1],[t+2,t+3],'v_add_f32')
    S(k,f'v_mul_f32 v{t}, 0xbb2aaaab, v{t}; v_mul_f32 v{t+1}, 0x3b2aaaab, v{t+1}; v_fma_f32 v{t+1}, -v{t}, v{t}, v{t+1}; v_max_f32 v{t+1}, 0, v{t+1}; v_add_f32 v{t+1}, 0x3727c5ac, v{t+1}; v_rsq_f32 v{t+2}, v{t+1}')
    def ctr(f):
        for p in range(8): k.e(f'v_dot2_f32_bf16 v{T2+8+(f&1)*8+p}, v{X+4*f+p//2}, v{5+(p&1)}, v{t}')
    ctr(0); k.e(f'ds_write_b32 v7, v{t+2}')
    for f in range(12):
        if f<11: ctr(f+1)
        else: k.e('s_nop 2')
        c=T2+8+(f&1)*8
        k.e(f'v_mfma_f32_16x16x32_bf16 {v(BI+4*0,4)}, {a((f*3+0)*4,4)}, {a(144+4*f,4)}, {v(BI+4*0,4) if f else 0}')
        for p in range(8): k.e(f'v_mul_f32 v{c+p}, v{c+p}, v{SC+8*f+p}')
        k.e(f'v_mfma_f32_16x16x32_bf16 {v(BI+4*1,4)}, {a((f*3+1)*4,4)}, {a(144+4*f,4)}, {v(BI+4*1,4) if f else 0}')
        for p in range(4): k.e(f'v_cvt_pk_bf16_f32 v{X+4*f+p}, v{c+2*p}, v{c+2*p+1}')
        k.e(f'v_mfma_f32_16x16x32_bf16 {v(BI+4*2,4)}, {a((f*3+2)*4,4)}, {a(144+4*f,4)}, {v(BI+4*2,4) if f else 0}')
        k.e(f'ds_write_b128 v8, {v(X+4*f,4)} offset:{f*1024}')
    S(k,'s_waitcnt lgkmcnt(0); s_barrier'); k.lg=[]
    for rt in range(4): k.ds(f'ds_read_b32 v{RS+rt}, v9 offset:{64*rt}','rs')
    k.stamp(12)
def k_mega():
    k=K('mega_kernel',256,256,152064,256,256)
    S(k,f's_load_dwordx2 s[84:85], s[0:1], {KA["wo"]}; s_load_dwordx4 s[88:91], s[0:1], {KA["w1"]}; s_load_dwordx2 s[36:37], s[0:1], {KA["c"]}; s_load_dwordx2 s[92:93], s[0:1], {KA["wmod"]}')
    S(k,f's_cmp_ge_u32 s2, 256; s_cbranch_scc1 {k.ln("end")}; v_cmp_gt_u32 vcc, 16, v0; s_getpc_b64 s[40:41]')
    k.lab('pc')
    S(k,f's_and_saveexec_b64 s[44:45], vcc; s_cbranch_execz {k.ln("nocode")}; s_lshr_b32 s42, s2, 3; s_lshl_b32 s42, s42, 7; v_lshlrev_b32 v10, 12, v0; v_add_u32 v10, s42, v10; v_min_u32 v10, {k.ln("end")}-{k.ln("pc")}, v10; v_mov_b32 v11, s41; v_add_co_u32 v10, vcc, s40, v10; s_nop 1; v_addc_co_u32 v11, vcc, 0, v11, vcc; global_load_dword v243, v[10:11], off')
    k.lab('nocode'); k.e('s_mov_b64 exec, s[44:45]')
    prologue(k,256,[('x',4,XS),('ws',6,WS),('out',60,OS),('dbg',58,96),('wqkv',80,80)])
    ld=Loads(k,59)
    S(k,'s_getreg_b32 s33, hwreg(HW_REG_XCC_ID, 0, 3); s_add_u32 s2, s2, 192; s_and_b32 s2, s2, 255')
    S(k,'s_and_b32 s25, s2, 7; s_lshr_b32 s26, s2, 3; s_and_b32 s27, s26, 3; s_lshl_b32 s20, s25, 2; s_add_u32 s20, s20, s27; s_lshr_b32 s21, s26, 2')
    if MAP2: S(k,'s_lshr_b32 s27, s25, 1; s_lshl_b32 s20, s27, 3; s_and_b32 s27, s26, 7; s_add_u32 s20, s20, s27; s_lshr_b32 s27, s26, 3; s_and_b32 s28, s25, 1; s_mul_i32 s28, s28, 3; s_add_u32 s28, s28, s27; s_cmp_ge_u32 s21, 6; s_cselect_b32 s21, s21, s28')
    S(k,f's_cmp_ge_u32 s21, 6; s_cbranch_scc1 {k.ln("idle")}')
    if STCH:
        S(k,f's_cmp_lg_u32 s3, 3; s_cbranch_scc1 {k.ln("nst")}')
        n=0
        for off in range(STCH,0xEC0000,STCH):
            S(k,f's_mov_b32 s56, {off}; s_load_dword s{64+n%12}, s[6:7], s56'); n+=1
        for off in range(0,1572864,STCH): S(k,f's_mov_b32 s56, {off}; s_load_dword s76, s[60:61], s56')
        k.lab('nst')
    qkv_front(k)
    S(k,f's_and_b32 s27, s21, 1; s_lshl_b32 s28, s47, 1; s_add_u32 s27, s27, s28; s_and_b32 s28, s20, 15; s_lshl_b32 s29, s27, 4; s_add_u32 s29, s29, s28; s_mul_i32 s29, s29, {24*1024}')
    S(k,f's_lshr_b32 s30, s21, 1; s_mul_i32 s31, s30, 0x180000; s_add_u32 s29, s29, s31; s_add_u32 s29, s29, {WS_Q}; s_cmp_eq_u32 s30, 2; s_cbranch_scc1 {k.ln("v")}')
    sv=(list(k.vm),list(k.lg))
    gemm(k,True,epi_list(False)); k.stamp(3); stage_out(k,29,6144,AF); k.e(f's_branch {k.ln("qdone")}')
    k.lab('v'); k.vm,k.lg=sv
    gemm(k,False); k.stamp(3); S(k,'s_nop 0')
    S(k,'s_mul_i32 s56, s3, 3072; s_add_u32 s56, s56, s29; s_add_u32 s57, s56, 12288; s_nop 4')
    for p in range(2):
        for ct in range(3):
            x=ACC+(2*p*3+ct)*4; y=ACC+((2*p+1)*3+ct)*4
            S(k,f'v_cvt_pk_bf16_f32 v{x}, v{x}, v{x+1}; v_cvt_pk_bf16_f32 v{x+1}, v{x+2}, v{x+3}; v_cvt_pk_bf16_f32 v{x+2}, v{y}, v{y+1}; v_cvt_pk_bf16_f32 v{x+3}, v{y+2}, v{y+3}')
            k.e(f'buffer_store_dwordx4 {v(x,4)}, v4, {W}, s{56+p} offen offset:{ct*1024} sc1')
    k.lab('qdone'); publish(k,0,20,21,'q'); k.e(f's_branch {k.ln("attn")}')
    k.lab('idle')
    S(k,'s_sub_u32 s30, s2, 192'); helper(k); k.stamp(2); k.stamp(3)
    k.e('s_waitcnt vmcnt(0)'); k.vm=[]
    k.lab('attn'); roles(k)
    S(k,'s_and_b32 s27, s26, 3; s_lshl_b32 s20, s25, 2; s_add_u32 s20, s20, s27; s_lshr_b32 s21, s26, 2')
    S(k,'s_lshr_b32 s22, s20, 4; s_lshl_b32 s22, s22, 1; s_lshr_b32 s27, s21, 2; s_add_u32 s22, s22, s27; s_and_b32 s23, s21, 3; s_and_b32 s24, s20, 15')
    S(k,'s_and_b32 s27, s21, 1; s_lshl_b32 s36, s20, 1; s_add_u32 s36, s36, s27; s_lshr_b32 s37, s21, 1')
    S(k,f's_lshl_b32 s28, s21, 2; s_add_u32 s28, s28, s3; s_mul_i32 s28, s28, {36*1024}; s_add_u32 s38, s28, {WS_W1}')
    S(k,f's_mul_i32 s39, s21, {3*48*1024}; s_mul_i32 s29, s3, 12288; s_add_u32 s39, s39, s29; s_add_u32 s39, s39, {WS_W2}')
    S(k,f's_mul_i32 s35, s37, {6*12288}; s_mul_i32 s29, s3, 3072; s_add_u32 s35, s35, s29; s_add_u32 s35, s35, {WS_WO}')
    k.stamp(4)
    attn_phase(k,ld)
    wo_phase(k,ld)
    S(k,f's_mul_i32 s46, s20, {64*768}; s_add_u32 s46, s46, {WS_X1}; s_lshr_b32 s47, s20, 4; s_mul_i32 s48, s47, 9216; s_add_u32 s48, s48, {1152*4}')
    S(k,f's_mul_i32 s29, s20, {4*48*1024}; s_mul_i32 s30, s21, 6144; s_add_u32 s30, s29, s30; s_add_u32 s30, s30, {WS_G}')
    for i in sorted(range(36),key=lambda i:(i<12,i%3,i)): ld.add(w2_reg(i),39,((i%3)*48+i//3)*1024,'w2')
    ln2(k,ld)
    c=-2*0.7978845608028654*1.4426950408889634
    S(k,f'v_mov_b32 v{T+12}, {f2(c)}; s_mov_b32 s61, {f2(c*0.044715)}')
    gemm(k,True,epi_list(True),ld); k.stamp(13)
    assert not ld.q
    stage_out(k,30,48*1024,AF,'g')
    publish(k,3,20,21,'f')
    S(k,f's_lshl_b32 s46, s20, 2; s_add_u32 s46, s46, s3; s_mul_i32 s46, s46, {16*768}; s_mul_i32 s25, s21, 1536; s_add_u32 s25, s25, s46; s_add_u32 s25, s25, {WS_X1}; s_mul_i32 s24, s21, 96; s_add_u32 s46, s46, s24')
    if VAR=='B': S(k,'s_mul_i32 s25, s21, 1536; s_add_u32 s25, s25, s34')
    S(k,f's_mul_i32 s26, s47, 9216; s_mul_i32 s27, s21, 192; s_add_u32 s26, s26, s27; s_add_u32 s26, s26, {1920*4}')
    S(k,f's_mul_i32 s28, s3, 12288; s_add_u32 s29, s29, s28; s_add_u32 s29, s29, {WS_G}')
    ld.reset(); poll8(k,3,20,'g'); k.stamp(14)
    for kb,rt in [(2*p+e,r) for p in range(6) for r in range(4) for e in range(2)]: ld.add(v(64+((kb%10)*4+rt)*4,4),29,(rt*48+kb)*1024,f'G{kb}',' sc1')
    ld.issue(24)
    for kb in range(12):
        k.wvm(f'G{kb}')
        if kb==0: k.xs('f0')
        for rt in range(4):
            for ct in range(3):
                D=v(16+(rt*3+ct)*4,4)
                k.e(f'v_mfma_f32_16x16x32_bf16 {D}, {w2_reg(kb*3+ct)}, {v(64+((kb%10)*4+rt)*4,4)}, {D if kb else 0}')
            ld.issue(1)
        if kb==6:
            epi_loads(k,WS,25,26,lambda o,n: a(32+o,n),' sc1')
    k.xs('f1'); k.wvm('epi')
    S(k,f's_or_b32 s56, s21, s3; s_cmp_lg_u32 s56, 0; s_cbranch_scc1 {k.ln("nowb")}; buffer_wbl2 sc1'); k.lab('nowb')
    for i in range(20):
        if i not in (6,7): k.e(f'v_accvgpr_read_b32 v{128+i}, a{32+i}')
    reduce_epi(k,16,OS,46,128,64,'')
    k.xs('f2'); k.end(15)
    k.lab('end'); k.e('s_endpgm')
    L=k.L; b=L.index('  s_cbranch_scc1 mega_kernel_idle'); i=L.index('mega_kernel_idle:'); j=L.index('mega_kernel_attn:')
    assert L[i-1]=='  s_branch mega_kernel_attn'
    k.L=L[:b]+['  s_cbranch_scc0 mega_kernel_qkv']+L[i+1:j]+['  s_branch mega_kernel_attn','mega_kernel_qkv:']+L[b+1:i-1]+L[j:]
    return k
```

```python
from base import *
import struct
f2=lambda x: hex(struct.unpack('<I',struct.pack('<f',x))[0])
WS_FL=0x8000
PALL=int(os.environ.get('PALL','1'))
XS,WS,OS=8,12,16
W='s[12:15]'
def S(k,expr_list):
    for t in expr_list.split(';'):
        t=t.strip()
        if t: k.e(t)
def dual(k,fn,tag,local):
    if not local: fn(' sc1'); return
    S(k,f's_cmp_eq_u32 s63, 1; s_cbranch_scc1 {k.ln("df"+tag)}'); fn(' sc1'); k.e(f's_branch {k.ln("de"+tag)}')
    k.lab('df'+tag); fn(''); k.lab('de'+tag)
def publish(k,phase,s_grp,s_j,tag):
    S(k,f's_lshl_b32 s56, s{s_grp}, {7 if phase else 10}; s_lshl_b32 s57, s{s_j}, {2 if phase else 7}; s_add_u32 s56, s56, s57; s_add_u32 s56, s56, {WS_FL+phase*4096 if phase else WS_X1}; v_mov_b32 v10, 0; v_mov_b32 v11, 1; s_cmp_lg_u32 s3, 0')
    k.e('s_waitcnt vmcnt(0)'); k.vm=[]; k.e('s_barrier')
    S(k,f's_cbranch_scc1 {k.ln("pub"+tag)}; s_mov_b64 exec, 1')
    dual(k,lambda sc: k.e(f'buffer_store_dword v11, v10, {W}, s56 offen{sc}'),'p'+tag,phase>0)
    k.e('s_mov_b64 exec, -1')
    k.lab('pub'+tag)
def poll(k,phase,tag):
    if phase==0 and not PALL: S(k,f's_cmp_lg_u32 s3, 0; s_cbranch_scc1 {k.ln("pd"+tag)}')
    if phase==0: S(k,'v_and_b32 v11, 31, v10; v_lshrrev_b32 v10, 7, v10; v_lshlrev_b32 v10, 10, v10; v_lshl_add_u32 v10, v11, 5, v10')
    S(k,f's_mov_b32 s56, {WS_FL+phase*4096 if phase else WS_X1}; s_mov_b32 s57, 0x100000')
    k.lab('pl'+tag)
    S(k,f'buffer_load_dword v11, v10, {W}, s56 offen sc1; s_waitcnt vmcnt(0); v_cmp_ne_u32 vcc, 1, v11; s_sub_u32 s57, s57, 1; s_cbranch_scc1 {k.ln("pd"+tag)}; s_cbranch_vccz {k.ln("pd"+tag)}; s_sleep {2 if phase==0 else 1}; s_branch {k.ln("pl"+tag)}')
    k.lab('pd'+tag)
    if phase==0 and not PALL: k.e('s_barrier')
def poll8(k,phase,s_grp,tag):
    if phase==3: S(k,'v_and_b32 v10, 1, v1; s_lshl_b32 s57, s3, 3')
    else: S(k,'v_and_b32 v10, 3, v1; s_lshr_b32 s57, s3, 1; s_lshl_b32 s57, s57, 4')
    S(k,f'v_lshlrev_b32 v10, 2, v10; s_lshl_b32 s58, s{s_grp}, 7; s_add_u32 s58, s58, s57; v_add_u32 v10, s58, v10')
    poll(k,phase,tag)
class Loads:
    def __init__(s,k,sreg): s.k=k; s.q=[]; s.sreg=sreg; s.pool={}
    def add(s,dst,sb,off,tag,fl=' sc1'): s.q.append((dst,sb,off,tag,fl))
    def issue(s,n=999):
        while n and s.q:
            dst,sb,off,tag,fl=s.q.pop(0); n-=1
            key=(sb,off>>12)
            if key not in s.pool:
                if len(s.pool)<16: r=64+len(s.pool)
                else: r=s.pool.pop(next(iter(s.pool)))
                s.pool[key]=r; s.k.e(f's_add_u32 s{r}, s{sb}, {off&~4095}')
            s.k.vmem(f'buffer_load_dwordx4 {dst}, v4, {W}, s{s.pool[key]} offen offset:{off&4095}{fl}',tag)
    def reset(s): s.pool={('x',i):64+i for i in range(16)}
X=16; ACC=64; AF=112; MT=144; T=160
def ln_phase(k,xsrd,xsoff,modoff,fl,ld,pre,per):
    S(k,f's_lshl_b32 s50, s3, 10; s_add_u32 s51, s50, 49152; s_mov_b32 m0, s51; s_add_u32 s50, s50, s{modoff}')
    k.vmem(f'buffer_load_dwordx4 v4, {W}, s50 offen sc1 lds','mod')
    S(k,f'v_mul_u32_u24 v6, 768, v2; v_lshl_add_u32 v6, v3, 4, v6; s_mul_i32 s50, s3, {16*768}; s_add_u32 s50, s50, s{xsoff}; s_add_u32 s51, s50, 4096; s_add_u32 s52, s50, 8192')
    for f in range(12):
        if fl: k.vmem(f'buffer_load_dwordx4 {v(X+4*f,4)}, v4, {W}, s{50+f//4} offen offset:{1024*(f%4)}{fl}','x%d'%f)
        else: k.vmem(f'buffer_load_dwordx4 {v(X+4*f,4)}, v6, s[{xsrd}:{xsrd+3}], s50 offen offset:{64*f}','x%d'%f)
    ld.issue(pre)
    k.e('s_mov_b32 s55, 0x3f803f80')
    for i in range(8): k.e(f'v_mov_b32 v{T+i}, 0')
    S(k,'v_lshlrev_b32 v7, 5, v3; v_add_u32 v7, 49152, v7; s_mul_i32 s50, s3, 12288; v_add_u32 v8, s50, v4')
    for f in range(12):
        if f%4==0: k.wvm('x%d'%(f+3))
        if f==0: k.xs('l1')
        for p in range(4):
            k.e(f'v_dot2c_f32_bf16 v{T+p}, s55, v{X+4*f+p}'); k.e(f'v_dot2c_f32_bf16 v{T+4+p}, v{X+4*f+p}, v{X+4*f+p}')
    k.xs('l2'); k.e('s_barrier')
    def rdmod(f):
        o=MT+(f&1)*16+32
        for q in range(4): k.ds(f'ds_read_b128 {v(o+4*q,4)}, v7 offset:{f*128+(q&1)*16+(q>>1)*1536}',f'm{f}')
    rdmod(0); ld.issue(per); stage_setup(k)
    S(k,f'v_add_f32 v{T}, v{T}, v{T+1}; v_add_f32 v{T+2}, v{T+2}, v{T+3}; v_add_f32 v{T+4}, v{T+4}, v{T+5}; v_add_f32 v{T+6}, v{T+6}, v{T+7}; v_add_f32 v{T}, v{T}, v{T+2}; v_add_f32 v{T+1}, v{T+4}, v{T+6}')
    xred(k,[T,T+1],[T+2,T+3],'v_add_f32')
    S(k,f'v_mul_f32 v{T}, 0x3b2aaaab, v{T}; v_mul_f32 v{T+1}, 0x3b2aaaab, v{T+1}; v_fma_f32 v{T+1}, -v{T}, v{T}, v{T+1}; v_max_f32 v{T+1}, 0, v{T+1}; v_add_f32 v{T+1}, 0x3727c5ac, v{T+1}')
    S(k,f'v_rsq_f32 v{T+2}, v{T+1}; s_nop 0; v_mul_f32 v{T+4}, v{T}, v{T+2}; v_sub_f32 v{T+4}, 0, v{T+4}')
    k.xs('l3')
    for f in range(12):
        if f<11: rdmod(f+1)
        ld.issue(per)
        o=MT+(f&1)*16+32; t=MT+(f&1)*8
        for p in range(4):
            k.e(f'v_lshlrev_b32 v{t+2*p}, 16, v{X+4*f+p}'); k.e(f'v_and_b32 v{t+2*p+1}, 0xffff0000, v{X+4*f+p}')
        for p in range(4): k.e(f'v_pk_fma_f32 {v(t+2*p,2)}, {v(t+2*p,2)}, {v(T+2,2)}, {v(T+4,2)} op_sel_hi:[1,0,0]')
        k.wlg(f'm{f}')
        for p in range(4): k.e(f'v_pk_fma_f32 {v(t+2*p,2)}, {v(t+2*p,2)}, {v(o+8+2*p,2)}, {v(o+2*p,2)}')
        for p in range(4): k.e(f'v_cvt_pk_bf16_f32 v{X+4*f+p}, v{t+2*p}, v{t+2*p+1}')
        k.ds(f'ds_write_b128 v8, {v(X+4*f,4)} offset:{f*1024}','w')
    ld.issue()
    k.e('s_waitcnt lgkmcnt(0)'); k.e('s_barrier'); k.lg=[]
def gemm(k,trans,epi=None,ld=None):
    seq=[(rt,kb) for rt in range(4) for kb in range(12)]
    def rd(n):
        rt,kb=seq[n]; k.ds(f'ds_read_b128 {v(AF+(n%8)*4,4)}, v4 offset:{(rt*12+kb)*1024}',f'a{n}')
    for n in range(6): rd(n)
    pend=[]
    for n,(rt,kb) in enumerate(seq):
        if n+6<48: rd(n+6)
        if kb==3 and rt>0 and epi: pend=epi(rt-1); per=-(-len(pend)//27)
        k.wlg(f'a{n}')
        for ct in range(3):
            A=v(AF+(n%8)*4,4); B=a((kb*3+ct)*4,4); D=v(ACC+(rt*3+ct)*4,4); C=D if kb else '0'
            k.e(f'v_mfma_f32_16x16x32_bf16 {D}, {B}, {A}, {C}' if trans else f'v_mfma_f32_16x16x32_bf16 {D}, {A}, {B}, {C}')
            for _ in range(per if pend else 0):
                if pend:
                    t=pend.pop(0)
                    k.ds(t,'e') if t.startswith('ds_') else k.e(t)
        if ld and n%4!=3: ld.issue(1)
    assert not pend
    k.e('s_nop 7')
    if epi:
        for t in epi(3): k.e(t)
def epi_list(act):
    def f(rt):
        kk=K('tmp',0,0,0,0,0)
        if act:
            x=ACC+rt*12
            for i in range(12): kk.e(f'v_fma_f32 v{x+i}, v{x+i}, v{220+rt}, v{208+i}')
            for op in ('v_mul_f32 v{t}, v{x}, v{x}','v_fma_f32 v{t}, v{t}, s61, v%d'%(T+12),'v_mul_f32 v{t}, v{t}, v{x}','v_exp_f32 v{t}, v{t}','v_add_f32 v{t}, 1.0, v{t}','v_rcp_f32 v{t}, v{t}','v_mul_f32 v{x}, v{x}, v{t}'):
                for i in range(12): kk.e(op.format(t=T+i,x=x+i))
        for ct in range(3): stage_put(kk,ACC+(rt*3+ct)*4,rt,ct)
        return [t.strip() for t in kk.L]
    return f
def gelu4(k,x,t):
    for op in ('v_mul_f32 v{t}, v{x}, v{x}','v_fma_f32 v{t}, v{t}, s61, v%d'%(T+12),'v_mul_f32 v{t}, v{t}, v{x}','v_exp_f32 v{t}, v{t}','v_add_f32 v{t}, 1.0, v{t}','v_rcp_f32 v{t}, v{t}','v_mul_f32 v{x}, v{x}, v{t}'):
        for i in range(4): k.e(op.format(t=t+i,x=x+i))
STG=65536
def stage_setup(k):
    k.e('s_mul_i32 s56, s3, 3')
    for ct in range(3):
        S(k,f's_add_u32 s57, s56, {ct}; s_lshr_b32 s58, s57, 1; s_lshl_b32 s58, s58, 10; s_and_b32 s57, s57, 1; s_lshl_b32 s57, s57, 3; s_add_u32 s58, s58, s57; s_add_u32 s58, s58, {STG}; v_add_u32 v{12+ct}, s58, v4')
    S(k,f's_mul_i32 s58, s3, 6144; s_add_u32 s58, s58, {STG}; v_add_u32 v15, s58, v4')
def stage_put(k,x,rt,ct):
    k.e(f'v_cvt_pk_bf16_f32 v{x}, v{x}, v{x+1}'); k.e(f'v_cvt_pk_bf16_f32 v{x+1}, v{x+2}, v{x+3}')
    k.e(f'ds_write_b64 v{12+ct}, {v(x,2)} offset:{rt*6144}')
def stage_out(k,sbase,rtstride,R,tag=None):
    S(k,f's_mul_i32 s52, s3, {rtstride}; s_add_u32 s52, s52, s{sbase}; s_add_u32 s53, s52, 4096; s_waitcnt lgkmcnt(0); s_barrier')
    for f in range(6): k.e(f'ds_read_b128 {v(R+4*f,4)}, v15 offset:{f*1024}')
    def st(sc):
        for f in range(6):
            k.e(f's_waitcnt lgkmcnt({5-f})')
            k.e(f'buffer_store_dwordx4 {v(R+4*f,4)}, v4, {W}, s{52+f//4} offen offset:{(f%4)*1024}{sc}')
    dual(k,st,'s%s'%tag,tag is not None)
def epi_half(k,sbase,rtstride,act,tag=None):
    for rt in range(4):
        for ct in range(3):
            x=ACC+(rt*3+ct)*4
            if act: gelu4(k,x,T+(ct&1)*4)
            stage_put(k,x,rt,ct)
    if act: k.xs('g1')
    stage_out(k,sbase,rtstride,AF,tag)
    if act: k.xs('g2')
def epi_loads(k,rsrd,s_res,s_gate,dst,fl):
    S(k,'v_mul_u32_u24 v6, 768, v2; v_lshl_add_u32 v6, v3, 3, v6; v_lshlrev_b32 v7, 4, v3')
    S(k,'v_lshrrev_b32 v12, 1, v3; v_lshlrev_b32 v12, 8, v12; v_lshl_add_u32 v12, v2, 4, v12; v_and_b32 v13, 1, v3; v_lshl_add_u32 v12, v13, 3, v12')
    for i in range(3): k.vmem(f'buffer_load_dwordx2 {dst(2*i,2)}, v12, s[{rsrd}:{rsrd+3}], s{s_res} offen offset:{512*i}{fl}','epi')
    for i in range(3): k.vmem(f'buffer_load_dwordx4 {dst(8+4*i,4)}, v7, {W}, s{s_gate} offen offset:{64*i} sc1','epi')
def reduce_epi(k,AC,osrd,s_out,E,T,sc):
    S(k,'s_mul_i32 s50, s3, 12288; v_add_u32 v8, s50, v4; s_mul_i32 s50, s3, 3072; v_add_u32 v9, s50, v4; s_nop 4')
    for t in range(12): k.e(f'ds_write_b128 v8, {v(AC+4*t,4)} offset:{t*1024}')
    k.e('s_waitcnt lgkmcnt(0)'); k.e('s_barrier')
    for i in range(3):
        for w in range(4): k.e(f'ds_read_b128 {v(T+(i*4+w)*4,4)}, v9 offset:{w*12288+i*1024}')
    for i in range(3):
        b=T+i*16; x=E+2*i; g=E+8+4*i; t=T+48
        S(k,f'v_lshlrev_b32 v{t}, 16, v{x}; v_and_b32 v{t+1}, 0xffff0000, v{x}; v_lshlrev_b32 v{t+2}, 16, v{x+1}; v_and_b32 v{t+3}, 0xffff0000, v{x+1}; s_waitcnt lgkmcnt({8-4*i})')
        for h in range(4): k.e(f'v_add_f32 v{b+h}, v{b+h}, v{b+4+h}'); k.e(f'v_add_f32 v{b+8+h}, v{b+8+h}, v{b+12+h}')
        for h in range(4): k.e(f'v_add_f32 v{b+h}, v{b+h}, v{b+8+h}')
        for h in range(4): k.e(f'v_fma_f32 v{b+h}, v{b+h}, v{g+h}, v{t+h}')
        k.e(f'v_cvt_pk_bf16_f32 v{b}, v{b}, v{b+1}'); k.e(f'v_cvt_pk_bf16_f32 v{b+1}, v{b+2}, v{b+3}')
        k.vmem(f'buffer_store_dwordx2 {v(b,2)}, v6, s[{osrd}:{osrd+3}], s{s_out} offen offset:{32*i}{sc}')
def wo_reg(i): return a(192+4*i,4) if i<16 else v(248+4*(i-16),4)
def w2_reg(i): return a(144+4*i,4) if i<28 else v(224+4*(i-28),4)

D='s[96:99]'
def ticket(k,tag):
    S(k,f's_cmp_lg_u32 s3, 0; s_cbranch_scc1 {k.ln("tk"+tag)}; s_lshl_b32 s56, s33, 2; v_mov_b32 v5, 1; v_mov_b32 v10, 0; s_mov_b64 exec, 1; buffer_atomic_add v5, v10, {D}, s56 offen sc0 sc1; s_mov_b64 exec, -1')
    k.lab('tk'+tag)
def roles(k):
    S(k,f's_cmp_lg_u32 s3, 0; s_cbranch_scc1 {k.ln("r1")}; v_readfirstlane_b32 s26, v5; s_mov_b32 s25, s33; s_mov_b32 s27, 1; s_cmp_lt_u32 s26, 32; s_cbranch_scc1 {k.ln("r0")}')
    S(k,'v_and_b32 v10, 7, v1; v_lshlrev_b32 v10, 2, v10; s_mov_b32 s57, 0x100000')
    k.lab('rl')
    S(k,f'buffer_load_dword v11, v10, {D}, 0 offen sc1; s_waitcnt vmcnt(0); s_mov_b32 s28, 0')
    for x in range(8): S(k,f'v_readlane_b32 s{40+x}, v11, {x}; s_nop 0; s_add_u32 s28, s28, s{40+x}')
    S(k,f's_sub_u32 s57, s57, 1; s_cbranch_scc1 {k.ln("rg")}; s_cmp_lt_u32 s28, 256; s_cbranch_scc1 {k.ln("rl")}')
    k.lab('rg')
    k.e('s_sub_u32 s26, s26, 32')
    for x in range(8): S(k,f's_max_u32 s28, s{40+x}, 32; s_sub_u32 s28, s28, 32; s_cmp_lt_u32 {x}, s33; s_cselect_b32 s28, s28, 0; s_add_u32 s26, s26, s28')
    k.e('s_mov_b32 s27, 0')
    for x in range(8):
        S(k,f's_min_u32 s28, s{40+x}, 32; s_sub_u32 s29, 32, s28; s_mov_b32 s25, {x}; s_cmp_lt_u32 s26, s29; s_cselect_b32 s28, s28, 0; s_cbranch_scc1 {k.ln("rf")}; s_sub_u32 s26, s26, s29')
    k.lab('rf'); S(k,'s_add_u32 s26, s26, s28; s_and_b32 s26, s26, 31')
    k.lab('r0')
    S(k,f'v_mov_b32 v10, s25; v_mov_b32 v11, s26; v_mov_b32 v12, s27; v_mov_b32 v13, {STG+24576}; ds_write_b96 v13, v[10:12]; s_waitcnt lgkmcnt(0)')
    k.lab('r1')
    S(k,f's_barrier; v_mov_b32 v13, {STG+24576}; ds_read_b96 v[10:12], v13; s_waitcnt lgkmcnt(0); v_readfirstlane_b32 s25, v10; v_readfirstlane_b32 s26, v11; v_readfirstlane_b32 s63, v12')
```

```python
from mega import *
import k_prep as kp
MODL=147968
CTS=12288+16
VAR=os.environ.get('VAR','B'); TCH=int(os.environ.get('TCH','0')); OPL=int(os.environ.get('OPL','0'))
def touch(k):
    if not TCH: return
    S(k,f'v_lshlrev_b32 v10, 18, v1; buffer_load_dword v248, v10, {W}, 0 offen sc1; v_mul_u32_u24 v10, 24576, v1; buffer_load_dword v249, v10, s[8:11], 0 offen')
    if VAR=='B':
        k.e('buffer_load_dword v251, v10, s[16:19], 0 offen sc1'); return
    S(k,f's_lshr_b32 s56, s2, 3; s_lshl_b32 s56, s56, 2; s_add_u32 s56, s56, s3; s_lshl_b32 s57, s33, 7; s_add_u32 s57, s57, s56; s_mul_i32 s58, s57, 6144; s_add_u32 s58, s58, {WS_OP}; v_lshlrev_b32 v6, 7, v1; v_add_u32 v10, s58, v6')
    S(k,f's_mul_i32 s57, s57, 1536; s_add_u32 s58, s57, {WS_X1-48*128}; v_add_u32 v7, s58, v6; v_cmp_gt_u32 vcc, 48, v1; s_lshr_b32 s58, s56, 4; s_lshl_b32 s58, s58, 14; v_cndmask_b32 v10, v7, v10, vcc')
    S(k,f's_and_b32 s56, s56, 15; s_lshl_b32 s56, s56, 7; s_add_u32 s58, s58, s56; s_lshl_b32 s56, s33, 11; s_add_u32 s58, s58, s56; s_add_u32 s58, s58, {WS_ML}; v_mov_b32 v7, s58; v_cmp_gt_u32 vcc, 60, v1; v_min_u32 v6, {11*128}, v6; s_nop 0; v_cndmask_b32 v10, v7, v10, vcc')
    S(k,f'buffer_load_dword v250, v10, {W}, 0 offen sc1; buffer_load_dword v251, v6, s[16:19], s57 offen sc1')
NU=int(os.environ.get('NU','6'))
def prep_params(k,t,B):
    S(k,f's_cmp_lt_u32 s{t}, 180; s_cselect_b32 s{B}, s86, s88; s_cselect_b32 s{B+1}, s87, s89; s_cselect_b32 s{B+5}, 3072, 768; s_cselect_b32 s{B+6}, 0, 1; s_cselect_b32 s{B+7}, {WS_W1}, {WS_W2}'.replace(f's_cselect_b32 s{B+7}, {WS_W1}, {WS_W2}',f's_mov_b32 s56, {WS_W2}; s_cselect_b32 s{B+7}, {WS_W1}, s56').replace(f's_cselect_b32 s{B+5}, 3072, 768',f's_movk_i32 s56, 768; s_cselect_b32 s{B+5}, 3072, s56'))
    S(k,f's_cselect_b32 s57, 12, 48; s_cselect_b32 s58, 19, 21; s_movk_i32 s56, 180; s_cselect_b32 s56, 36, s56; s_mov_b32 s{B+2}, 1179648')
    S(k,f's_cmp_lt_u32 s{t}, 36; s_cselect_b32 s{B}, s84, s{B}; s_cselect_b32 s{B+1}, s85, s{B+1}; s_cselect_b32 s{B+5}, 768, s{B+5}; s_cselect_b32 s{B+6}, 1, s{B+6}; s_cselect_b32 s{B+7}, {WS_WO}, s{B+7}; s_cselect_b32 s56, 0, s56; s_cselect_b32 s{B+2}, 294912, s{B+2}')
    S(k,f's_and_b32 s{B+1}, s{B+1}, 0xffff; s_mov_b32 s{B+3}, 0x20000; s_sub_u32 s56, s{t}, s56; s_mul_i32 s55, s56, 43691; s_lshr_b32 s55, s55, s58; s_mul_i32 s54, s55, s57; s_sub_u32 s56, s56, s54')
    S(k,f's_lshl_b32 s54, s54, 3; s_add_u32 s54, s54, s56; s_lshl_b32 s54, s54, 10; s_add_u32 s{B+7}, s{B+7}, s54; s_lshl_b32 s{B+8}, s57, 10')
    S(k,f's_mul_i32 s{B+4}, s56, s{B+5}; s_lshl_b32 s{B+4}, s{B+4}, 5; s_lshl_b32 s55, s55, 8; s_add_u32 s{B+4}, s{B+4}, s55')
def prep_load(k,B,R,va):
    S(k,f's_sub_u32 s56, 3, s{B+6}; s_lshl_b32 s56, s{B+5}, s56; v_mul_lo_u32 v{va}, v3, s56; v_lshl_add_u32 v{va}, v2, 4, v{va}; s_mul_i32 s57, s{B+6}, 12; s_mul_i32 s57, s57, s{B+5}; s_mov_b32 s58, s{B+4}')
    for j in range(8):
        k.e(f'buffer_load_dwordx4 {v(R+4*j,4)}, v{va}, s[{B}:{B+3}], s58 offen'); k.e(f's_add_u32 s58, s58, s{B+5}')
        if j==3: k.e('s_add_u32 s58, s58, s57')
def prep_store(k,B,R,O):
    S(k,'v_lshrrev_b32 v7, 1, v2; v_mul_u32_u24 v7, 1040, v7; v_lshl_add_u32 v7, v3, 8, v7; v_and_b32 v8, 1, v2; v_lshl_add_u32 v7, v8, 7, v7; s_mul_i32 s56, s3, 8320; s_add_u32 s56, s56, 8192; v_add_u32 v7, s56, v7; v_add_u32 v8, s56, v4; s_mov_b32 s47, 0x05040100; s_mov_b32 s48, 0x07060302')
    for f in range(8):
        for p in range(4): k.e(f'v_perm_b32 v{O+4*f+p}, v{R+4*(2*p+1)+(f>>1)}, v{R+4*(2*p)+(f>>1)}, s{48 if f&1 else 47}')
        k.e(f'ds_write_b128 v7, {v(O+4*f,4)} offset:{16*f}')
    k.e('s_waitcnt lgkmcnt(0)')
    for f in range(8): k.e(f'ds_read_b128 {v(R+4*f,4)}, v8 offset:{1040*f}')
    k.e(f's_mov_b32 s56, s{B+7}')
    for f in range(8): S(k,f's_waitcnt lgkmcnt({7-f}); buffer_store_dwordx4 {v(R+4*f,4)}, v4, {W}, s56 offen sc1; s_add_u32 s56, s56, s{B+8}')
def helper(k):
    S(k,'s_mov_b32 s86, s88; s_mov_b32 s87, s89; s_mov_b32 s88, s90; s_mov_b32 s89, s91')
    k.srd(36,36,'c'); k.srd(92,92,'wmod')
    S(k,'s_lshl_b32 s31, s30, 2; s_add_u32 s31, s31, s3; s_add_u32 s32, s31, 128; s_min_u32 s32, s32, 323; s_mov_b32 s34, s30')
    S(k,'v_lshrrev_b32 v15, 5, v1; v_mul_u32_u24 v15, 3072, v15; v_and_b32 v12, 30, v1; v_lshl_add_u32 v15, v12, 2, v15; s_min_u32 s35, s30, 23; s_lshl_b32 s35, s35, 7; s_add_u32 s35, s35, 0x5000')
    k.lab('modl')
    k2=K(k.name,0,0,0,0,0); kp.mod_body(k2,0,36,92,12,' sc1')
    L=[x.replace('s_sub_u32 s40, s2, 0','s_mov_b32 s40, s34') for x in k2.L]
    i=[n for n,x in enumerate(L) if 's_waitcnt vmcnt(5)' in x][0]
    i0=[n for n,x in enumerate(L) if 'v_mov_b32 v64, 0' in x][0]
    k.L+=L[:i0]; prep_params(k,31,68); prep_params(k,32,20)
    def paths(tag,fa,fb,fc):
        S(k,f's_cmp_lt_u32 s34, 24; s_cbranch_scc1 {k.ln("pc"+tag)}; s_cmp_ge_u32 s34, 56; s_cbranch_scc1 {k.ln("pb"+tag)}'); fa(); k.e(f's_branch {k.ln("pe"+tag)}')
        k.lab('pb'+tag); S(k,f's_cmp_ge_u32 s34, 64; s_cbranch_scc1 {k.ln("pc"+tag)}'); fb(); k.e(f's_branch {k.ln("pe"+tag)}')
        k.lab('pc'+tag); fc(); k.lab('pe'+tag)
    def fa(): prep_load(k,68,96,13); prep_load(k,20,128,14); k.e('s_waitcnt vmcnt(22)')
    def fb():
        for q in range(6): S(k,f's_add_u32 s42, s41, {q*64*4608}; buffer_load_dwordx4 {v(96+4*q,4)}, v8, s[92:95], s42 offen offset:512')
        k.e('s_waitcnt vmcnt(12)')
    def fc():
        S(k,f'buffer_load_dwordx2 v[224:225], v15, {W}, s35 offen sc1; s_lshl_b32 s56, s3, 10; v_add_u32 v232, s56, v4; v_mov_b32 v228, 0; v_mov_b32 v229, 0; v_mov_b32 v230, 0; v_mov_b32 v231, 0')
        S(k,f's_mov_b32 s56, {WS_X1}; s_sub_u32 s57, s30, 8; s_cmp_lt_u32 s57, 3; s_cselect_b32 s56, {WS_FL-7*4096}, s56; s_lshl_b32 s57, s30, 12; s_add_u32 s56, s56, s57; buffer_store_dwordx4 v[228:231], v232, {W}, s56 offen sc1; s_waitcnt vmcnt(8)')
    paths('1',fa,fb,fc)
    k.L+=[x for x in L[i0:i] if 's_waitcnt vmcnt' not in x]
    paths('2',lambda: k.e('s_waitcnt vmcnt(16)'),lambda: k.e('s_waitcnt vmcnt(6)'),lambda: k.e('s_waitcnt vmcnt(2)'))
    j=[n for n,x in enumerate(L) if 'moddone:' in x][0]
    M=[x for x in L[i:j] if 's_waitcnt vmcnt' not in x]; bb=M.index('  s_barrier')
    k.L+=M[:bb]; S(k,f's_cmp_ge_u32 s34, 24; s_cbranch_scc1 {k.ln("nzw")}; s_waitcnt vmcnt(0)'); k.lab('nzw'); k.L+=M[bb:]
    S(k,f's_cmp_ge_u32 s34, 24; s_cbranch_scc1 {k.ln("moddone")}; s_nop 1; v_mov_b32_dpp v17, v16 quad_perm:[1,1,3,3] row_mask:0xf bank_mask:0xf; v_lshrrev_b32 v224, 16, v16; v_or_b32 v224, v224, v17; v_add_u32 v225, 1, v225; s_mov_b32 exec_lo, 0x55555555; s_mov_b32 exec_hi, 0x55555555; buffer_store_dwordx2 v[224:225], v15, {W}, s35 offen sc1; s_mov_b64 exec, -1')
    prep_load(k,68,96,13)
    S(k,f's_waitcnt vmcnt(8); v_mov_b32 v10, 0; v_mov_b32 v11, 1; s_mov_b64 exec, 1; buffer_atomic_add v11, v10, {D}, 0 offen offset:64 sc0 sc1; s_waitcnt vmcnt(0); v_readfirstlane_b32 s56, v11; v_mov_b32 v11, 1; s_cmp_lg_u32 s56, 23; s_cbranch_scc1 {k.ln("moddone")}; buffer_store_dword v11, v10, {D}, 0 offen offset:128 sc1')
    k.lab('moddone'); k.e('s_mov_b64 exec, -1'); k.stamp(1)
    S(k,f's_cmp_ge_u32 s34, 64; s_cbranch_scc1 {k.ln("m2")}; s_cmp_lt_u32 s34, 24; s_cselect_b32 s56, s3, 0; s_cmp_eq_u32 s56, 0; s_cbranch_scc1 {k.ln("late")}'); prep_load(k,68,96,13); k.lab('late')
    ticket(k,'i'); touch(k)
    S(k,f's_cmp_ge_u32 s34, 56; s_cbranch_scc1 {k.ln("np2")}; s_waitcnt vmcnt(0)')
    prep_store(k,68,96,160)
    S(k,f's_sub_u32 s56, s31, 96; s_cmp_ge_u32 s56, 100; s_cbranch_scc1 {k.ln("np2")}'); prep_store(k,20,128,192); k.lab('np2')
    S(k,f's_waitcnt vmcnt(0); s_barrier; s_cmp_lg_u32 s3, 0; s_cbranch_scc1 {k.ln("hd")}; v_mov_b32 v10, 0; v_mov_b32 v11, 1; s_mov_b64 exec, 1; buffer_atomic_add v11, v10, {D}, 0 offen offset:68 sc0 sc1; s_waitcnt vmcnt(0); v_readfirstlane_b32 s56, v11; v_mov_b32 v11, 1; s_cmp_lg_u32 s56, 63; s_cbranch_scc1 {k.ln("hd")}; buffer_store_dword v11, v10, {D}, 0 offen offset:132 sc1')
    k.lab('hd'); k.e('s_mov_b64 exec, -1')
    S(k,f's_add_u32 s34, s34, 8; s_cmp_ge_u32 s34, 64; s_cbranch_scc1 {k.ln("modl")}; s_branch {k.ln("m3")}')
    k.lab('m2')
    S(k,f's_cmp_lg_u32 s3, 0; s_cbranch_scc1 {k.ln("m3")}; s_waitcnt vmcnt(0); v_mov_b32 v10, 0; v_mov_b32 v11, 1; s_mov_b64 exec, 1; buffer_atomic_add v11, v10, {D}, 0 offen offset:136 sc1')
    k.lab('m3'); k.e('s_mov_b64 exec, -1')
    dpoll(k,'v_mov_b32 v10, 128',1,'w',False)
def dpoll(k,voff,val,tag,bar=True):
    S(k,f's_cmp_lg_u32 s3, 0; s_cbranch_scc1 {k.ln("dd"+tag)}; {voff}; s_mov_b32 s57, 0x100000')
    k.lab('dl'+tag)
    S(k,f'buffer_load_dword v11, v10, {D}, 0 offen sc1; s_waitcnt vmcnt(0); v_cmp_ne_u32 vcc, {val}, v11; s_sub_u32 s57, s57, 1; s_cbranch_scc1 {k.ln("dd"+tag)}; s_cbranch_vccz {k.ln("dd"+tag)}; s_sleep 2; s_branch {k.ln("dl"+tag)}')
    k.lab('dd'+tag)
    if bar: k.e('s_barrier')
def qkv_front(k):
    R=64; PO=208; T=224; XH=64
    S(k,f'v_mul_u32_u24 v6, 768, v2; v_lshl_add_u32 v6, v3, 4, v6; s_mul_i32 s50, s3, {16*768}; s_mul_i32 s46, s20, {64*768}; s_add_u32 s50, s50, s46')
    for f in range(12): k.vmem(f'buffer_load_dwordx4 {v(X+4*f,4)}, v6, s[8:11], s50 offen offset:{64*f}','x%d'%f)
    S(k,'v_lshrrev_b32 v7, 3, v1; v_mul_u32_u24 v8, 2304, v7; v_and_b32 v9, 7, v1; v_and_b32 v7, 2, v7; v_xor_b32 v9, v9, v7; v_xor_b32 v7, 4, v9; v_lshl_add_u32 v12, v9, 4, v8; v_lshl_add_u32 v13, v7, 4, v8')
    S(k,f's_mul_i32 s51, s3, {96*2304}; s_mul_i32 s52, s21, 384; s_add_u32 s51, s51, s52; s_mul_i32 s52, s3, 12288; s_mov_b32 s55, 0x3f803f80')
    S(k,'s_mul_i32 s60, s33, 3; s_lshr_b32 s60, s60, 2; s_lshl_b32 s60, s60, 1')
    def ldu(n):
        S(k,f's_lshl_b32 s44, s60, 10; s_add_u32 s44, s44, s52; s_mul_i32 s45, s60, {8*2304}; s_add_u32 s45, s45, s51; s_add_u32 s60, s60, 1; s_cmp_eq_u32 s60, 12; s_cselect_b32 s60, 0, s60')
        for cg in range(3):
            S(k,f's_add_u32 m0, s44, {cg*49152}; s_add_u32 s59, s45, {cg*128}'); k.vmem(f'buffer_load_dwordx4 v{12+(n&1)}, s[80:83], s59 offen lds','u')
    S(k,f's_lshr_b32 s53, s20, 4; s_mul_i32 s53, s53, 3072; s_min_u32 s54, s3, 2; s_lshl_b32 s54, s54, 10; s_add_u32 s53, s53, s54; s_add_u32 s53, s53, 0x5000')
    k.vmem(f'buffer_load_dwordx4 v[232:235], v4, {W}, s53 offen sc1','snap')
    for n in range(NU): ldu(n)
    touch(k)
    k.vm+=['t']*((3 if VAR=='B' else 4) if TCH else 0)
    for i in range(8): k.e(f'v_mov_b32 v{T+i}, 0')
    for f in range(12):
        if f%4==0: k.wvm('x%d'%(f+3))
        for p in range(4): k.e(f'v_dot2c_f32_bf16 v{T+p}, s55, v{X+4*f+p}'); k.e(f'v_dot2c_f32_bf16 v{T+4+p}, v{X+4*f+p}, v{X+4*f+p}')
    S(k,f's_nop 2; v_add_f32 v{T}, v{T}, v{T+1}; v_add_f32 v{T+2}, v{T+2}, v{T+3}; v_add_f32 v{T+4}, v{T+4}, v{T+5}; v_add_f32 v{T+6}, v{T+6}, v{T+7}; v_add_f32 v{T}, v{T}, v{T+2}; v_add_f32 v{T+1}, v{T+4}, v{T+6}')
    xred(k,[T,T+1],[T+2,T+3],'v_add_f32')
    S(k,f'v_mul_f32 v{T}, 0x3b2aaaab, v{T}; v_mul_f32 v{T+1}, 0x3b2aaaab, v{T+1}; v_fma_f32 v{T+1}, -v{T}, v{T}, v{T+1}; v_max_f32 v{T+1}, 0, v{T+1}; v_add_f32 v{T+1}, 0x3727c5ac, v{T+1}')
    S(k,f'v_rsq_f32 v{T+2}, v{T+1}; s_nop 0; v_mul_f32 v{T+4}, v{T}, v{T+2}; v_sub_f32 v{T+4}, 0, v{T+4}')
    def xhat(f):
        for p in range(4): S(k,f'v_lshlrev_b32 v{XH+8*f+2*p}, 16, v{X+4*f+p}; v_and_b32 v{XH+8*f+2*p+1}, 0xffff0000, v{X+4*f+p}')
        for p in range(8): k.e(f'v_fma_f32 v{XH+8*f+p}, v{XH+8*f+p}, v{T+2}, v{T+4}')
    k.stamp(1)
    for n in range(6):
        if NU+n<12: ldu(NU+n)
        xhat(2*n); xhat(2*n+1)
    k.e(f'buffer_load_dwordx4 v[236:239], v4, {W}, s53 offen sc1')
    S(k,'v_bfe_u32 v7, v1, 2, 2; v_lshlrev_b32 v8, 7, v7; v_lshl_add_u32 v8, v3, 10, v8; v_and_b32 v9, 3, v1; v_lshl_add_u32 v8, v9, 3, v8; v_lshrrev_b32 v7, 1, v7; v_and_b32 v9, 1, v3; v_lshl_add_u32 v7, v9, 1, v7; s_mul_i32 s56, s3, 3')
    for ct in range(3): S(k,f's_add_u32 s57, s56, {ct}; s_and_b32 s58, s57, 3; s_lshr_b32 s57, s57, 2; s_mul_i32 s57, s57, 49152; v_xor_b32 v9, s58, v7; v_lshl_add_u32 v9, v9, 5, v8; v_add_u32 v{244+ct}, s57, v9')
    if True:
        if True:
            k.xs('q0'); S(k,'v_mov_b32 v10, 128; s_mov_b32 s57, 0x100000; s_waitcnt vmcnt(0)'); k.xs('q1'); k.e(f's_branch {k.ln("gc")}'); k.lab('gl')
            S(k,f's_sub_u32 s57, s57, 1; s_cbranch_scc1 {k.ln("gd")}; s_mov_b32 s56, 0; s_and_b32 s58, s57, 3; s_cbranch_scc1 {k.ln("gn")}; buffer_load_dword v11, v10, {D}, 0 offen sc1; s_waitcnt vmcnt(0); v_readfirstlane_b32 s56, v11')
            k.lab('gn')
            S(k,f'buffer_load_dwordx4 v[236:239], v4, {W}, s53 offen sc1; s_waitcnt vmcnt(0); s_cmp_eq_u32 s56, 1; s_cbranch_scc1 {k.ln("gd")}')
            k.lab('gc')
            S(k,f'v_cmp_eq_u32 vcc, v233, v237; v_cmp_eq_u32 s[58:59], v235, v239; s_or_b64 vcc, vcc, s[58:59]; s_cbranch_vccnz {k.ln("gl")}')
            k.lab('gd')
            S(k,f'v_lshlrev_b32 v240, 16, v236; v_and_b32 v241, 0xffff0000, v236; v_lshlrev_b32 v242, 16, v238; v_and_b32 v243, 0xffff0000, v238; s_add_u32 s54, s54, {MODL}; v_add_u32 v10, s54, v4; ds_write_b128 v10, v[240:243]')
    ticket(k,'q'); k.stamp(2); k.xs('q2')
    S(k,'s_waitcnt lgkmcnt(0); s_barrier')
    k.vm=[]; k.lg=[]
    S(k,f's_lshr_b32 s47, s20, 4; v_lshlrev_b32 v7, 5, v3; v_add_u32 v7, {MODL}, v7; s_mul_i32 s50, s3, 12288; v_add_u32 v8, s50, v4')
    def rdmod(f):
        for q in range(4): k.ds(f'ds_read_b128 {v(160+(f%3)*16+4*q,4)}, v7 offset:{f*128+(q&1)*16+(q>>1)*1536}',f'm{f}')
    rdmod(0); rdmod(1)
    for f in range(12):
        k.wlg(f'm{f}')
        if f<10: rdmod(f+2)
        for ct in range(3):
            for h in range(2): k.ds(f'ds_read_b64_tr_b16 {a((f*3+ct)*4+2*h,2)}, v{244+ct} offset:{f*4096+h*512}','b')
        o=160+(f%3)*16; t=XH+8*f
        for p in range(8): k.e(f'v_fma_f32 v{t+p}, v{t+p}, v{o+8+p}, v{o+p}')
        for p in range(4): k.e(f'v_cvt_pk_bf16_f32 v{X+4*f+p}, v{t+2*p}, v{t+2*p+1}')
    k.xs('q3'); S(k,'s_waitcnt lgkmcnt(0); s_barrier')
    for f in range(12): k.e(f'ds_write_b128 v8, {v(X+4*f,4)} offset:{f*1024}')
    stage_setup(k)
    S(k,'s_waitcnt lgkmcnt(0); s_barrier'); k.lg=[]
```
